```python
import torch

def _softmax(x, axis=-1):
    return torch.softmax(x, dim=axis)

def _gelu(x):
    return torch.nn.functional.gelu(x, approximate='tanh')

def _silu(x):
    return torch.nn.functional.silu(x)

def _sigmoid(x):
    return torch.sigmoid(x)

def _layernorm(x, axis=-1, eps=1e-05):
    m = x.mean(dim=axis, keepdim=True)
    v = x.var(dim=axis, keepdim=True, unbiased=False)
    return (x - m) / torch.sqrt(v + eps)

def _scatter_add(tgt, idx, src, axis=0):
    return tgt.clone().index_add_(axis, idx, src)

def _segment_sum(src, seg, n):
    out = torch.zeros((n,) + src.shape[1:], dtype=src.dtype)
    return out.index_add_(0, seg, src)

def _pad(x, pw):
    flat = tuple((v for pair in reversed(pw) for v in pair))
    return torch.nn.functional.pad(x, flat)
kernel_name = 'sequential_preLN__memory_aug_recurrent_mem_tr__mixer_s_mlp__prompt'

def setup_inputs():

    _w = lambda a: (lambda t: t.to(torch.bfloat16) if t.is_floating_point() else t)(torch.as_tensor(a))

    def _A_setup():
        B, S, Dm = (1, 2048, 640)
        H, Dh = (32, 128)
        M, seg = (8, 32)
        seg = min(seg, S)
        S = S // seg * seg
        return {'x': _w((lambda *s: torch.randn(*s, dtype=torch.bfloat16) * 0.05)(B, S, Dm)), 'mem0': _w((lambda *s: torch.randn(*s, dtype=torch.bfloat16) * 0.2)(B, M, Dm)), 'Wq': _w((lambda *s: torch.randn(*s, dtype=torch.bfloat16) * 1.6)(Dm, H, Dh) * Dm ** (-0.5)), 'Wk': _w((lambda *s: torch.randn(*s, dtype=torch.bfloat16) * 1.6)(Dm, H, Dh) * Dm ** (-0.5)), 'Wv': _w((lambda *s: torch.randn(*s, dtype=torch.bfloat16) * 0.2)(Dm, H, Dh) * Dm ** (-0.5)), 'Wo': _w((lambda *s: torch.randn(*s, dtype=torch.bfloat16) * 0.2)(H, Dh, Dm) * (H * Dh) ** (-0.5)), 'seg_len': seg}
    _A_in = _A_setup()

    def _B_setup():
        B, S, D, F = (1, 2048, 640, 1728)
        return {'x': _w((lambda *s: torch.randn(*s, dtype=torch.bfloat16) * 0.05)(B, S, D)), 'w1': _w((lambda *s: torch.randn(*s, dtype=torch.bfloat16) * 0.8)(D, D) * D ** (-0.5)), 'w2': _w((lambda *s: torch.randn(*s, dtype=torch.bfloat16) * 0.8)(D, D) * D ** (-0.5)), 'w3': _w((lambda *s: torch.randn(*s, dtype=torch.bfloat16) * 0.8)(D, F) * D ** (-0.5)), 'w4': _w((lambda *s: torch.randn(*s, dtype=torch.bfloat16) * 0.8)(F, D) * F ** (-0.5))}
    _B_in = _B_setup()
    return {'A_x': _A_in['x'], 'A_mem0': _A_in['mem0'], 'A_Wq': _A_in['Wq'], 'A_Wk': _A_in['Wk'], 'A_Wv': _A_in['Wv'], 'A_Wo': _A_in['Wo'], 'A_seg_len': _A_in['seg_len'], 'B_x': _B_in['x'], 'B_w1': _B_in['w1'], 'B_w2': _B_in['w2'], 'B_w3': _B_in['w3'], 'B_w4': _B_in['w4']}

def reference(A_x, A_mem0, A_Wq, A_Wk, A_Wv, A_Wo, A_seg_len, B_x, B_w1, B_w2, B_w3, B_w4):

    def _A_ref(x, mem0, Wq, Wk, Wv, Wo, seg_len):
        B, S, Dm = x.shape
        H, Dh = (Wq.shape[1], Wq.shape[2])
        M = mem0.shape[1]
        scale = Dh ** (-0.5)
        n_seg = S // seg_len
        L = M + seg_len
        idx = torch.arange(L)
        mask = (idx[:, None] < M) | (idx[:, None] >= idx[None, :])
        mem = mem0
        outs = []
        for s in range(n_seg):
            xs = x[:, s * seg_len:(s + 1) * seg_len, :].clone()
            h = torch.concatenate([mem, xs], axis=1)
            q = torch.einsum('btd,dhe->bhte', h, Wq)
            k = torch.einsum('btd,dhe->bhte', h, Wk)
            v = torch.einsum('btd,dhe->bhte', h, Wv)
            scores = torch.einsum('bhqe,bhke->bhqk', q, k) * scale
            scores = torch.where(mask[None, None], scores, -1000000000.0)
            p = _softmax(scores, axis=-1)
            o = torch.einsum('bhqk,bhke->bhqe', p, v)
            o = torch.einsum('bhte,hed->btd', o, Wo)
            mem = o[:, :M, :].clone()
            outs.append(o[:, M:, :])
        return torch.concatenate(outs, axis=1)

    def _B_ref(x, w1, w2, w3, w4):
        B, S, D = x.shape
        h = _gelu(_layernorm(x, axis=-1) @ w1)
        c = D // 4
        g0 = _pad(h[:, :, 0 * c:1 * c], ((0, 0), (1, 0), (0, 0)))[:, :S, :]
        g1 = _pad(h[:, :, 1 * c:2 * c], ((0, 0), (0, 1), (0, 0)))[:, 1:, :]
        g2 = _pad(h[:, :, 2 * c:3 * c], ((0, 0), (2, 0), (0, 0)))[:, :S, :]
        g3 = _pad(h[:, :, 3 * c:], ((0, 0), (0, 2), (0, 0)))[:, 2:, :]
        hs = torch.concatenate([g0, g1, g2, g3], axis=-1) @ w2
        x1 = x + hs
        h2 = _gelu(_layernorm(x1, axis=-1) @ w3) @ w4
        return x1 + h2
    x = A_x
    h = x + _A_ref(_layernorm(x, axis=-1), A_mem0, A_Wq, A_Wk, A_Wv, A_Wo, A_seg_len)
    h2 = h + _B_ref(_layernorm(h, axis=-1), B_w1, B_w2, B_w3, B_w4)
    return h2
```

```python
import re

REG_RE = re.compile(r'^(-?)(abs\()?([vas])(?:(\d+)|\[(\d+):(\d+)\])\)?$')


def regs_of(tok):
    tok = tok.strip()
    m = REG_RE.match(tok)
    if m:
        f = m.group(3)
        if m.group(4) is not None:
            lo = hi = int(m.group(4))
        else:
            lo, hi = int(m.group(5)), int(m.group(6))
        return {(f, i) for i in range(lo, hi + 1)}
    if tok == 'vcc':
        return {('s', 'vcc_lo'), ('s', 'vcc_hi')}
    if tok in ('vcc_lo', 'vcc_hi'):
        return {('s', tok)}
    if tok == 'exec':
        return {('s', 'exec_lo'), ('s', 'exec_hi')}
    if tok in ('exec_lo', 'exec_hi'):
        return {('s', tok)}
    if tok == 'm0':
        return {('s', 'm0')}
    return set()


def v(i, n=1):
    return 'v%d' % i if n == 1 else 'v[%d:%d]' % (i, i + n - 1)


def a(i, n=1):
    return 'a%d' % i if n == 1 else 'a[%d:%d]' % (i, i + n - 1)


def s(i, n=1):
    return 's%d' % i if n == 1 else 's[%d:%d]' % (i, i + n - 1)


TRANS = ('v_exp_f32', 'v_log_f32', 'v_rcp_f32', 'v_rsq_f32', 'v_sqrt_f32', 'v_sin_f32', 'v_cos_f32')
NODST_S = ('s_cmp', 's_waitcnt', 's_barrier', 's_branch', 's_cbranch', 's_nop', 's_setprio', 's_sleep',
           's_endpgm', 's_bitcmp', 's_setpc', 's_sethalt', 's_setreg')


class Inst:
    def __init__(self, text):
        self.text = text
        body = text.split(';')[0].strip()
        parts = body.split(None, 1)
        self.op = parts[0]
        rest = parts[1] if len(parts) > 1 else ''
        toks = [t.strip() for t in re.split(r',(?![^\[]*\])', rest)] if rest else []
        self.mods = ''
        if toks:
            last = toks[-1].split(None, 1)
            toks[-1] = last[0]
            self.mods = last[1] if len(last) > 1 else ''
        self.toks = toks
        self.classify()

    def classify(self):
        op, t = self.op, self.toks
        R = [regs_of(x) for x in t]
        U = lambda xs: set().union(*xs) if xs else set()
        self.kind = 'other'
        self.wr, self.rd = set(), set()
        self.srcA = self.srcB = self.srcC = set()
        self.passes = 0
        self.dpp = ('row_' in self.mods or 'quad_perm' in self.mods or 'wave_' in self.mods or op.endswith('_dpp'))
        self.trans = any(op.startswith(x) for x in TRANS)
        self.wide_store = set()
        if op.startswith('v_mfma'):
            self.kind = 'mfma'
            self.wr = R[0]; self.srcA, self.srcB, self.srcC = R[1], R[2], R[3]
            self.rd = R[1] | R[2] | R[3]
            self.passes = 8 if '32x32' in op else 4
        elif op.startswith('v_smfmac'):
            self.kind = 'mfma'
            self.wr = R[0]; self.srcA, self.srcB, self.srcC = R[1], R[2] | R[3], R[0]
            self.rd = R[0] | R[1] | R[2] | R[3]
            self.passes = 8 if '32x32' in op else 4
        elif op.startswith('v_permlane'):
            self.kind = 'valu'
            self.wr = R[0] | R[1]; self.rd = R[0] | R[1]
        elif op.startswith('v_'):
            self.kind = 'valu'
            if op.startswith('v_nop'):
                pass
            elif op.startswith(('v_add_co', 'v_sub_co', 'v_addc_co', 'v_subb_co', 'v_subrev_co')):
                self.wr = R[0] | R[1]; self.rd = U(R[2:])
            else:
                self.wr = R[0]; self.rd = U(R[1:])
                if op.startswith(('v_fmac', 'v_pk_fmac', 'v_dot2c', 'v_writelane')) or self.dpp or 'dst_sel' in self.mods:
                    self.rd |= R[0]
        elif op.startswith('buffer_') or op.startswith('global_') or op.startswith('flat_'):
            self.kind = 'vmem'
            mods = self.mods.split()
            if op.startswith('buffer_wbl2') or op.startswith('buffer_inv'):
                pass
            elif op.startswith('buffer_load'):
                if 'lds' in mods:
                    self.rd = U(R) | {('s', 'm0')}
                else:
                    self.wr = R[0]; self.rd = U(R[1:])
            elif op.startswith('global_load_lds'):
                self.rd = U(R) | {('s', 'm0')}
            elif op.startswith('global_load'):
                self.wr = R[0]; self.rd = U(R[1:])
            elif op.startswith('buffer_store'):
                self.rd = U(R)
                if 'x4' in op or 'x3' in op:
                    self.wide_store = R[0]
            elif op.startswith('global_store'):
                self.rd = U(R)
                if 'x4' in op or 'x3' in op:
                    self.wide_store = R[1]
            elif op.startswith('buffer_atomic'):
                self.rd = U(R)
                if 'sc0' in mods:
                    self.wr = R[0]
            elif op.startswith('global_atomic'):
                if 'sc0' in mods:
                    self.wr = R[0]; self.rd = U(R[1:])
                else:
                    self.rd = U(R)
            else:
                raise ValueError(op)
        elif op.startswith('ds_'):
            self.kind = 'ds'
            if op.startswith(('ds_read', 'ds_bpermute', 'ds_permute', 'ds_swizzle')) or '_rtn' in op:
                self.wr = R[0]; self.rd = U(R[1:])
            else:
                self.rd = U(R)
        elif op.startswith('s_'):
            self.kind = 'salu'
            if op.startswith(NODST_S):
                self.rd = U(R)
            elif op.startswith('s_load') or op.startswith('s_memtime') or op.startswith('s_memrealtime'):
                self.kind = 'smem'
                self.wr = R[0]; self.rd = U(R[1:])
            elif 'saveexec' in op:
                self.wr = R[0] | regs_of('exec'); self.rd = U(R[1:]) | regs_of('exec')
            else:
                self.wr = R[0]; self.rd = U(R[1:])
                if op.startswith(('s_addk', 's_mulk', 's_cmov', 's_bitset')):
                    self.rd |= R[0]
        else:
            raise ValueError('unknown op ' + op)

    def states(self):
        if self.op == 's_nop':
            return int(self.toks[0], 0) + 1
        return 1


def vec(x):
    return {r for r in x if r[0] in 'va'}


def sca(x):
    return {r for r in x if r[0] == 's'}


def need(p, c):
    n = 0
    if p.kind == 'valu':
        w = vec(p.wr)
        if c.kind == 'mfma' and (w & c.rd):
            n = max(n, 2)
        if c.kind == 'valu':
            if c.dpp and (w & c.rd):
                n = max(n, 2)
            if c.op.startswith('v_permlane') and (w & c.rd):
                n = max(n, 2)
            if c.op.startswith(('v_readlane', 'v_readfirstlane')) and (w & c.rd):
                n = max(n, 1)
            if p.trans and not c.trans and (w & c.rd):
                n = max(n, 1)
            if ('dst_sel' in p.mods or ('op_sel' in p.mods and not p.op.startswith('v_pk_'))) and (w & (c.rd | c.wr)):
                n = max(n, 1)
        sw = sca(p.wr)
        if sw:
            if c.kind in ('valu', 'mfma') and (sw & c.rd):
                n = max(n, 4 if c.op.startswith(('v_readlane', 'v_writelane')) else 2)
            if c.kind == 'vmem' and (sw & c.rd):
                n = max(n, 5)
            if c.kind == 'salu' and (sw & c.rd):
                n = max(n, 1)
    if p.kind == 'mfma':
        D = p.wr
        big = {4: 8, 8: 12}[p.passes]
        if c.kind == 'mfma':
            if D & (c.srcA | c.srcB):
                n = max(n, big)
            if D & c.srcC:
                if not (D == c.srcC and p.passes == c.passes):
                    n = max(n, {4: 6, 8: 10}[p.passes])
            elif D & c.wr and D != c.wr:
                n = max(n, {4: 6, 8: 10}[p.passes])
        elif c.kind in ('valu', 'vmem', 'ds'):
            if D & (c.rd | c.wr):
                n = max(n, big)
        if c.kind == 'valu' and (p.srcC & c.wr):
            n = max(n, {4: 3, 8: 7}[p.passes])
    if p.kind == 'salu' and ('s', 'm0') in p.wr and c.kind == 'vmem' and ('s', 'm0') in c.rd:
        n = max(n, 1)
    if p.wide_store:
        if p.wide_store & c.wr:
            n = max(n, 2 if c.kind in ('valu', 'mfma') else 1)
    return n


class Prog:
    def __init__(self):
        self.items = []
        self.uid = 0

    def __call__(self, text):
        for line in text.split('\n'):
            line = line.strip()
            if not line:
                continue
            if line.startswith(';') or line.startswith('.'):
                self.items.append(('r', line))
            elif line.endswith(':'):
                self.items.append(('l', line[:-1]))
            else:
                self.items.append(('i', Inst(line)))

    def label(self, name):
        self.items.append(('l', name))

    def newlabel(self, base='L'):
        self.uid += 1
        return '%s_%d' % (base, self.uid)

    def raw(self, text):
        self.items.append(('r', text))

    def fix_hazards(self, verbose=False):
        MAXW = 12
        inserted = 0
        changed = True
        while changed:
            changed = False
            items = self.items
            labels = {it[1]: k for k, it in enumerate(items) if it[0] == 'l'}
            jumps = {}
            for k, it in enumerate(items):
                if it[0] == 'i' and (it[1].op.startswith('s_branch') or it[1].op.startswith('s_cbranch')):
                    tgt = it[1].toks[0]
                    if tgt in labels:
                        jumps.setdefault(labels[tgt], []).append(k)

            def preds(k):
                out = []
                stack = [k]
                seen = set()
                while stack:
                    q = stack.pop()
                    j = q - 1
                    while j >= 0:
                        it = items[j]
                        if it[0] == 'l':
                            for b in jumps.get(j, []):
                                if b not in seen:
                                    seen.add(b); out.append(b)
                            j -= 1
                            continue
                        if it[0] == 'r':
                            j -= 1
                            continue
                        if it[1].op in ('s_branch', 's_endpgm') or it[1].op.startswith('s_setpc'):
                            break
                        if j not in seen:
                            seen.add(j); out.append(j)
                        break
                return out

            pc = {}
            for k, it in enumerate(items):
                if it[0] != 'i':
                    continue
                c = it[1]
                if c.kind in ('salu', 'smem') and not c.rd:
                    continue
                short = 0
                stack = [(k, 0)]
                best = {}
                while stack:
                    q, dist = stack.pop()
                    if q not in pc:
                        pc[q] = preds(q)
                    for pj in pc[q]:
                        p = items[pj][1]
                        nd = need(p, c)
                        if nd > dist:
                            short = max(short, nd - dist)
                        d2 = dist + p.states()
                        if d2 < MAXW and best.get(pj, 99) > d2:
                            best[pj] = d2
                            stack.append((pj, d2))
                if short > 0:
                    if verbose:
                        print('nop %d before: %s' % (short, c.text))
                    items.insert(k, ('i', Inst('s_nop %d' % (short - 1))))
                    inserted += 1
                    changed = True
                    break
        return inserted

    def fix_hazards_fast(self, verbose=False):
        MAXW = 12
        items = self.items
        k = 0
        inserted = 0
        while True:
            labels = {it[1]: i for i, it in enumerate(items) if it[0] == 'l'}
            jumps = {}
            for i, it in enumerate(items):
                if it[0] == 'i' and (it[1].op.startswith('s_branch') or it[1].op.startswith('s_cbranch')):
                    tgt = it[1].toks[0]
                    if tgt in labels:
                        jumps.setdefault(labels[tgt], []).append(i)
            new = []
            todo = {}

            def preds(k):
                out = []
                j = k - 1
                while j >= 0:
                    it = items[j]
                    if it[0] == 'l':
                        out.extend(jumps.get(j, []))
                        j -= 1
                        continue
                    if it[0] == 'r':
                        j -= 1
                        continue
                    if it[1].op in ('s_branch', 's_endpgm') or it[1].op.startswith('s_setpc'):
                        break
                    out.append(j)
                    break
                return out
            pc = {}
            for k, it in enumerate(items):
                if it[0] != 'i':
                    continue
                c = it[1]
                short = 0
                stack = [(k, 0)]
                best = {}
                while stack:
                    q, dist = stack.pop()
                    if q not in pc:
                        pc[q] = preds(q)
                    for pj in pc[q]:
                        p = items[pj][1]
                        nd = need(p, c)
                        if nd > dist:
                            short = max(short, nd - dist)
                        d2 = dist + p.states() + todo.get(pj, 0)
                        if d2 < MAXW and best.get(pj, 99) > d2:
                            best[pj] = d2
                            stack.append((pj, d2))
                if short > 0:
                    todo[k] = short
                    if verbose:
                        print('nop %d before: %s' % (short, c.text))
            if not todo:
                break
            for k, it in enumerate(items):
                if k in todo:
                    new.append(('i', Inst('s_nop %d' % (todo[k] - 1))))
                    inserted += 1
                new.append(it)
            self.items = items = new
        return inserted

    def fix_hazards_timed(self, verbose=False):
        items = self.items
        inserted = 0
        while True:
            labels = {it[1]: i for i, it in enumerate(items) if it[0] == 'l'}
            n = len(items)

            def succs(k):
                it = items[k][1]
                out = []
                if it.op.startswith('s_branch') or it.op.startswith('s_cbranch'):
                    j = labels.get(it.toks[0])
                    if j is not None:
                        while j < n and items[j][0] != 'i':
                            j += 1
                        if j < n:
                            out.append(j)
                if it.op in ('s_branch', 's_endpgm') or it.op.startswith('s_setpc'):
                    return out
                j = k + 1
                while j < n and items[j][0] != 'i':
                    j += 1
                if j < n:
                    out.append(j)
                return out
            todo = {}
            sc = {}
            for k, it in enumerate(items):
                if it[0] != 'i':
                    continue
                p = it[1]
                if p.kind in ('salu', 'smem', 'ds') and not (p.kind == 'salu' and ('s', 'm0') in p.wr):
                    continue
                lim = 56
                mf0 = 4 * p.passes if p.kind == 'mfma' else 0
                stack = []
                if k not in sc:
                    sc[k] = succs(k)
                for q in sc[k]:
                    stack.append((q, 4, mf0))
                seen = {}
                while stack:
                    q, tnow, mf = stack.pop()
                    c = items[q][1]
                    tnow += 4 * todo.get(q, 0)
                    if c.kind == 'mfma' and p.kind == 'mfma':
                        tnow = max(tnow, mf)
                    key = (q, tnow, mf)
                    if key in seen:
                        continue
                    seen[key] = 1
                    nd = need(p, c)
                    if nd and tnow < 4 + 4 * nd:
                        add = (4 + 4 * nd - tnow + 3) // 4
                        todo[q] = todo.get(q, 0) + add
                        tnow += 4 * add
                        if verbose:
                            print('nop %d before: %s   <- %s' % (add, c.text, p.text))
                    t2 = tnow + 4 * c.states()
                    mf2 = tnow + 4 * c.passes if (c.kind == 'mfma' and p.kind == 'mfma') else mf
                    if t2 < lim:
                        if q not in sc:
                            sc[q] = succs(q)
                        for r in sc[q]:
                            stack.append((r, t2, mf2))
            if not todo:
                break
            new = []
            for k, it in enumerate(items):
                if k in todo:
                    x = todo[k]
                    while x > 0:
                        new.append(('i', Inst('s_nop %d' % (min(x, 16) - 1))))
                        x -= 16
                    inserted += 1
                new.append(it)
            self.items = items = new
        return inserted

    def text(self):
        out = []
        for kind, x in self.items:
            if kind == 'i':
                out.append('    ' + x.text)
            elif kind == 'l':
                out.append(x + ':')
            else:
                out.append(x)
        return '\n'.join(out) + '\n'

    def ninst(self):
        return sum(1 for it in self.items if it[0] == 'i')
```

```python
S, D, H, DH, M, SEG, NSEG, F = 2048, 640, 32, 128, 8, 32, 64, 1728

KA_X, KA_MEM0, KA_WQ, KA_WK, KA_WV, KA_WO = 0, 8, 16, 24, 32, 40
KA_W1, KA_W2, KA_W3, KA_W4 = 64, 72, 80, 88
KA_OUT, KA_DBG, KA_WS = 96, 104, 112

WS_BYTES = 268435456
PFLAG = 0x0000
KMFLAG = 0x1000
LNFLAG = 0x2000
ATFLAG = 0x2400
ZFLAG = 0x2600
DFLAG = 0x2800
EFLAG = 0x2c00
NCL = 4
MEMR = 0x10000
MEML = 0x20000
PART = 0x40000
PART_X = 0x28000
KX = 0x0100000
VX = KX + 0x1000000
QX = VX + 0x1000000
KM = QX + 0x1000000
VM = KM + 0x0800000
ROWS = 0x0290000
XN = VM + 0x0800000 + 2560
ZB = XN + ROWS
Z2 = ZB + ROWS
HB = Z2 + ROWS
YB = HB + ROWS
X1 = YB + ROWS
MEM0S = VM + 0x0800000 + 6 * ROWS
APART = MEM0S + 0x200000
APART_SLOT = 32 * 32 * 1280
DPART = APART + 4 * APART_SLOT
DPART_S = 32 * 5 * 1280
FPART = DPART + 64 * DPART_S
FPART_S = 32 * 14 * 1280
END0 = (FPART + 64 * FPART_S + 0xffff) & ~0xffff
assert END0 + 0x100000 < WS_BYTES

DBG_ARRIVE, DBG_XCCMASK0, DBG_NEAR, DBG_ERR = 0, 4, 40, 44
```

```python
from asmlib import *
from layout import *

def tt(f):
    return sum((f(a_, b_, c_) & 1) << ((a_ << 2) | (b_ << 1) | c_) for a_ in (0, 1) for b_ in (0, 1) for c_ in (0, 1))
TT_XX = tt(lambda a_, b_, c_: (a_ ^ c_) | (b_ ^ c_))
TT_OM = tt(lambda a_, b_, c_: (a_ | b_) & c_)
TT_XO = tt(lambda a_, b_, c_: (a_ ^ c_) | b_)

S_WS, S_DBG, S_TMP = 8, 12, 16
S_CLS, S_IDX, S_WAVE, S_SPIN = 3, 4, 5, 6
SPIN_LIMIT = 400000
sX, sH, sW = S_CLS, S_IDX, S_WAVE
sStep, sTagP, sTagR, sK1P, sK1R, sT16P, sT16R = 20, 21, 22, 23, 24, 25, 26
sPartSt0, sPartSt1, sPartLd, sMemLSt, sMemRSt, sMemLLd, sMemRLd = 27, 28, 29, 30, 31, 32, 33
sKV, sKM, sTch, sFlagOff, sKmFlagOff, sFast, sT0, sT1, sT2, sT3 = 34, 35, 36, 37, 38, 39, 40, 41, 42, 43
sC8 = 44
sEx8 = 46
sExSt = 48
sScale = 50
sVXoff = 51
sChk = 52
sScale2 = 54
sPartSt2 = 53
sSelM = 60
sOdd = 76
sProg = 79
sMemRNx = 56
sStamp = 86

vKx, vVx = 0, 8
vSig, vIdx, vL16, vW1K, vVW, vOWr, vPSt = 16, 18, 19, 20, 21, 22, 23
X_, AV, T_, Y_, Z_, SP = 24, 40, 48, 56, 76, 92
accQ, accK = X_, X_ + 8
vL4 = T_ + 5

L_MEM, L_SX, L_W = 0, 10240, 16384
L_O = 5 * 1024

LDS_PAIRS = [('q', 0), ('k', 1), ('q', 3), ('k', 4), ('v', 2), ('q', 6), ('q', 9), ('k', 7), ('v', 5)]

def weight_regs():
    free = [a(8 * i, 8) for i in range(32)] + [v(96 + 8 * i, 8) for i in range(20)]
    m = {}
    for mat in 'qkv':
        for p in range(10):
            if (mat, p) in LDS_PAIRS:
                continue
            for nt in range(2):
                m[(mat, p, nt)] = free.pop(0)
    for kt2 in range(2):
        for T in range(5):
            m[('o', kt2, T)] = free.pop(0)
    assert not free
    return m
WR = weight_regs()

def sub(reg, off, n):
    f, lo = reg[0], int(reg[2:reg.index(':')])
    return (a if f == 'a' else v)(lo + off, n)


def srd(P, dst, lo, nbytes):
    P('s_mov_b32 %s, %s' % (s(dst), s(lo)))
    P('s_and_b32 %s, %s, 0xffff' % (s(dst + 1), s(lo + 1)))
    P('s_mov_b32 %s, 0x%x' % (s(dst + 2), nbytes))
    P('s_mov_b32 %s, 0x20000' % s(dst + 3))


def r_prologue(P, diag):
    ws = s(S_WS, 4)
    P('; ===== R prologue =====')
    lane, t0, t1, t2, t3 = 92, 93, 94, 95, 91
    P('v_and_b32 %s, 63, v0' % v(lane))
    P('v_lshlrev_b32 %s, 4, %s' % (v(vL16), v(lane)))
    zz = 24
    for i in range(4):
        P('v_mov_b32 %s, 0' % v(zz + i))
    P('s_mul_i32 %s, %s, 0x%x' % (s(sT0), s(sX), PART_X))
    P('s_add_u32 %s, %s, 0x%x' % (s(sT0), s(sT0), PART))
    P('s_lshl_b32 %s, %s, 5' % (s(sT1), s(sW)))
    P('s_add_u32 %s, %s, %s' % (s(sT1), s(sT1), s(sH)))
    P('s_lshl_b32 %s, %s, 11' % (s(sT2), s(sT1)))
    P('s_add_u32 %s, %s, %s' % (s(sPartLd), s(sT0), s(sT2)))
    P('s_lshl_b32 %s, %s, 6' % (s(sT2), s(sH)))
    P('s_add_u32 %s, %s, %s' % (s(sPartSt0), s(sT0), s(sT2)))
    P('s_add_u32 %s, %s, 0x4000' % (s(sPartSt1), s(sPartSt0)))
    P('s_add_u32 %s, %s, 0x8000' % (s(sPartSt2), s(sPartSt0)))
    Lnoclr = P.newlabel('R_noclr')
    P('s_cmp_ge_u32 %s, 80' % s(sT1))
    P('s_cbranch_scc1 %s' % Lnoclr)
    for i in range(2):
        P('buffer_store_dwordx4 %s, %s, %s, %s offen offset:%d sc1' % (v(zz, 4), v(vL16), ws, s(sPartLd), 1024 * i))
    P.label(Lnoclr)
    P('s_lshr_b32 %s, %s, 4' % (s(sT2), s(sT1)))
    P('s_lshl_b32 %s, %s, 10' % (s(sT2), s(sT2)))
    P('s_bfe_u32 %s, %s, 0x20002' % (s(sT3), s(sT1)))
    P('s_lshl_b32 %s, %s, 8' % (s(sT3), s(sT3)))
    P('s_add_u32 %s, %s, %s' % (s(sT2), s(sT2), s(sT3)))
    P('s_and_b32 %s, %s, 3' % (s(sT3), s(sT1)))
    P('s_lshl_b32 %s, %s, 6' % (s(sT3), s(sT3)))
    P('s_add_u32 %s, %s, %s' % (s(sT2), s(sT2), s(sT3)))
    P('s_lshl_b32 %s, %s, 13' % (s(sT3), s(sX)))
    P('s_add_u32 %s, %s, 0x%x' % (s(sT3), s(sT3), MEML))
    P('s_add_u32 %s, %s, %s' % (s(sMemLSt), s(sT3), s(sT2)))
    P('s_lshl_b32 %s, %s, 10' % (s(sT0), s(sW)))
    P('s_mov_b32 %s, %s' % (s(sMemLLd), s(sT3)))
    P('s_lshl_b32 %s, %s, 15' % (s(sT1), s(sX)))
    P('s_add_u32 %s, %s, %s' % (s(sMemRSt), s(sT1), s(sT2)))
    P('s_add_u32 %s, %s, 0x%x' % (s(sMemRSt), s(sMemRSt), MEMR))
    P('s_xor_b32 %s, %s, 0x8000' % (s(sT1), s(sT1)))
    P('s_add_u32 %s, %s, 0x%x' % (s(sMemRLd), s(sT1), MEMR))
    Lw3 = P.newlabel('R_w3clr')
    P('s_cmp_lg_u32 %s, 3' % s(sW))
    P('s_cbranch_scc1 %s' % Lw3)
    P('s_lshl_b32 %s, %s, 7' % (s(sKmFlagOff), s(sH)))
    P('s_lshl_b32 %s, %s, 2' % (s(sT0), s(sX)))
    P('s_add_u32 %s, %s, %s' % (s(sKmFlagOff), s(sKmFlagOff), s(sT0)))
    P('s_add_u32 %s, %s, 0x%x' % (s(sKmFlagOff), s(sKmFlagOff), KMFLAG))
    P('buffer_store_dword %s, %s, %s, %s offen sc1' % (v(zz), v(zz), ws, s(sKmFlagOff)))
    P('s_cmp_ge_u32 %s, 5' % s(sH))
    P('s_cbranch_scc1 %s' % Lw3)
    P('s_lshl_b32 %s, %s, 15' % (s(sT0), s(sX)))
    P('s_lshl_b32 %s, %s, 13' % (s(sT1), s(sH)))
    P('s_add_u32 %s, %s, %s' % (s(sT0), s(sT0), s(sT1)))
    P('s_add_u32 %s, %s, 0x%x' % (s(sT0), s(sT0), MEMR - 0x2000))
    P('s_cmp_eq_u32 %s, 0' % s(sH))
    P('s_cselect_b32 %s, %s, %s' % (s(sT0), s(sT3), s(sT0)))
    P('s_add_u32 %s, %s, 0x1000' % (s(sT1), s(sT0)))
    for i in range(8):
        P('buffer_store_dwordx4 %s, %s, %s, %s offen offset:%d sc1' % (v(zz, 4), v(vL16), ws, s(sT0 if i < 4 else sT1), 1024 * (i & 3)))
    P.label(Lw3)

    P('s_load_dwordx4 s[60:63], s[0:1], %d' % KA_WQ)
    P('s_load_dwordx4 s[64:67], s[0:1], %d' % KA_WV)
    P('s_load_dwordx2 s[68:69], s[0:1], %d' % KA_MEM0)
    vD = 28
    P('v_lshrrev_b32 %s, 4, %s' % (v(t0), v(lane)))
    P('v_and_b32 %s, 15, %s' % (v(t1), v(lane)))
    P('v_and_b32 %s, 1, %s' % (v(t2), v(t0)))
    P('v_lshlrev_b32 %s, 1, %s' % (v(t2), v(t2)))
    P('v_xor_b32 %s, %s, %s' % (v(t1), v(t1), v(t2)))
    P('s_lshl_b32 %s, %s, 4' % (s(sT0), s(sW)))
    P('v_add_u32 %s, %s, %s' % (v(t0), s(sT0), v(t0)))
    for i in range(4):
        sig = ((i & 1) << 1 | ((i >> 1) & 1) << 2) << 1
        P('v_xor_b32 %s, %d, %s' % (v(t2), sig, v(t1)))
        P('v_lshlrev_b32 %s, 4, %s' % (v(t2), v(t2)))
        P('v_add_u32 %s, %d, %s' % (v(t3), 4 * i, v(t0)))
        P('v_lshl_add_u32 %s, %s, 13, %s' % (v(vD + i), v(t3), v(t2)))
    vTR = 32
    gb, r4, cq = 34, 35, 36
    P('v_lshrrev_b32 %s, 4, %s' % (v(gb), v(lane)))
    P('v_bfe_u32 %s, %s, 2, 2' % (v(r4), v(lane)))
    P('v_and_b32 %s, 3, %s' % (v(cq), v(lane)))
    P('v_lshrrev_b32 %s, 1, %s' % (v(t0), v(gb)))
    P('v_lshlrev_b32 %s, 4, %s' % (v(t0), v(t0)))
    P('v_and_b32 %s, 1, %s' % (v(t1), v(gb)))
    P('v_lshl_add_u32 %s, %s, 2, %s' % (v(t0), v(t1), v(t0)))
    P('v_and_b32 %s, 1, %s' % (v(t2), v(r4)))
    P('v_add_u32 %s, %s, %s' % (v(t0), v(t0), v(t2)))
    P('v_lshrrev_b32 %s, 1, %s' % (v(t3), v(r4)))
    P('v_lshl_add_u32 %s, %s, 3, %s' % (v(t0), v(t3), v(t0)))
    P('v_lshl_add_u32 %s, %s, 1, %s' % (v(t2), v(t1), v(t2)))
    P('v_lshl_add_u32 %s, %s, 2, %s' % (v(t2), v(t3), v(t2)))
    P('s_lshl_b32 %s, %s, 1' % (s(sT0), s(sW)))
    P('v_xor_b32 %s, %s, %s' % (v(t2), s(sT0), v(t2)))
    P('v_lshlrev_b32 %s, 5, %s' % (v(t2), v(t2)))
    P('v_lshl_add_u32 %s, %s, 8, %s' % (v(t2), v(t0), v(t2)))
    P('v_lshl_add_u32 %s, %s, 3, %s' % (v(vTR), v(cq), v(t2)))
    P('v_xor_b32 %s, 32, %s' % (v(vTR + 1), v(vTR)))
    vOR, vOC = 37, 42
    P('s_mov_b32 %s, 0xcccd' % s(sT0))
    for i in range(5):
        P('v_add_u32 %s, %d, %s' % (v(t0), 64 * i, v(lane)))
        P('v_mul_lo_u32 %s, %s, %s' % (v(t1), v(t0), s(sT0)))
        P('v_lshrrev_b32 %s, 21, %s' % (v(t1), v(t1)))
        P('v_mul_u32_u24 %s, 40, %s' % (v(t2), v(t1)))
        P('v_sub_u32 %s, %s, %s' % (v(t2), v(t0), v(t2)))
        P('v_lshlrev_b32 %s, 4, %s' % (v(vOC + i), v(t2)))
        P('v_mul_u32_u24 %s, 1280, %s' % (v(vOR + i), v(t1)))
    P('s_waitcnt lgkmcnt(0)')
    reg_items = [(m_, p) for m_ in 'qkv' for p in range(10) if (m_, p) not in LDS_PAIRS]
    items = reg_items + LDS_PAIRS
    assert len(items) == 30 and len(reg_items) == 21
    slot_of = lambda j: j % 10
    tmp = s(S_TMP, 4)
    ptr = {'q': 60, 'k': 62, 'v': 64}
    sHB, sXK = 70, 71
    P('s_lshl_b32 %s, %s, 8' % (s(sHB), s(sH)))
    P('s_mul_i32 %s, %s, 5' % (s(sXK), s(sX)))
    P('s_lshl_b32 s72, %s, 12' % s(sW))
    srd(P, S_TMP, 66, 32 * 128 * 640 * 2)
    P('s_mul_i32 %s, %s, %d' % (s(sT0), s(sH), 128 * 1280))
    P('s_mul_i32 %s, %s, %d' % (s(sT1), s(sW), 32 * 1280))
    P('s_add_u32 %s, %s, %s' % (s(sT0), s(sT0), s(sT1)))
    P('s_mul_i32 %s, %s, 640' % (s(sT1), s(sX)))
    P('s_add_u32 %s, %s, %s' % (s(sT0), s(sT0), s(sT1)))
    P('s_mul_i32 %s, %s, %d' % (s(sT1), s(sW), 32 * 640))
    P('s_add_u32 %s, %s, %d' % (s(sT1), s(sT1), 5 * 16384))
    for grp in range(4):
        P('s_lshl_b32 %s, %s, 1' % (s(sT2), s(sW)))
        P('s_add_u32 %s, %s, %d' % (s(sT2), s(sT2), grp >> 1))
        P('s_and_b32 %s, %s, 3' % (s(sT2), s(sT2)))
        P('s_lshl_b32 %s, %s, 5' % (s(sT2), s(sT2)))
        for i in range(5):
            P('v_xor_b32 %s, %s, %s' % (v(t0), s(sT2), v(vOC + i)))
            P('v_add_u32 %s, %s, %s' % (v(t0), v(t0), v(vOR + i)))
            P('s_mov_b32 m0, %s' % s(sT1))
            P('s_add_u32 %s, %s, 1024' % (s(sT1), s(sT1)))
            P('buffer_load_dwordx4 %s, %s, %s offen lds' % (v(t0), tmp, s(sT0)))
        P('s_add_u32 %s, %s, %d' % (s(sT0), s(sT0), 8 * 1280))
    cur = [None]

    def issue_item(j):
        mat, p = items[j]
        if cur[0] != mat:
            srd(P, S_TMP, ptr[mat], 640 * 8192)
            cur[0] = mat
        P('s_add_u32 %s, %s, %d' % (s(sT0), s(sXK), p))
        P('s_sub_u32 %s, %s, 10' % (s(sT1), s(sT0)))
        P('s_cmp_ge_u32 %s, 10' % s(sT0))
        P('s_cselect_b32 %s, %s, %s' % (s(sT0), s(sT1), s(sT0)))
        P('s_lshl_b32 %s, %s, 19' % (s(sT0), s(sT0)))
        P('s_add_u32 %s, %s, %s' % (s(sT0), s(sT0), s(sHB)))
        for i in range(4):
            P('s_add_u32 m0, s72, %d' % (slot_of(j) * 16384 + i * 1024))
            P('s_nop 0')
            P('buffer_load_dwordx4 %s, %s, %s offen lds' % (v(vD + i), tmp, s(sT0)))
    for j in range(5):
        issue_item(j)
    P('s_waitcnt vmcnt(40)')
    P('s_barrier')
    arrive(P)
    vM0 = 76
    P('s_waitcnt vmcnt(20)')
    P('s_barrier')
    P('v_lshrrev_b32 %s, 1, %s' % (v(t0), v(r4)))
    P('v_and_b32 %s, 1, %s' % (v(t1), v(gb)))
    P('v_lshl_add_u32 %s, %s, 1, %s' % (v(t3), v(t0), v(t1)))
    P('v_lshlrev_b32 %s, 4, %s' % (v(t0), v(t3)))
    P('v_lshrrev_b32 %s, 1, %s' % (v(t1), v(gb)))
    P('v_lshl_add_u32 %s, %s, 2, %s' % (v(t0), v(t1), v(t0)))
    P('v_and_b32 %s, 1, %s' % (v(t1), v(r4)))
    P('v_add_u32 %s, %s, %s' % (v(t0), v(t0), v(t1)))
    P('v_mul_u32_u24 %s, 640, %s' % (v(t0), v(t0)))
    P('v_lshl_add_u32 %s, %s, 3, %s' % (v(t0), v(cq), v(t0)))
    P('v_add_u32 %s, %d, %s' % (v(t0), 5 * 16384, v(t0)))
    P('s_mul_i32 %s, %s, 5' % (s(sT0), s(sW)))
    for T in range(5):
        P('s_add_u32 %s, %s, %d' % (s(sT1), s(sT0), T))
        P('v_xor_b32 %s, %s, %s' % (v(t1), s(sT1), v(t3)))
        P('v_lshl_add_u32 %s, %s, 5, %s' % (v(t1), v(t1), v(t0)))
        for kt2 in range(2):
            for j in range(4):
                off = (64 * kt2 + 8 * (j >> 1) + 2 * (j & 1)) * 640
                P('ds_read_b64_tr_b16 %s, %s offset:%d' % (sub(WR[('o', kt2, T)], 2 * j, 2), v(t1), off))
        P('s_waitcnt lgkmcnt(0)')
    P('s_barrier')
    for j in range(5, 10):
        issue_item(j)
    vA = 47
    for j in range(30):
        last_issued = min(29, 9 if j == 0 else j + 8)
        P('s_waitcnt vmcnt(%d)' % (4 * (last_issued - j)))
        P('s_barrier')
        if j >= 1 and j + 9 <= 29:
            issue_item(j + 9)
        mat, p = items[j]
        for nt in range(2):
            P('v_add_u32 %s, %d, %s' % (v(vA + nt), slot_of(j) * 16384, v(vTR + nt)))
        for nt in range(2):
            dst = WR[(mat, p, nt)] if j < 21 else v(56 + 8 * nt, 8)
            for q in range(4):
                off = (q & 1) * 512 + (q >> 1) * 8192
                P('ds_read_b64_tr_b16 %s, %s offset:%d' % (sub(dst, 2 * q, 2), v(vA + nt), off))
        P('s_waitcnt lgkmcnt(0)')
        if j == 20:
            srd(P, S_TMP, 68, 8 * 640 * 2)
            cur[0] = None
        if j >= 21:
            P('s_barrier')
            P('s_add_u32 %s, s72, %d' % (s(sT0), slot_of(j) * 16384))
            P('v_add_u32 %s, %s, %s' % (v(vA), s(sT0), v(vL16)))
            for q in range(4):
                P('ds_write_b128 %s, %s offset:%d' % (v(vA), v(56 + 4 * q, 4), 1024 * q))
            P('s_waitcnt lgkmcnt(0)')
    P('v_and_b32 %s, 7, %s' % (v(t0), v(lane)))
    P('v_mul_u32_u24 %s, 1280, %s' % (v(t0), v(t0)))
    P('v_lshrrev_b32 %s, 3, %s' % (v(t1), v(lane)))
    P('v_lshl_add_u32 %s, %s, 4, %s' % (v(t0), v(t1), v(t0)))
    P('s_lshl_b32 %s, %s, 10' % (s(sT3), s(sW)))
    P('v_add_u32 %s, %s, %s' % (v(vW1K), s(sT3), v(vL16)))
    P('v_lshrrev_b32 %s, 2, %s' % (v(vL4), v(vW1K)))
    P('v_bfe_u32 %s, %s, 4, 3' % (v(t1), v(vL4)))
    P('v_mul_u32_u24 %s, 1280, %s' % (v(t1), v(t1)))
    P('v_lshrrev_b32 %s, 7, %s' % (v(t2), v(vL4)))
    P('v_lshl_add_u32 %s, %s, 4, %s' % (v(t1), v(t2), v(t1)))
    P('v_and_b32 %s, 12, %s' % (v(t2), v(vL4)))
    P('v_add_u32 %s, %s, %s' % (v(t1), v(t1), v(t2)))
    P('s_mul_i32 %s, %s, 640' % (s(sT0), s(sX)))
    P('s_sub_u32 %s, 640, %s' % (s(sT1), s(sT0)))
    P('s_lshl_b32 %s, %s, 7' % (s(sT2), s(sW)))
    P('s_add_u32 %s, %s, %s' % (s(sT3), s(sT0), s(sT2)))
    P('buffer_load_dwordx4 %s, %s, %s, %s offen' % (v(vM0, 4), v(t0), tmp, s(sT3)))
    P('buffer_load_dword %s, %s, %s, %s offen offset:512' % (v(vM0 + 4), v(t1), tmp, s(sT0)))
    P('s_add_u32 %s, %s, %s' % (s(sT3), s(sT1), s(sT2)))
    P('buffer_load_dwordx4 %s, %s, %s, %s offen' % (v(vM0 + 8, 4), v(t0), tmp, s(sT3)))
    P('buffer_load_dword %s, %s, %s, %s offen offset:512' % (v(vM0 + 5), v(t1), tmp, s(sT1)))
    P('s_waitcnt vmcnt(0)')
    P('ds_write_b128 %s, %s' % (v(vW1K), v(vM0, 4)))
    P('ds_write_b32 %s, %s offset:4096' % (v(vL4), v(vM0 + 4)))
    P('v_and_b32 %s, 7, %s' % (v(t0), v(lane)))
    P('v_bfe_u32 %s, %s, 4, 1' % (v(t1), v(lane)))
    P('v_lshlrev_b32 %s, 2, %s' % (v(t1), v(t1)))
    P('v_sub_u32 %s, %s, %s' % (v(t0), v(t0), v(t1)))
    P('v_mov_b32 %s, 0x3f80' % v(t1))
    P('v_mov_b32 %s, 0x3f800000' % v(t2))
    for i in range(2):
        P('v_cmp_eq_u32 vcc, %d, %s' % (2 * i, v(t0)))
        P('v_cndmask_b32 %s, 0, %s, vcc' % (v(vSig + i), v(t1)))
        P('v_cmp_eq_u32 vcc, %d, %s' % (2 * i + 1, v(t0)))
        P('v_cndmask_b32 %s, %s, %s, vcc' % (v(vSig + i), v(vSig + i), v(t2)))
    P('s_mov_b32 %s, 0xff00ff00' % s(sC8))
    P('s_mov_b32 %s, 0xff00ff00' % s(sC8 + 1))
    P('s_mov_b32 %s, 0x00ff00ff' % s(sEx8))
    P('s_mov_b32 %s, 0x00ff00ff' % s(sEx8 + 1))
    P('s_mov_b32 %s, 0x000f000f' % s(sExSt))
    P('s_mov_b32 %s, 0x000f000f' % s(sExSt + 1))
    P('v_mov_b32 %s, 0x4444' % v(t0))
    P('v_mov_b32 %s, 0xeeee' % v(t1))
    P('v_cndmask_b32 %s, %s, %s, %s' % (v(vIdx), v(t0), v(t1), s(sC8, 2)))
    P('s_add_u32 %s, s72, %d' % (s(sT0), L_W))
    P('v_add_u32 %s, %s, %s' % (v(vVW), s(sT0), v(vL16)))
    P('s_lshr_b32 %s, %s, 1' % (s(sT0), s(sW)))
    P('s_lshl_b32 %s, %s, 10' % (s(sT0), s(sT0)))
    P('s_and_b32 %s, %s, 1' % (s(sT1), s(sW)))
    P('s_lshl_b32 %s, %s, 7' % (s(sT1), s(sT1)))
    P('s_add_u32 %s, %s, %s' % (s(sT0), s(sT0), s(sT1)))
    P('s_add_u32 %s, %s, %d' % (s(sT0), s(sT0), L_O))
    P('v_add_u32 %s, %s, %s' % (v(vOWr), s(sT0), v(vL16)))
    P('v_lshrrev_b32 %s, 5, %s' % (v(t0), v(lane)))
    P('s_mul_i32 %s, %s, 5' % (s(sT0), s(sW)))
    P('v_add_u32 %s, %s, %s' % (v(t0), s(sT0), v(t0)))
    P('v_bfe_u32 %s, %s, 3, 1' % (v(t1), v(lane)))
    P('v_lshl_add_u32 %s, %s, 1, %s' % (v(t0), v(t0), v(t1)))
    P('v_bfe_u32 %s, %s, 4, 1' % (v(t1), v(lane)))
    P('v_lshl_add_u32 %s, %s, 1, %s' % (v(t0), v(t0), v(t1)))
    P('v_and_b32 %s, 7, %s' % (v(t1), v(lane)))
    P('v_lshlrev_b32 %s, 3, %s' % (v(t1), v(t1)))
    P('v_lshl_add_u32 %s, %s, 11, %s' % (v(vPSt), v(t0), v(t1)))
    for q in range(4):
        P('s_mov_b32 %s, 0x%08x' % (s(sSelM + 2 * q), 0x03030303 << (2 * q)))
        P('s_mov_b32 %s, 0x%08x' % (s(sSelM + 2 * q + 1), 0x03030303 << (2 * q)))
    P('s_mov_b32 %s, 0xaaaaaaaa' % s(sOdd))
    P('s_mov_b32 %s, 0xaaaaaaaa' % s(sOdd + 1))
    P('s_mov_b32 %s, 0x%08x' % (s(sScale), 0x3e0293ee))
    P('s_lshl_b32 %s, %s, 2' % (s(sT0), s(sH)))
    P('s_add_u32 %s, %s, %s' % (s(sT0), s(sT0), s(sW)))
    P('s_lshl_b32 %s, %s, 11' % (s(sKV), s(sT0)))
    P('s_add_u32 %s, %s, 0x%x' % (s(sKV), s(sKV), KX))
    P('s_lshl_b32 %s, %s, 10' % (s(sKM), s(sT0)))
    P('s_mul_i32 %s, %s, 0x%x' % (s(sT1), s(sX), VM - KM))
    P('s_add_u32 %s, %s, %s' % (s(sKM), s(sKM), s(sT1)))
    P('s_add_u32 %s, %s, 0x%x' % (s(sKM), s(sKM), KM))
    P('s_lshl_b32 %s, %s, 13' % (s(sTch), s(sH)))
    P('s_add_u32 %s, %s, 0x%x' % (s(sTch), s(sTch), KX + 0x80000))
    P('s_lshl_b32 %s, %s, 7' % (s(sFlagOff), s(sH)))
    P('s_add_u32 %s, %s, 0x%x' % (s(sFlagOff), s(sFlagOff), PFLAG + 8))
    P('s_mov_b32 %s, 0' % s(sStep))
    P('s_mov_b32 %s, 0' % s(sTagP))
    P('s_mov_b32 m0, 14336')
    P('s_mov_b32 %s, 0' % s(sTagR))
    P('s_mov_b32 %s, 0' % s(sChk))
    P('s_mov_b32 %s, %s' % (s(sScale2), s(sScale)))
    P('s_mov_b32 %s, %s' % (s(sScale2 + 1), s(sScale)))
    wait_all(P)
    dbg = s(S_DBG, 4)
    P('v_mov_b32 %s, 0' % v(t0))
    P('s_lshl_b32 %s, %s, 2' % (s(sT0), s(sX)))
    P('buffer_load_dword %s, %s, %s, %s offen offset:%d sc1' % (v(t1), v(t0), dbg, s(sT0), DBG_XCCMASK0))
    P('buffer_load_dword %s, %s, %s, 0 offen offset:%d sc1' % (v(t2), v(t0), dbg, DBG_NEAR))
    P('s_waitcnt vmcnt(0)')
    P('v_readfirstlane_b32 %s, %s' % (s(sT0), v(t1)))
    P('v_readfirstlane_b32 %s, %s' % (s(sT1), v(t2)))
    P('s_bcnt1_i32_b32 %s, %s' % (s(sFast), s(sT0)))
    P('s_and_b32 %s, %s, 0x2000' % (s(sT1), s(sT1)))
    P('s_add_u32 %s, %s, %s' % (s(sMemRSt), s(sMemRSt), s(sT1)))
    P('s_add_u32 %s, %s, %s' % (s(sMemRLd), s(sMemRLd), s(sT1)))
    P('s_mov_b32 %s, 0' % s(sProg))
    flag_poll(P, 2, first=True)
    P('v_lshlrev_b32 %s, 3, %s' % (v(t0), v(vL16)))
    for back in (0x80000, 0x40000):
        P('s_sub_u32 %s, %s, 0x%x' % (s(sT0), s(sTch), back))
        P('s_add_u32 %s, %s, 0x%x' % (s(sT1), s(sT0), VX - KX))
        for o_ in (0, 64):
            P('buffer_load_dword %s, %s, %s, %s offen offset:%d sc1' % (v(t1), v(t0), ws, s(sT0), o_))
            P('buffer_load_dword %s, %s, %s, %s offen offset:%d sc1' % (v(t2), v(t0), ws, s(sT1), o_))
    P('s_add_u32 %s, %s, 0x%x' % (s(sVXoff), s(sKV), VX - KX))
    for t in range(2):
        P('buffer_load_dwordx4 %s, %s, %s, %s offen offset:%d sc1' % (v(vVx + 4 * t, 4), v(vL16), ws, s(sVXoff), 1024 * t))
    for i in range(4):
        P('v_mov_b32 %s, %s' % (v(T_ + i), v(vM0 + 8 + i)))
    P('v_mov_b32 %s, %s' % (v(T_ + 4), v(vM0 + 5)))
    P('v_lshrrev_b32 %s, 2, %s' % (v(vL4), v(vW1K)))
    P('v_add_u32 %s, 4, %s' % (v(vL4), v(vL4)))
    P('s_mov_b32 %s, %s' % (s(sMemRNx), s(sMemRLd)))
    P('s_lshl_b32 %s, s2, 13' % s(sMemRLd))
    P('s_add_u32 %s, %s, 0x%x' % (s(sMemRLd), s(sMemRLd), MEM0S))
    P('buffer_store_dwordx4 %s, %s, %s, %s offen sc1' % (v(T_, 4), v(vW1K), ws, s(sMemRLd)))
    P('buffer_store_dword %s, %s, %s, %s offen offset:4092 sc1' % (v(T_ + 4), v(vL4), ws, s(sMemRLd)))
    for i in range(24):
        P('v_mov_b32 %s, 0' % v(X_ + i))
    for i in range(4):
        P('v_mov_b32 %s, 0' % v(SP + i))
    for x in land(0):
        P(x)
    P('s_waitcnt vmcnt(0) lgkmcnt(0)')
    P('s_barrier')


def arrive(P):
    L = P.newlabel('arr')
    dbg = s(S_DBG, 4)
    P('s_cmp_lg_u32 %s, 3' % s(S_WAVE))
    P('s_cbranch_scc1 %s' % L)
    P('s_getreg_b32 s7, hwreg(HW_REG_XCC_ID)')
    P('s_and_b32 s7, s7, 15')
    P('s_lshl_b32 s7, 1, s7')
    P('s_mov_b64 exec, 1')
    P('v_mov_b32 v88, s7')
    P('v_mov_b32 v89, 0')
    P('s_lshl_b32 s7, %s, 2' % s(S_CLS))
    P('buffer_atomic_or v88, v89, %s, s7 offen offset:%d' % (dbg, DBG_XCCMASK0))
    calibrate(P)
    P('s_waitcnt vmcnt(0)')
    P('v_mov_b32 v88, 1')
    P('buffer_atomic_add v88, v89, %s, 0 offen offset:%d' % (dbg, DBG_ARRIVE))
    P('s_mov_b64 exec, -1')
    P.label(L)


def calibrate(P):
    L = P.newlabel('cal')
    ws = s(S_WS, 4)
    P('s_cmp_lg_u32 s2, 0')
    P('s_cbranch_scc1 %s' % L)
    P('s_waitcnt vmcnt(0)')
    P('s_mov_b32 s80, -1')
    P('s_mov_b32 s81, -1')
    P('s_mov_b32 s86, 0x%x' % (MEMR + 0x1c00))
    P('s_mov_b32 s87, 0x%x' % (MEMR + 0x3c00))
    for it in range(6):
        for hf in range(2):
            P('s_memtime s[82:83]')
            P('s_waitcnt lgkmcnt(0)')
            P('buffer_store_dword v89, v89, %s, s%d offen sc1' % (ws, 86 + hf))
            P('s_waitcnt vmcnt(0)')
            P('s_memtime s[84:85]')
            P('s_waitcnt lgkmcnt(0)')
            P('s_sub_u32 s84, s84, s82')
            P('s_min_u32 s%d, s%d, s84' % (80 + hf, 80 + hf))
    P('s_cmp_lt_u32 s81, s80')
    P('s_cselect_b32 s84, 0x2000, 0')
    P('v_mov_b32 v88, s84')
    P('buffer_store_dword v88, v89, %s, 0 offen offset:%d sc1' % (s(S_DBG, 4), DBG_NEAR))
    P('v_mov_b32 v88, s80')
    P('buffer_store_dword v88, v89, %s, 0 offen offset:%d sc1' % (s(S_DBG, 4), 48))
    P('v_mov_b32 v88, s81')
    P('buffer_store_dword v88, v89, %s, 0 offen offset:%d sc1' % (s(S_DBG, 4), 52))
    P.label(L)


def spin_retry(P, Lpoll, Lok):
    P('s_add_u32 %s, %s, 1' % (s(S_SPIN), s(S_SPIN)))
    P('s_cmp_lt_u32 %s, %d' % (s(S_SPIN), SPIN_LIMIT))
    P('s_cbranch_scc1 %s' % Lpoll)
    P('s_branch %s' % Lok)


def wait_all(P, n=256):
    Lp, Lok = P.newlabel('wa'), P.newlabel('waok')
    P('v_mov_b32 v89, 0')
    P.label(Lp)
    P('buffer_load_dword v88, v89, %s, 0 offen offset:%d sc1' % (s(S_DBG, 4), DBG_ARRIVE))
    P('s_waitcnt vmcnt(0)')
    P('v_cmp_le_u32 vcc, %d, v88' % n)
    P('s_cbranch_vccnz %s' % Lok)
    P('s_sleep 4')
    spin_retry(P, Lp, Lok)
    P.label(Lok)


def flag_poll(P, ahead, first=False):
    Lp, Lok = P.newlabel('fp'), P.newlabel('fpok')
    f = T_
    P('s_add_u32 %s, %s, %d' % (s(sT0), s(sStep), ahead))
    P('s_min_u32 %s, %s, 63' % (s(sT0), s(sT0)))
    P.label(Lp)
    P('s_cmp_lt_u32 %s, %s' % (s(sT0), s(sProg)))
    P('s_cbranch_scc1 %s' % Lok)
    P('v_mov_b32 %s, 0' % v(f + 4))
    P('buffer_load_dwordx4 %s, %s, %s, %s offen sc1' % (v(f, 4), v(f + 4), s(S_WS, 4), s(sFlagOff)))
    P('s_waitcnt vmcnt(0)')
    P('v_min_u32 %s, %s, %s' % (v(f), v(f), v(f + 2)))
    P('v_min3_u32 %s, %s, %s, %s' % (v(f), v(f), v(f + 1), v(f + 3)))
    P('v_lshlrev_b32 %s, 1, %s' % (v(f), v(f)))
    P('v_readfirstlane_b32 %s, %s' % (s(sProg), v(f)))
    spin_retry(P, Lp, Lok)
    P.label(Lok)


def land(k):
    return ['ds_read_b128 %s, %s offset:%d' % (v(Z_ + 8 * nt + 4 * q, 4), v(vVW), (k & 3) * 16384 + nt * 2048 + q * 1024)
            for nt in range(2) for q in range(2)]


def W(mat, p, nt):
    return v(Z_ + 8 * nt, 8) if (mat, p) in LDS_PAIRS else WR[(mat, p, nt)]


def smf(acc, A, B):
    return 'v_smfmac_f32_16x16x64_bf16 %s, %s, %s, %s' % (v(acc, 4), v(A, 4), B, v(vIdx))


def cvt(d, a_):
    return 'v_cvt_pk_bf16_f32 %s, %s, %s' % (v(d), v(a_), v(a_ + 1))


def pk(op, d, a_, b_):
    return 'v_pk_%s_f32 %s, %s, %s' % (op, v(d, 2), v(a_, 2), v(b_, 2))


def chk5(t, stag, mask, d=T_):
    return ['v_bitop3_b32 %s, %s, %s, %s bitop3:0x%x' % (v(t), v(d), v(d + 1), s(stag), TT_XX),
            'v_bitop3_b32 %s, %s, %s, %s bitop3:0x%x' % (v(t + 1), v(d + 2), v(d + 3), s(stag), TT_XX),
            'v_bitop3_b32 %s, %s, %s, %s bitop3:0x%x' % (v(t), v(d + 4), v(t), s(stag), TT_XO),
            'v_bitop3_b32 %s, %s, %s, %s bitop3:0x%x' % (v(t), v(t), v(t + 1), mask, TT_OM),
            'v_cmp_ne_u32 vcc, 0, %s' % v(t)]


class LgkmTrack:
    def __init__(self, P):
        self.P, self.q = P, []
    def __call__(self, ins):
        I = Inst(ins)
        regs = I.rd | (I.wr if I.kind != 'ds' else set())
        last = -1
        for k, w in enumerate(self.q):
            if w & regs:
                last = k
        if last >= 0:
            self.P('s_waitcnt lgkmcnt(%d)' % (len(self.q) - 1 - last))
            self.q = self.q[last + 1:]
        self.P(ins)
        if I.kind == 'ds':
            self.q.append(set(I.wr))
    def drain(self):
        self.P('s_waitcnt lgkmcnt(0)')
        self.q = []
    def weave(self, main, fill):
        for k, m in enumerate(main):
            self(m)
            for f in fill.get(k, []):
                self(f)


def addfill(fill, start, ins, step=1):
    for k, x in enumerate(ins):
        fill.setdefault(start + k * step, []).append(x)


PTS = [[0, 1, 2, 3, 4, 5], [0, 'b1', 'b5', 'bend', 'cvm', 1], [1, 'b2', 'dq', 'dend', 'esx', 2], [2, 'b3', 'fsum', 'fexp', 'gw', 3], [3, 'b4', 'hm', 4, 'ipoll', 5]]
CFG = dict(pts=0, dI=60, dA=70, dAn=0, preC=0, xs=0, km=1, touch=1, iso=0, lfirst=1, dA2=25, dI2=30, rg1=4, rg2=-1, kg=0, tg=5, tstr=64)


def delay(P, n):
    while n > 0:
        P('s_nop %d' % (min(n, 16) - 1))
        n -= 16


def r_loop(P, fast, X, reducer, w3, diag):
    ws = s(S_WS, 4)
    lc = '' if fast else ' sc1'
    tails = []
    Ltop, Lent, Lexit, Ldone = P.newlabel('R_top'), P.newlabel('R_ent'), P.newlabel('R_exit'), P.newlabel('R_done')
    E = LgkmTrack(P)

    def stamp(k):
        if diag > 1 and k in PTS[CFG['pts']]:
            P('s_memtime %s' % s(sStamp + 2 * PTS[CFG['pts']].index(k), 2))
    A = lambda i: Y_ + 4 * (i % 5)
    gload = lambda base, d=T_: ['buffer_load_dwordx4 %s, %s, %s, %s offen sc1' % (v(d, 4), v(vW1K), ws, s(base)),
                                'buffer_load_dword %s, %s, %s, %s offen offset:4092 sc1' % (v(d + 4), v(vL4), ws, s(base))]
    P('s_branch %s' % Lent)
    P('.p2align 6')
    P.label(Ltop)
    T1, T2 = vKx, Y_ + 8
    def a_try(base_reg):
        P('ds_write_b128 %s, %s' % (v(vW1K), v(base_reg, 4)))
        P('ds_write_b32 %s, %s offset:4092' % (v(vL4), v(base_reg + 4)))
        for x in chk5(Y_, sTagP, '1', base_reg):
            P(x)
    Lp, Lok, Lr = P.newlabel('R_pa'), P.newlabel('R_paok'), P.newlabel('R_par')
    for x in gload(sMemLLd, T1):
        P(x)
    delay(P, CFG['dA2'])
    for x in gload(sMemLLd, T2):
        P(x)
    P.label(Lp)
    P('s_waitcnt vmcnt(2)')
    a_try(T1)
    P('s_cbranch_vccnz %s' % Lr)
    P.label(Lok)
    def a_tail(Lp=Lp, Lok=Lok):
        for x in gload(sMemLLd, T1):
            P(x)
        P('s_waitcnt vmcnt(2)')
        a_try(T2)
        P('s_cbranch_vccz %s' % Lok)
        for x in gload(sMemLLd, T2):
            P(x)
        spin_retry(P, Lp, Lok)
    tails.append((Lr, a_tail))
    for x in gload(sMemRLd):
        P(x)
    stamp(0)
    P('s_waitcnt vmcnt(2) lgkmcnt(0)')
    P('s_barrier')
    P.label(Lent)
    stamp('b1')
    for i in range(5):
        E('ds_read_b128 %s, %s offset:%d' % (v(A(i), 4), v(vL16), L_MEM + 1024 * i))
    main = []
    for i in range(5):
        main += [smf(accQ, A(i), W('q', i, 0)), smf(accQ + 4, A(i), W('q', i, 1)),
                 smf(accK, A(i), W('k', i, 0)), smf(accK + 4, A(i), W('k', i, 1))]
    fill = {}
    addfill(fill, 0, land(1)); addfill(fill, 6, land(2)); addfill(fill, 12, land(3))
    addfill(fill, 16, ['v_add_u32 %s, 0x10000, %s' % (v(vVW), v(vVW))])
    addfill(fill, 18, land(4)[:2])
    addfill(fill, 0, ['s_xor_b32 %s, %s, 1' % (s(sTagP), s(sTagP)),
                      's_min_u32 %s, %s, 1' % (s(sT0), s(sStep)), 's_lshl_b32 %s, %s, 17' % (s(sT1), s(sT0))])
    addfill(fill, CFG['kg'], ['buffer_load_dwordx4 %s, %s, %s, %s offen offset:%d sc1' % (v(vKx + 4 * t, 4), v(vL16), ws, s(sKV), 1024 * t) for t in range(2)])
    for g in (CFG['rg1'], CFG['rg2']):
        if g >= 0:
            addfill(fill, g, gload(sMemRLd))
    if CFG['km']:
        addfill(fill, 16, ['buffer_store_dwordx4 %s, %s, %s, %s offen sc1' % (v(SP, 4), v(vL16), ws, s(sKM))])
    addfill(fill, 17, ['s_add_u32 %s, %s, %s' % (s(sKM), s(sKM), s(sT1))])
    addfill(fill, 17, ['s_add_u32 %s, %s, 0x%x' % (s(sKV), s(sKV), 0 if CFG['iso'] else 0x40000),
                       's_add_u32 %s, %s, 0x%x' % (s(sVXoff), s(sKV), VX - KX)])
    E.weave(main[:1], fill)
    stamp('b5')
    E.weave(main[1:], {k - 1: x for k, x in fill.items() if k > 0})
    stamp('bend')
    vm = [smf(AV + 4 * nt, A(i), W('v', i, nt)) for i in range(5) for nt in range(2)]
    npre = CFG['preC']
    l4 = land(4)[2:]
    for k in range(npre):
        E(vm[k]); E(l4.pop(0))
    Lp, Lok, Lr, Lp2 = P.newlabel('R_pc'), P.newlabel('R_pcok'), P.newlabel('R_pcr'), P.newlabel('R_pc2')
    P('s_waitcnt vmcnt(%d)' % (1 if CFG['km'] else 0))
    stamp('cvm')
    E('ds_write_b128 %s, %s offset:5120' % (v(vW1K), v(T_, 4)))
    E('ds_write_b32 %s, %s offset:%d' % (v(vL4), v(T_ + 4), 5120 + 4092))
    c5 = chk5(T_ + 6, sTagR, s(sChk))
    fill = {}
    addfill(fill, 0, l4)
    addfill(fill, 0, c5[:4 - npre])
    E.weave(vm[npre:4], fill)
    for x in c5[4 - npre:]:
        E(x)
    P('s_cbranch_vccnz %s' % Lr)
    P.label(Lok)
    def c_tail(Lr=Lr, Lp2=Lp2, Lok=Lok):
        spin_retry(P, Lp2, Lok)
        P.label(Lp2)
        P('s_waitcnt lgkmcnt(0)')
        for x in gload(sMemRLd):
            P(x)
        P('s_waitcnt vmcnt(0)')
        P('ds_write_b128 %s, %s offset:5120' % (v(vW1K), v(T_, 4)))
        P('ds_write_b32 %s, %s offset:%d' % (v(vL4), v(T_ + 4), 5120 + 4092))
        for x in chk5(T_ + 6, sTagR, s(sChk)):
            P(x)
        P('s_cbranch_vccnz %s' % Lr)
        P('s_branch %s' % Lok)
    tails.append((Lr, c_tail))
    if w3:
        P('v_lshlrev_b32 %s, 3, %s' % (v(T_ + 7), v(vL16)))
        P('s_add_u32 %s, %s, 0x%x' % (s(sT2), s(sTch), VX - KX))
    stamp(1)
    E.drain()
    P('s_barrier')
    stamp('b2')
    rd = ['ds_read_b128 %s, %s offset:%d' % (v(A(i), 4), v(vL16), L_MEM + 5120 + 1024 * i) for i in range(5)]
    E(rd[0]); E(rd[1])
    l5 = land(5)
    fill = {0: [l5[0]], 1: [rd[2], l5[1]], 2: [l5[2]], 3: [rd[3], l5[3]], 5: [rd[4]]}
    if w3 and CFG['touch']:
        addfill(fill, 0, ['buffer_load_dword %s, %s, %s offen sc1 lds' % (v(T_ + 7), ws, s(b_)) for b_ in (sTch, sT2)], 2)
    E.weave(vm[4:], fill)
    stamp('dq')
    main = [smf(accQ + 4 * nt, A(i), W('q', 5 + i, nt)) for i in range(5) for nt in range(2)]
    main += [smf(accK + 4 * nt, A(i), W('k', 5 + i, nt)) for i in range(5) for nt in range(2)]
    fill = {}
    addfill(fill, 2, land(6)); addfill(fill, 8, land(7))
    addfill(fill, 12, ['v_add_u32 %s, 0x10000, %s' % (v(vVW), v(vVW))])
    addfill(fill, 14, land(8))
    addfill(fill, 5, ['s_mov_b32 %s, %s' % (s(sMemRLd), s(sMemRNx)), 's_xor_b32 %s, %s, 0x4000' % (s(sMemRNx), s(sMemRNx))])
    addfill(fill, 0, ['s_andn2_b32 %s, 1, %s' % (s(sT0), s(sStep)),
                      's_xor_b32 %s, %s, %s' % (s(sTagR), s(sTagR), s(sT0)), 's_mov_b32 %s, 1' % s(sChk),
                      's_min_u32 %s, %s, 1' % (s(sT0), s(sStep))])
    if w3:
        addfill(fill, 6, ['s_sub_u32 %s, %s, %s' % (s(sT0), s(sStep), s(sT0)), 'v_mov_b32 %s, %s' % (v(T_ + 1), s(sT0)),
                          'v_mov_b32 %s, 0' % v(T_ + 6),
                          'buffer_store_dword %s, %s, %s, %s offen sc1' % (v(T_ + 1), v(T_ + 6), ws, s(sKmFlagOff))])
    addfill(fill, 16, [cvt(T_, accQ), cvt(T_ + 1, accQ + 2), cvt(T_ + 2, accQ + 4), cvt(T_ + 3, accQ + 6)])
    E.weave(main, fill)
    stamp('dend')
    Ak = SP if X == 0 else T_ + 4
    tr = lambda d, a_: 'v_mfma_f32_16x16x16_bf16 %s, %s, %s, 0' % (v(d, 4), v(a_, 2), v(vSig, 2))
    mm = lambda d, a_, b_: 'v_mfma_f32_16x16x32_bf16 %s, %s, %s, 0' % (v(d, 4), v(a_, 4), v(b_, 4))
    E(tr(accQ, T_)); E(tr(accQ + 4, T_ + 2))
    E(cvt(T_ + 4, accK)); E(cvt(T_ + 5, accK + 2)); E(cvt(T_ + 6, accK + 4)); E(cvt(T_ + 7, accK + 6))
    E(tr(accK, T_ + 4))
    E(cvt(T_, accQ))
    E(tr(accK + 4, T_ + 6))
    E(cvt(T_ + 1, accQ + 2)); E(cvt(T_ + 2, accQ + 4)); E(cvt(T_ + 3, accQ + 6))
    E(mm(accQ, vKx, T_)); E(mm(accQ + 4, vKx + 4, T_))
    for i in range(4):
        E(cvt(Ak + i, accK + 2 * i))
    E(mm(accK, Ak, T_))
    for r in range(4):
        E('v_cndmask_b32 %s, %s, %s, %s' % (v(accQ + r), v(accQ + r), v(accQ + 4 + r), s(sC8, 2)))
    E('ds_write_b128 %s, %s offset:%d' % (v(vW1K), v(accQ, 4), L_SX))
    for r in range(2):
        E('v_cndmask_b32 %s, %s, %s, %s' % (v(accK + r), v(accK + r), v(accK + 2 + r), s(sC8, 2)))
    E('ds_write_b64 %s, %s offset:%d' % (v(vW1K), v(accK, 2), L_MEM))
    stamp('esx')
    vr = [smf(AV + 4 * nt, A(i), W('v', 5 + i, nt)) for i in range(5) for nt in range(2)]
    adr = [T_ + 4, T_ + 6, X_ + 10]
    E.weave(vr[:5], {k: ['v_xor_b32 %s, 0x%x, %s' % (v(adr[k]), 1024 * (k + 1), v(vW1K))] for k in range(3)})
    P('s_cmp_eq_u32 %s, 63' % s(sStep))
    P('s_cbranch_scc1 %s' % Lexit)
    stamp(2)
    E.drain()
    P('s_barrier')
    stamp('b3')
    xd = [X_ + 4, X_ + 12, T_]
    rds = []
    for k in range(3):
        rds.append('ds_read_b128 %s, %s offset:%d' % (v(xd[k], 4), v(adr[k]), L_SX))
        rds.append('ds_read_b64 %s, %s offset:%d' % (v(adr[k], 2), v(adr[k]), L_MEM))
    E(rds[0]); E(rds[1])
    E.weave(vr[5:], {k: [rds[2 + k]] for k in range(4)})
    m_ = X_ + 8
    E(pk('add', X_, X_, X_ + 4)); E(pk('add', X_ + 2, X_ + 2, X_ + 6)); E(pk('add', m_, m_, T_ + 4))
    E(pk('add', X_ + 12, X_ + 12, T_)); E(pk('add', X_ + 14, X_ + 14, T_ + 2)); E(pk('add', T_ + 6, T_ + 6, X_ + 10))
    E(pk('add', X_, X_, X_ + 12)); E(pk('add', X_ + 2, X_ + 2, X_ + 14)); E(pk('add', m_, m_, T_ + 6))
    stamp('fsum')
    mx, tm = X_ + 10, X_ + 11
    Vm = SP if X == 1 else Z_
    vc = [cvt(Vm + i, AV + 2 * i) for i in range(4)]
    E('v_max3_f32 %s, %s, %s, %s' % (v(mx), v(X_), v(X_ + 1), v(X_ + 2)))
    E('v_max3_f32 %s, %s, %s, %s' % (v(mx), v(mx), v(X_ + 3), v(m_)))
    E('v_max_f32 %s, %s, %s' % (v(mx), v(mx), v(m_ + 1)))
    E(vc[0]); E(vc[1])
    E('v_max_f32_dpp %s, %s, %s row_ror:8 row_mask:0xf bank_mask:0xf' % (v(mx), v(mx), v(mx)))
    E('v_mov_b32 %s, %s' % (v(tm), v(mx)))
    E(vc[2]); E(vc[3])
    E('v_permlane16_swap_b32 %s, %s' % (v(mx), v(tm)))
    E('v_max_f32 %s, %s, %s' % (v(mx), v(mx), v(tm)))
    E('v_mov_b32 %s, %s' % (v(tm), v(mx)))
    E('v_mov_b32 %s, 0' % v(Y_)); E('v_mov_b32 %s, 0' % v(Y_ + 1))
    E('v_permlane32_swap_b32 %s, %s' % (v(mx), v(tm)))
    E('v_max_f32 %s, %s, %s' % (v(mx), v(mx), v(tm)))
    E('v_mul_f32 %s, %s, %s' % (v(mx), s(sScale), v(mx)))
    for r in (X_, X_ + 2, m_):
        E('v_pk_fma_f32 %s, %s, %s, %s op_sel_hi:[1,1,0] neg_lo:[0,0,1] neg_hi:[0,0,1]' % (v(r, 2), v(r, 2), s(sScale2, 2), v(mx, 2)))
    for r in (X_, X_ + 1, X_ + 2, X_ + 3, m_, m_ + 1):
        E('v_exp_f32 %s, %s' % (v(r), v(r)))
    stamp('fexp')
    Bx, Bm = T_, T_ + 4
    E(cvt(Bx, X_)); E(cvt(Bx + 1, X_ + 2)); E(cvt(Bm, m_))
    for d, a_ in ((Bx + 2, Bx), (Bx + 3, Bx + 1), (Bm + 1, Bm)):
        E('v_mov_b32_dpp %s, %s row_ror:8 row_mask:0xf bank_mask:0xf' % (v(d), v(a_)))
    O0, O1 = X_ + 4, X_ + 12
    ls, lt = X_ + 10, X_ + 11
    E(pk('add', X_, X_, X_ + 2))
    E(mm(O0, vVx, Bx))
    E('v_add_f32 %s, %s, %s' % (v(m_), v(m_), v(m_ + 1)))
    E('v_add_f32 %s, %s, %s' % (v(X_), v(X_), v(X_ + 1)))
    E(mm(O1, vVx + 4, Bx))
    E('v_fma_f32 %s, %s, 0.5, %s' % (v(ls), v(m_), v(X_)))
    E('v_mfma_f32_16x16x16_bf16 %s, %s, %s, %s' % (v(O0, 4), v(Vm, 2), v(Bm, 2), v(O0, 4)))
    E('v_mov_b32 %s, 0' % v(Y_ + 2))
    E('v_add_f32_dpp %s, %s, %s row_ror:8 row_mask:0xf bank_mask:0xf' % (v(ls), v(ls), v(ls)))
    E('v_mfma_f32_16x16x16_bf16 %s, %s, %s, %s' % (v(O1, 4), v(Vm + 2, 2), v(Bm, 2), v(O1, 4)))
    E('v_mov_b32 %s, %s' % (v(lt), v(ls)))
    E('v_mov_b32 %s, 0' % v(Y_ + 3)); E('v_mov_b32 %s, 0' % v(Y_ + 4))
    E('v_permlane16_swap_b32 %s, %s' % (v(ls), v(lt)))
    E('v_add_f32 %s, %s, %s' % (v(ls), v(ls), v(lt)))
    E('v_mov_b32 %s, %s' % (v(lt), v(ls)))
    E('v_mov_b32 %s, 0' % v(Y_ + 5)); E('v_mov_b32 %s, 0' % v(Y_ + 6))
    E('v_permlane32_swap_b32 %s, %s' % (v(ls), v(lt)))
    E('v_add_f32 %s, %s, %s' % (v(ls), v(ls), v(lt)))
    E('v_rcp_f32 %s, %s' % (v(ls), v(ls)))
    E('s_mov_b64 exec, %s' % s(sEx8, 2))
    for r in (O0, O0 + 2, O1, O1 + 2):
        E('v_pk_mul_f32 %s, %s, %s op_sel_hi:[1,0]' % (v(r, 2), v(r, 2), v(ls, 2)))
    E(cvt(X_, O0)); E(cvt(X_ + 1, O0 + 2)); E(cvt(X_ + 2, O1)); E(cvt(X_ + 3, O1 + 2))
    E('ds_write_b128 %s, %s' % (v(vOWr), v(X_, 4)))
    stamp('gw')
    E('s_mov_b64 exec, -1')
    for i in range(7, 20):
        E('v_mov_b32 %s, 0' % v(Y_ + i))
    stamp(3)
    E.drain()
    P('s_barrier')
    stamp('b4')
    for k in range(2):
        E('ds_read_b128 %s, %s offset:%d' % (v(T_ + 4 * k, 4), v(vL16), L_O + 1024 * k))
    p1 = X_
    E('v_subrev_u32 %s, 0x20000, %s' % (v(vVW), v(vVW)))
    E('v_lshrrev_b32 %s, 9, %s' % (v(p1), v(vL16)))
    E('v_mul_u32_u24 %s, 0x%x, %s' % (v(p1), 4 * 2048 - 4, v(p1)))
    E('v_sub_u32 %s, %s, %s' % (v(p1), v(vPSt), v(p1)))
    D = lambda T: Y_ + 4 * T
    order = [(4, 0), (4, 1), (0, 0), (1, 0), (0, 1), (1, 1), (2, 0), (3, 0), (2, 1), (3, 1)]
    main = [smf(D(T), T_ + 4 * k, WR[('o', k, T)]) for T, k in order]
    sw = lambda a_, b_: 'v_permlane32_swap_b32 %s, %s' % (v(a_), v(b_))
    bfi = lambda r: 'v_bfi_b32 %s, 1, %s, %s' % (v(r), s(sTagP), v(r))
    post = lambda a_, b_, so: [sw(a_ + r, b_ + r) for r in range(4)] + [pk('add', a_, a_, b_), pk('add', a_ + 2, a_ + 2, b_ + 2),
        cvt(a_, a_), cvt(a_ + 1, a_ + 2), bfi(a_), bfi(a_ + 1),
        'buffer_store_dwordx2 %s, %s, %s, %s offen%s' % (v(a_, 2), v(vPSt), ws, s(so), lc)]
    p4 = [sw(D(4), D(4) + 2), sw(D(4) + 1, D(4) + 3), pk('add', D(4), D(4), D(4) + 2), cvt(D(4), D(4)), bfi(D(4)),
          'buffer_store_dword %s, %s, %s, %s offen%s' % (v(D(4)), v(p1), ws, s(sPartSt2), lc)]
    p0 = post(D(0), D(1), sPartSt0)
    E.weave(main, {3: p4[0:1], 4: p4[1:2], 5: p4[2:3], 6: p4[3:4], 7: p4[4:6], 8: p0[0:1], 9: p0[1:]})
    stamp('hm')
    for x in post(D(2), D(3), sPartSt1):
        E(x)
    stamp(4)
    for t in range(2):
        P('buffer_load_dwordx4 %s, %s, %s, %s offen offset:%d sc1' % (v(vVx + 4 * t, 4), v(vL16), ws, s(sVXoff), 1024 * t))
    def idle_list():
        return (['v_mov_b32 %s, 0' % v(X_ + i) for i in range(24)] + land(0) +
                ['v_lshrrev_b32 %s, 2, %s' % (v(vL4), v(vW1K)), 'v_add_u32 %s, 4, %s' % (v(vL4), v(vL4)),
                 's_add_u32 %s, %s, 1' % (s(sStep), s(sStep))])
    def idle_work():
        for x in idle_list():
            P(x)
    Lnored, Ljoin = P.newlabel('R_nored'), P.newlabel('R_join')
    if reducer == 'h16':
        P('s_cmp_ge_u32 %s, 16' % s(sH))
        P('s_cbranch_scc1 %s' % Lnored)
    pl = lambda R_: ['buffer_load_dwordx4 %s, %s, %s, %s offen offset:%d sc1' % (v(R_ + 4 * i, 4), v(vL16), ws, s(sPartLd), 1024 * i) for i in range(2)]
    if reducer:
        Lp, Lok, Lr = P.newlabel('R_pi'), P.newlabel('R_piok'), P.newlabel('R_pir')
        msk, mst, sel, Dr = T_ + 6, T_ + 7, Y_ + 8, Y_ + 12
        pre = ['v_mov_b32 %s, 0xfffe0000' % v(msk),
               'v_lshrrev_b32 %s, 6, %s' % (v(T_), v(vL16)),
               'v_and_b32 %s, 12, %s' % (v(T_), v(T_)),
               'v_and_b32 %s, 0x30, %s' % (v(mst), v(vL16)),
               'v_add_u32 %s, %s, %s' % (v(mst), v(T_), v(mst)),
               'v_mov_b32 %s, 0x3f80' % v(T_),
               'v_cndmask_b32 %s, %s, 1.0, %s' % (v(T_), v(T_), s(sOdd, 2))]
        pre += ['v_cndmask_b32 %s, 0, %s, %s' % (v(sel + q), v(T_), s(sSelM + 2 * q, 2)) for q in range(4)]
        pre += ['s_lshl_b32 %s, %s, 16' % (s(sT16P), s(sTagP)), 's_sub_u32 %s, 0x10000, %s' % (s(sK1P), s(sT16P)),
                's_lshl_b32 %s, %s, 16' % (s(sT16R), s(sTagR)), 's_sub_u32 %s, 0x10000, %s' % (s(sK1R), s(sT16R))]
        work = idle_list() + pre
        n1 = min(len(work), CFG['dI'])
        for x in work[:n1]:
            P(x)
        delay(P, CFG['dI'] - n1)
        for x in pl(Y_):
            P(x)
        n2 = min(len(work), n1 + CFG['dI2'])
        for x in work[n1:n2]:
            P(x)
        delay(P, CFG['dI2'] - (n2 - n1))
        for x in pl(vKx):
            P(x)
        for x in work[n2:]:
            P(x)
        def i_try(R_):
            xx = lambda d, i: 'v_bitop3_b32 %s, %s, %s, %s bitop3:0x%x' % (v(d), v(R_ + 2 * i), v(R_ + 2 * i + 1), s(sTagP), TT_XX)
            P('s_waitcnt vmcnt(3)')
            P('v_mfma_f32_16x16x32_bf16 %s, %s, %s, 0' % (v(Dr, 4), v(R_, 4), v(sel, 4)))
            P(xx(T_, 0)); P(xx(T_ + 1, 1))
            P('s_waitcnt vmcnt(2)')
            stamp('ipoll')
            P('v_mfma_f32_16x16x32_bf16 %s, %s, %s, %s' % (v(Dr, 4), v(R_ + 4, 4), v(sel, 4), v(Dr, 4)))
            P(xx(T_ + 2, 2)); P(xx(T_ + 3, 3))
            P('v_or3_b32 %s, %s, %s, %s' % (v(T_), v(T_), v(T_ + 2), v(T_ + 3)))
            P('v_bitop3_b32 %s, %s, %s, 1 bitop3:0x%x' % (v(T_), v(T_), v(T_ + 1), TT_OM))
            P('v_cmp_ne_u32 vcc, 0, %s' % v(T_))
        P.label(Lp)
        i_try(Y_)
        P('s_cbranch_vccnz %s' % Lr)
        P.label(Lok)
        def i_tail(Lp=Lp, Lok=Lok):
            for x in pl(Y_):
                P(x)
            i_try(vKx)
            P('s_cbranch_vccz %s' % Lok)
            for x in pl(vKx):
                P(x)
            spin_retry(P, Lp, Lok)
        tails.append((Lr, i_tail))
        P(sw(Dr, Dr + 2)); P(sw(Dr + 1, Dr + 3))
        P(pk('add', Dr, Dr, Dr + 2))
        P('v_permlane16_swap_b32 %s, %s' % (v(Dr), v(Dr + 1)))
        P('v_add_f32 %s, %s, %s' % (v(Dr), v(Dr), v(Dr + 1)))
        P('v_add_u32 %s, %s, %s' % (v(Dr + 2), s(sK1R), v(Dr)))
        P('v_add_u32 %s, %s, %s' % (v(Dr + 3), s(sK1P), v(Dr)))
        P('v_mov_b32_dpp %s, %s row_shl:4 row_mask:0xf bank_mask:0xf' % (v(Dr + 1), v(Dr)))
        rem = ['v_bfi_b32 %s, %s, %s, %s' % (v(Dr + 2), v(msk), v(Dr + 2), s(sT16R)),
               'v_cvt_pk_bf16_f32 %s, %s, %s' % (v(Dr + 2), v(Dr + 2), v(Dr + 1)),
               'buffer_store_dword %s, %s, %s, %s offen sc1' % (v(Dr + 2), v(mst), ws, s(sMemRSt))]
        loc = ['v_bfi_b32 %s, %s, %s, %s' % (v(Dr + 3), v(msk), v(Dr + 3), s(sT16P)),
               'v_cvt_pk_bf16_f32 %s, %s, %s' % (v(Dr + 3), v(Dr + 3), v(Dr + 1)),
               'buffer_store_dword %s, %s, %s, %s offen%s' % (v(Dr + 3), v(mst), ws, s(sMemLSt), lc)]
        P('s_mov_b64 exec, %s' % s(sExSt, 2))
        for x in (loc + rem if CFG['lfirst'] else rem + loc):
            P(x)
        P('s_mov_b64 exec, -1')
        stamp(5)
        P('s_xor_b32 %s, %s, 0x4000' % (s(sMemRSt), s(sMemRSt)))
        if reducer == 'h16':
            P('s_branch %s' % Ljoin)
    if reducer in (False, 'h16'):
        P.label(Lnored)
        if w3 and not CFG['iso']:
            flag_poll(P, 3)
            P('s_add_u32 %s, %s, 0x40000' % (s(sTch), s(sTch)))
        idle_work()
        stamp(5)
        P.label(Ljoin)
    P('s_barrier')
    delay(P, CFG['dA'])
    if diag > 1:
        Ld = P.newlabel('R_dg')
        P('s_waitcnt lgkmcnt(0)')
        P('s_cmp_lt_u32 %s, 4' % s(sStep))
        P('s_cbranch_scc1 %s' % Ld)
        for k in range(6):
            P('s_sub_u32 s75, %s, %s' % (s(sStamp + 2 * k), 's74' if k == 0 else s(sStamp + 2 * k - 2)))
            P('s_add_u32 %s, %s, s75' % (s(80 + k), s(80 + k)))
            P('s_max_u32 %s, %s, s75' % (s(68 + k), s(68 + k)))
        P.label(Ld)
        P('s_mov_b32 s74, %s' % s(sStamp + 10))
    P('s_branch %s' % Ltop)
    for k, t in enumerate(tails):
        P.label(t[0])
        if diag:
            P('s_add_u32 s78, s78, 0x%x' % (1 << (10 * k)))
        t[1]()
    P.label(Lexit)
    P('s_waitcnt lgkmcnt(0)')
    if X == 1:
        for x in vr[5:]:
            P(x)
        for x in vc:
            P(x)
    P('buffer_store_dwordx4 %s, %s, %s, %s offen sc1' % (v(SP, 4), v(vL16), ws, s(sKM)))


def role_r(P, diag=False):
    r_prologue(P, diag)
    Lend = P.newlabel('R_end')
    if diag:
        P('s_memtime s[98:99]')
        P('s_memrealtime s[100:101]')
        P('s_waitcnt lgkmcnt(0)')
        for k in list(range(80, 86)) + list(range(68, 75)) + [78]:
            P('s_mov_b32 s%d, 0' % k)
    names = (('r', True, False), ('h', 'h16', False), ('w3', False, True))
    lab = {(f, X, nm): P.newlabel('R_v%d%d%s' % (f, X, nm)) for f in (1, 0) for X in (0, 1) for nm, _, _ in names}
    sel = {(f, X): P.newlabel('R_s%d%d' % (f, X)) for f in (1, 0) for X in (0, 1)}
    Lsafe = P.newlabel('R_safe')
    P('s_cmp_lg_u32 %s, 1' % s(sFast))
    P('s_cbranch_scc1 %s' % Lsafe)
    for f in (1, 0):
        if not f:
            P.label(Lsafe)
        P('s_cmp_eq_u32 %s, 1' % s(sX))
        P('s_cbranch_scc1 %s' % sel[(f, 1)])
        for X in (0, 1):
            P.label(sel[(f, X)])
            P('s_cmp_eq_u32 %s, 2' % s(sW))
            P('s_cbranch_scc1 %s' % lab[(f, X, 'h')])
            P('s_cmp_eq_u32 %s, 3' % s(sW))
            P('s_cbranch_scc1 %s' % lab[(f, X, 'w3')])
            P('s_branch %s' % lab[(f, X, 'r')])
    for f in (1, 0):
        for X in (0, 1):
            for nm, red, w3 in names:
                P.label(lab[(f, X, nm)])
                r_loop(P, f, X, red, w3, diag)
                P('s_branch %s' % Lend)
    P.label(Lend)
    P('s_waitcnt vmcnt(0) lgkmcnt(0)')
    P('s_barrier')
    L = P.newlabel('R_fin')
    P('s_cmp_lg_u32 %s, 3' % s(sW))
    P('s_cbranch_scc1 %s' % L)
    P('v_mov_b32 v0, 64')
    P('v_mov_b32 v1, 0')
    P('s_mov_b64 exec, 1')
    P('buffer_store_dword v0, v1, %s, %s offen sc1' % (s(S_WS, 4), s(sKmFlagOff)))
    P('s_mov_b64 exec, -1')
    P.label(L)
    if diag:
        P('s_memtime s[92:93]')
        P('s_memrealtime s[96:97]')
        P('s_waitcnt lgkmcnt(0)')
        P('s_sub_u32 s86, s92, s98')
        P('s_sub_u32 s87, s96, s100')
        P('s_mov_b32 s88, s78')
        P('s_mov_b32 s89, %s' % s(sFast))
        P('s_lshl_b32 s7, s2, 2')
        P('s_add_u32 s7, s7, %s' % s(sW))
        P('s_lshl_b32 s7, s7, 6')
        P('s_add_u32 s7, s7, 0x%x' % END0)
        P('v_mov_b32 v1, 0')
        for k in range(16):
            P('v_mov_b32 v0, s%d' % (80 + k if k < 10 else 58 + k))
            P('buffer_store_dword v0, v1, %s, s7 offen offset:%d' % (s(S_WS, 4), 4 * k))
```

```python
from asmlib import *
from layout import *
import role_r as R
from role_r import srd, S_WS, S_DBG, S_TMP, S_CLS, S_IDX, S_WAVE, S_SPIN, spin_retry, cvt, pk, LgkmTrack, addfill

ws = s(S_WS, 4)
tmp = s(S_TMP, 4)
sW = S_WAVE
t0, t1, t2, t3, t4, t5 = 20, 21, 22, 23, 24, 25
sC = 26
sSeg, sIt, sNeed = 27, 28, 29
sLdsW = 30
S_OUT = 32
sA, sB, sC2, sD, sE, sF = 36, 37, 38, 39, 40, 41
sLo32 = 42
sEps = 44
sMask = 48
sK0, sK1, sK2 = 64, 65, 66
sPk = 68

vLane, vL16 = 0, 1


def base_regs(P):
    P('v_and_b32 %s, 63, v0' % v(vLane))
    P('v_lshlrev_b32 %s, 4, %s' % (v(vL16), v(vLane)))
    P('s_sub_u32 %s, %s, 2' % (s(sC), s(S_CLS)))
    P('s_lshl_b32 %s, %s, 5' % (s(sC), s(sC)))
    P('s_add_u32 %s, %s, %s' % (s(sC), s(sC), s(S_IDX)))
    P('s_mov_b32 %s, -1' % s(sLo32))
    P('s_mov_b32 %s, 0' % s(sLo32 + 1))


def load_ptr(P, ka, nbytes, dst=S_TMP):
    P('s_load_dwordx2 s[76:77], s[0:1], %d' % ka)
    P('s_waitcnt lgkmcnt(0)')
    srd(P, dst, 76, nbytes)


def div_rows80(P, vr, vc, k, tt):
    P('v_add_u32 %s, %d, %s' % (v(tt), 64 * k, v(vLane)))
    P('v_mul_u32_u24 %s, 205, %s' % (v(vr), v(tt)))
    P('v_lshrrev_b32 %s, 14, %s' % (v(vr), v(vr)))
    P('v_mul_u32_u24 %s, 80, %s' % (v(vc), v(vr)))
    P('v_sub_u32 %s, %s, %s' % (v(vc), v(tt), v(vc)))


def load_w1(P, dst, rs, sbase, vt):
    vD, vT, a_, b_ = vt, vt + 1, vt + 2, vt + 3
    P('v_lshrrev_b32 %s, 4, %s' % (v(a_), v(vLane)))
    P('v_and_b32 %s, 15, %s' % (v(b_), v(vLane)))
    P('v_lshlrev_b32 %s, 2, %s' % (v(vD), v(a_)))
    P('v_xor_b32 %s, %s, %s' % (v(vD), v(vD), v(b_)))
    P('v_lshlrev_b32 %s, 4, %s' % (v(vD), v(vD)))
    P('v_mul_u32_u24 %s, %d, %s' % (v(b_), rs, v(a_)))
    P('v_add_u32 %s, %s, %s' % (v(vD), v(vD), v(b_)))
    P('s_mul_i32 %s, %s, %d' % (s(t0), s(sW), 16 * rs))
    P('s_add_u32 %s, %s, %s' % (s(t0), s(t0), s(sbase)))
    P('s_lshl_b32 %s, %s, 12' % (s(t1), s(sW)))
    P('s_barrier')
    for it in range(10):
        for i in range(4):
            P('s_add_u32 m0, %s, %d' % (s(t1), it * 16384 + i * 1024))
            P('s_add_u32 %s, %s, %d' % (s(t2), s(t0), (64 * it + 4 * i) * rs))
            P('buffer_load_dwordx4 %s, %s, %s offen lds' % (v(vD), tmp, s(t2)))
    P('v_bfe_u32 %s, %s, 2, 2' % (v(b_), v(vLane)))
    P('v_and_b32 %s, 1, %s' % (v(vT), v(a_)))
    P('s_lshl_b32 %s, %s, 1' % (s(t2), s(sW)))
    P('v_add_u32 %s, %s, %s' % (v(vT), s(t2), v(vT)))
    P('v_lshlrev_b32 %s, 1, %s' % (v(vD), v(b_)))
    P('v_xor_b32 %s, %s, %s' % (v(vT), v(vT), v(vD)))
    P('v_lshlrev_b32 %s, 5, %s' % (v(vT), v(vT)))
    P('v_lshrrev_b32 %s, 1, %s' % (v(a_), v(a_)))
    P('v_lshl_add_u32 %s, %s, 3, %s' % (v(b_), v(a_), v(b_)))
    P('v_lshl_add_u32 %s, %s, 8, %s' % (v(vT), v(b_), v(vT)))
    P('v_and_b32 %s, 3, %s' % (v(a_), v(vLane)))
    P('v_lshl_add_u32 %s, %s, 3, %s' % (v(vT), v(a_), v(vT)))
    for it in range(10):
        P('s_waitcnt vmcnt(%d)' % (36 - 4 * it))
        P('s_barrier')
        for q in range(4):
            for j in range(2):
                P('ds_read_b64_tr_b16 %s, %s offset:%d' % (R.sub(dst(4 * it + q), 2 * j, 2), v(vT), (it & 3) * 16384 + q * 4096 + j * 1024))
        if it & 3 == 3:
            P('v_add_u32 %s, 0x10000, %s' % (v(vT), v(vT)))
    P('s_waitcnt lgkmcnt(0)')
    P('s_barrier')


def load_w2(P, dst, sbase, atmap, vt):
    vD, vT, a_, b_ = vt, vt + 5, vt + 10, vt + 11
    for k in range(5):
        div_rows80(P, a_, b_, k, vT)
        P('v_lshlrev_b32 %s, 2, %s' % (v(vT), v(a_)))
        P('v_xor_b32 %s, %s, %s' % (v(b_), v(b_), v(vT)))
        P('v_mul_u32_u24 %s, 1280, %s' % (v(a_), v(a_)))
        P('v_lshl_add_u32 %s, %s, 4, %s' % (v(vD + k), v(b_), v(a_)))
    P('s_mul_i32 %s, %s, %d' % (s(t1), s(sW), 8 * 1280))
    P('s_add_u32 %s, %s, %s' % (s(t0), s(t1), s(sbase)))
    P('s_barrier')
    for it in range(4):
        for g in range(2):
            P('s_add_u32 %s, %s, %d' % (s(t2), s(t0), (32 * it + 4 * g) * 1280))
            for k in range(5):
                P('s_add_u32 m0, %s, %d' % (s(t1), it * 40960 + g * 5120 + k * 1024))
                P('s_nop 0')
                P('buffer_load_dwordx4 %s, %s, %s offen lds' % (v(vD + k), tmp, s(t2)))
    P('v_bfe_u32 %s, %s, 2, 2' % (v(a_), v(vLane)))
    P('v_lshrrev_b32 %s, 5, %s' % (v(b_), v(vLane)))
    P('v_lshl_add_u32 %s, %s, 2, %s' % (v(b_), v(b_), v(a_)))
    P('v_mul_u32_u24 %s, 1280, %s' % (v(b_), v(b_)))
    P('v_and_b32 %s, 1, %s' % (v(vD), v(vLane)))
    P('v_lshl_add_u32 %s, %s, 3, %s' % (v(b_), v(vD), v(b_)))
    P('v_bfe_u32 %s, %s, 4, 1' % (v(vD), v(vLane)))
    P('v_bfe_u32 %s, %s, 1, 1' % (v(vD + 1), v(vLane)))
    P('v_lshl_add_u32 %s, %s, 1, %s' % (v(vD), v(vD), v(vD + 1)))
    P('v_lshlrev_b32 %s, 2, %s' % (v(a_), v(a_)))
    P('s_mul_i32 %s, %s, 20' % (s(t2), s(sW)))
    for T in range(5):
        P('s_add_u32 %s, %s, %d' % (s(t3), s(t2), 4 * T))
        P('v_add_u32 %s, %s, %s' % (v(vD + 1), s(t3), v(vD)))
        P('v_xor_b32 %s, %s, %s' % (v(vD + 1), v(vD + 1), v(a_)))
        P('v_lshl_add_u32 %s, %s, 4, %s' % (v(vT + T), v(vD + 1), v(b_)))
    for it in range(4):
        P('s_waitcnt vmcnt(%d)' % (30 - 10 * it))
        P('s_barrier')
        for T in range(5):
            for k1 in range(2):
                for j in range(2):
                    row = (16 * j + 8 * k1) if atmap else (16 * k1 + 8 * j)
                    P('ds_read_b64_tr_b16 %s, %s offset:%d' % (R.sub(dst(T, 2 * it + k1), 2 * j, 2), v(vT + T), row * 1280))
            if it < 3:
                P('v_add_u32 %s, %d, %s' % (v(vT + T), 40960, v(vT + T)))
            P('s_waitcnt lgkmcnt(0)')
    P('s_barrier')


def stage_setup(P, vS, vF, drow, tt):
    P('s_lshl_b32 %s, %s, 2' % (s(t0), s(sW)))
    for k in range(5):
        div_rows80(P, tt, tt + 1, k, tt + 2)
        P('v_add_u32 %s, %s, %s' % (v(tt + 2), s(t0), v(tt)))
        P('v_xor_b32 %s, %s, %s' % (v(tt + 1), v(tt + 1), v(tt + 2)))
        P('v_mul_u32_u24 %s, 1280, %s' % (v(tt), v(tt)))
        P('v_lshl_add_u32 %s, %s, 4, %s' % (v(vS + k), v(tt + 1), v(tt)))
    P('v_and_b32 %s, 31, %s' % (v(tt), v(vLane)))
    if drow is not None:
        P('v_add_u32 %s, %s, %s' % (v(tt), s(drow), v(tt)))
    P('v_and_b32 %s, 15, %s' % (v(tt + 1), v(tt)))
    P('v_lshrrev_b32 %s, 5, %s' % (v(tt + 2), v(vLane)))
    P('v_xor_b32 %s, %s, %s' % (v(tt + 1), v(tt + 1), v(tt + 2)))
    P('v_mul_u32_u24 %s, 1280, %s' % (v(tt), v(tt)))
    for k in range(8):
        P('v_xor_b32 %s, %d, %s' % (v(tt + 2), 2 * k, v(tt + 1)))
        P('v_lshl_add_u32 %s, %s, 4, %s' % (v(vF + k), v(tt + 2), v(tt)))


def stage_issue(vS, sbase, slds, ngrp=2, st=t4):
    out = []
    for g in range(ngrp):
        out.append('s_add_u32 %s, %s, %d' % (s(st + (g & 1)), s(sbase), g * 20480))
        for k in range(5):
            out.append('s_add_u32 m0, %s, %d' % (s(slds), g * 20480 + k * 1024))
            out.append('buffer_load_dwordx4 %s, %s, %s offen sc1 lds' % (v(vS + k), ws, s(st + (g & 1))))
    return out


def poll_ge(P, soff, n, sneed, vt, srd_=None, sleep=2):
    Lp, Lok = P.newlabel('pg'), P.newlabel('pgok')
    P('v_min_u32 %s, %d, %s' % (v(vt), n - 1, v(vLane)))
    P('v_lshlrev_b32 %s, 2, %s' % (v(vt), v(vt)))
    P.label(Lp)
    P('buffer_load_dword %s, %s, %s, %s offen sc1' % (v(vt + 1), v(vt), ws, s(soff)))
    P('s_waitcnt vmcnt(0)')
    P('v_cmp_gt_u32 vcc, %s, %s' % (s(sneed), v(vt + 1)))
    P('s_cbranch_vccz %s' % Lok)
    P('s_sleep %d' % sleep)
    spin_retry(P, Lp, Lok)
    P.label(Lok)


def put_flag(P, soff, sval, vt):
    P('v_mov_b32 %s, %s' % (v(vt), s(sval) if isinstance(sval, int) else sval))
    P('v_mov_b32 %s, 0' % v(vt + 1))
    P('s_mov_b64 exec, 1')
    P('buffer_store_dword %s, %s, %s, %s offen sc1' % (v(vt), v(vt + 1), ws, s(soff)))
    P('s_mov_b64 exec, -1')


def signal_wg(P, soff, sval, vt):
    L = P.newlabel('sig')
    P('s_waitcnt vmcnt(0)')
    P('s_barrier')
    P('s_cmp_lg_u32 %s, 0' % s(sW))
    P('s_cbranch_scc1 %s' % L)
    put_flag(P, soff, sval, vt)
    P.label(L)


def row_consts(P, vSel, vRo, vR2, tt):
    P('v_and_b32 %s, 7, %s' % (v(tt), v(vLane)))
    P('v_mov_b32 %s, 0x3f80' % v(tt + 1))
    for q in range(4):
        P('v_cmp_eq_u32 vcc, %d, %s' % (2 * q, v(tt)))
        P('v_cndmask_b32 %s, 0, %s, vcc' % (v(vSel + q), v(tt + 1)))
        P('v_cmp_eq_u32 vcc, %d, %s' % (2 * q + 1, v(tt)))
        P('v_cndmask_b32 %s, %s, 1.0, vcc' % (v(vSel + q), v(vSel + q)))
    P('v_lshrrev_b32 %s, 4, %s' % (v(tt), v(vLane)))
    P('v_and_b32 %s, 0xf0, %s' % (v(tt + 1), v(vL16)))
    P('v_mul_u32_u24 %s, 1280, %s' % (v(vRo), v(tt)))
    P('v_add_u32 %s, %s, %s' % (v(vRo), v(vRo), v(tt + 1)))
    P('v_and_b32 %s, 1, %s' % (v(tt), v(tt)))
    P('v_lshl_add_u32 %s, %s, 3, %s' % (v(vR2), v(tt), v(tt + 1)))
    P('s_mov_b32 %s, 0x3727c5ac' % s(sEps))


def row_load(P, d, vR2, srd_, soff, sc=' sc1'):
    for cg in range(5):
        P('buffer_load_dwordx2 %s, %s, %s, %s offen offset:%d%s' % (v(d + 2 * cg, 2), v(vR2), srd_, s(soff), 256 * cg, sc))


def row_store(P, d, vR2, srd_, soff, sc=' sc1'):
    P('s_mov_b64 exec, %s' % s(sLo32, 2))
    for cg in range(5):
        P('buffer_store_dwordx2 %s, %s, %s, %s offen offset:%d%s' % (v(d + 2 * cg, 2), v(vR2), srd_, s(soff), 256 * cg, sc))
    P('s_mov_b64 exec, -1')


def unpack(P, dst, src):
    for i in range(10):
        P('v_and_b32 %s, 0xffff0000, %s' % (v(dst + 2 * i + 1), v(src + i)))
        P('v_lshlrev_b32 %s, 16, %s' % (v(dst + 2 * i), v(src + i)))


def pack(P, dst, src):
    for i in range(10):
        P(cvt(dst + i, src + 2 * i))


def xsum(P, r, tt):
    for n in (8, 4, 2, 1):
        P('v_add_f32_dpp %s, %s, %s row_ror:%d row_mask:0xf bank_mask:0xf' % (v(r), v(r), v(r), n))
    P('v_mov_b32 %s, %s' % (v(tt), v(r)))
    P('v_permlane16_swap_b32 %s, %s' % (v(r), v(tt)))
    P('v_add_f32 %s, %s, %s' % (v(r), v(r), v(tt)))


def rnd(P, r):
    P('v_cvt_pk_bf16_f32 %s, %s, %s' % (v(r), v(r), v(r)))
    P('v_and_b32 %s, 0xffff0000, %s' % (v(r), v(r)))


def layernorm(P, X, tt):
    P(pk('add', tt, X, X + 2)); P(pk('add', tt + 2, X + 4, X + 6))
    for i in range(8, 20, 4):
        P(pk('add', tt, tt, X + i)); P(pk('add', tt + 2, tt + 2, X + i + 2))
    P(pk('add', tt, tt, tt + 2))
    P('v_add_f32 %s, %s, %s' % (v(tt), v(tt), v(tt + 1)))
    xsum(P, tt, tt + 1)
    P('v_mul_f32 %s, 0x3acccccd, %s' % (v(tt), v(tt)))
    P('v_mov_b32 %s, %s' % (v(tt + 4), v(tt)))
    rnd(P, tt + 4)
    P('v_sub_f32 %s, %s, %s' % (v(tt), v(tt + 4), v(tt)))
    for i in range(0, 20, 2):
        P('v_pk_add_f32 %s, %s, %s op_sel_hi:[1,0] neg_lo:[0,1] neg_hi:[0,1]' % (v(X + i, 2), v(X + i, 2), v(tt + 4, 2)))
    P(pk('mul', tt + 2, X, X))
    for i in range(2, 20, 2):
        P('v_pk_fma_f32 %s, %s, %s, %s' % (v(tt + 2, 2), v(X + i, 2), v(X + i, 2), v(tt + 2, 2)))
    P('v_add_f32 %s, %s, %s' % (v(tt + 2), v(tt + 2), v(tt + 3)))
    xsum(P, tt + 2, tt + 3)
    P('v_mul_f32 %s, 0x3acccccd, %s' % (v(tt + 2), v(tt + 2)))
    P('v_fma_f32 %s, -%s, %s, %s' % (v(tt + 2), v(tt), v(tt), v(tt + 2)))
    P('v_max_f32 %s, 0, %s' % (v(tt + 2), v(tt + 2)))
    rnd(P, tt + 2)
    P('v_add_f32 %s, %s, %s' % (v(tt + 2), s(sEps), v(tt + 2)))
    rnd(P, tt + 2)
    P('v_sqrt_f32 %s, %s' % (v(tt + 2), v(tt + 2)))
    rnd(P, tt + 2)
    P('v_rcp_f32 %s, %s' % (v(tt + 2), v(tt + 2)))
    for i in range(0, 20, 2):
        P('v_pk_mul_f32 %s, %s, %s op_sel_hi:[1,0]' % (v(X + i, 2), v(X + i, 2), v(tt + 2, 2)))


def gather_sum(P, Dd, B, vSel, vRo, vRoLast, sbase, nq, st):
    def issue(q):
        P('s_add_u32 %s, %s, %d' % (s(st), s(sbase), 5120 * q))
        for cg in range(5):
            P('buffer_load_dwordx4 %s, %s, %s, %s offen offset:%d sc1' % (v(B + 20 * (q % 8) + 4 * cg, 4), v(vRoLast if q == nq - 1 else vRo), ws, s(st), 256 * cg))
    for q in range(nq):
        issue(q)
    for q in range(nq):
        for cg in range(5):
            P('s_waitcnt vmcnt(%d)' % (5 * (nq - 1 - q) + 4 - cg))
            P('v_mfma_f32_16x16x32_bf16 %s, %s, %s, %s' % (v(Dd + 4 * cg, 4), v(vSel, 4), v(B + 20 * (q % 8) + 4 * cg, 4), '0' if q == 0 else v(Dd + 4 * cg, 4)))


def add_rounded(P, X, Dd, Rp, tt):
    pack(P, tt, Dd)
    unpack(P, Dd, tt)
    unpack(P, X, Rp)
    for i in range(0, 20, 2):
        P(pk('add', X + i, X + i, Dd + i))
    pack(P, Rp, X)


def b5_setup(P, vTW, vTR, vGO, ldsbase, nprod, tt):
    P('s_mul_i32 %s, %s, 10752' % (s(t0), s(sW)))
    P('s_add_u32 %s, %s, %d' % (s(t0), s(t0), ldsbase))
    P('v_and_b32 %s, 31, %s' % (v(tt), v(vLane)))
    P('v_mul_u32_u24 %s, 336, %s' % (v(tt), v(tt)))
    P('v_lshrrev_b32 %s, 5, %s' % (v(tt + 1), v(vLane)))
    P('v_lshl_add_u32 %s, %s, 4, %s' % (v(tt), v(tt + 1), v(tt)))
    P('v_add_u32 %s, %s, %s' % (v(vTW), s(t0), v(tt)))
    if isinstance(nprod, int):
        P('s_mov_b32 %s, %d' % (s(t1), nprod * 1280))
    else:
        P('s_mul_i32 %s, %s, 1280' % (s(t1), nprod))
    for q in range(5):
        P('v_add_u32 %s, %d, %s' % (v(tt), 64 * q, v(vLane)))
        P('v_mul_u32_u24 %s, 205, %s' % (v(tt + 1), v(tt)))
        P('v_lshrrev_b32 %s, 12, %s' % (v(tt + 1), v(tt + 1)))
        P('v_mul_u32_u24 %s, 20, %s' % (v(tt + 2), v(tt + 1)))
        P('v_sub_u32 %s, %s, %s' % (v(tt), v(tt), v(tt + 2)))
        P('v_lshlrev_b32 %s, 4, %s' % (v(tt), v(tt)))
        P('v_mul_u32_u24 %s, 336, %s' % (v(tt + 2), v(tt + 1)))
        P('v_add3_u32 %s, %s, %s, %s' % (v(vTR + q), v(tt + 2), v(tt), s(t0)))
        P('v_mul_lo_u32 %s, %s, %s' % (v(tt + 2), v(tt + 1), s(t1)))
        P('v_add_u32 %s, %s, %s' % (v(vGO + q), v(tt + 2), v(tt)))


def b5(P, W2, ldsU, U, acc, pkd, vTW, vTR, vGO, sdst0, sdst1):
    E = LgkmTrack(P)
    for ks in range(8):
        E('ds_read_b128 %s, %s offset:%d' % (v(U + 4 * ks, 4), v(vL16), ldsU + 1024 * ks))
    pend = []
    for T in range(6):
        a_ = acc + 16 * (T & 1)
        main = [] if T == 5 else ['v_mfma_f32_32x32x16_bf16 %s, %s, %s, %s' % (v(a_, 16), W2(T, ks), v(U + 4 * ks, 4), '0' if ks == 0 else v(a_, 16)) for ks in range(8)]
        fill = {}
        if pend and main:
            for k in range(0, len(pend), 3):
                fill[2 + k // 3] = pend[k:k + 3]
            E.weave(main, fill)
        elif main:
            E.weave(main, {})
        else:
            for x in pend:
                E(x)
        if T < 5:
            pend = [cvt(pkd + i, a_ + 2 * i) for i in range(8)]
            pend += ['v_permlane32_swap_b32 %s, %s' % (v(pkd + 4 * h + x), v(pkd + 4 * h + 2 + x)) for h in range(2) for x in range(2)]
            pend += ['ds_write_b128 %s, %s offset:%d' % (v(vTW), v(pkd + 4 * h, 4), (4 * T + 2 * h) * 16) for h in range(2)]
    E.drain()
    for q in range(10):
        E('ds_read_b128 %s, %s offset:%d' % (v(acc + 4 * (q % 8), 4) if q < 8 else v(pkd + 4 * (q - 8), 4), v(vTR + q % 5), 5376 * (q // 5)))
    for q in range(10):
        E('buffer_store_dwordx4 %s, %s, %s, %s offen sc1' % (v(acc + 4 * (q % 8), 4) if q < 8 else v(pkd + 4 * (q - 8), 4), v(vGO + q % 5), ws, s(sdst1 if q >= 5 else sdst0)))


def flag_offsets(P):
    P('s_sub_u32 %s, %s, 2' % (s(t0), s(S_CLS)))
    P('s_lshr_b32 %s, %s, 1' % (s(sK0), s(t0)))
    P('s_and_b32 %s, %s, 1' % (s(t0), s(t0)))
    P('s_lshl_b32 %s, %s, 4' % (s(t0), s(t0)))
    P('s_lshr_b32 %s, %s, 1' % (s(t1), s(S_IDX)))
    P('s_add_u32 %s, %s, %s' % (s(sK1), s(t0), s(t1)))
    P('s_and_b32 %s, %s, 1' % (s(sK2), s(S_IDX)))
    P('s_lshl_b32 %s, %s, 7' % (s(sA), s(sK1)))
    P('s_lshl_b32 %s, %s, 3' % (s(t0), s(sK0)))
    P('s_add_u32 %s, %s, %s' % (s(sA), s(sA), s(t0)))
    P('s_lshl_b32 %s, %s, 2' % (s(t0), s(sK2)))
    P('s_add_u32 %s, %s, %s' % (s(sA), s(sA), s(t0)))
    P('s_add_u32 %s, %s, 0x%x' % (s(sA), s(sA), PFLAG))
    P('s_lshl_b32 %s, %s, 2' % (s(sB), s(sC)))
    P('s_add_u32 %s, %s, 0x%x' % (s(sB), s(sB), LNFLAG))


def init_clear(P):
    L, L2 = P.newlabel('ic'), P.newlabel('ic2')
    P('s_cmp_lg_u32 %s, 0' % s(sW))
    P('s_cbranch_scc1 %s' % L)
    put_flag(P, sA, '0', 4)
    put_flag(P, sB, '0', 4)
    P('s_cmp_lg_u32 %s, 0' % s(sC))
    P('s_cbranch_scc1 %s' % L)
    for i in range(4):
        P('v_mov_b32 %s, 0' % v(4 + i))
    for off in (ATFLAG, ATFLAG + 1024, ATFLAG + 2048, ZB - 2560, ZB - 1536, ZB - 1024, ZB + 2048 * 1280, ZB + 2048 * 1280 + 1024, ZB + 2048 * 1280 + 1536):
        P('s_mov_b32 %s, 0x%x' % (s(t0), off))
        P('buffer_store_dwordx4 %s, %s, %s, %s offen sc1' % (v(4, 4), v(vL16), ws, s(t0)))
    P.label(L)
    P('s_waitcnt vmcnt(0)')
    P('s_barrier')
    R.arrive(P)


def role_ln0(P):
    Lskip = P.newlabel('ln0skip')
    vR2, X, Rp, tt = 8, 16, 40, 84
    row_consts(P, 10, 9, vR2, tt)
    P('s_cmp_ge_u32 %s, 128' % s(sC))
    P('s_cbranch_scc1 %s' % Lskip)
    load_ptr(P, KA_X, S * D * 2, S_OUT)
    P('s_lshl_b32 %s, %s, 2' % (s(t0), s(sC)))
    P('s_add_u32 %s, %s, %s' % (s(t0), s(t0), s(sW)))
    P('s_mul_i32 %s, %s, %d' % (s(t0), s(t0), 4 * 1280))
    for r in range(4):
        P('s_add_u32 %s, %s, %d' % (s(t1), s(t0), r * 1280))
        row_load(P, Rp + 10 * r, vR2, s(S_OUT, 4), t1, '')
    for r in range(4):
        P('s_waitcnt vmcnt(%d)' % (15 - 5 * r + 5 * r))
        unpack(P, X, Rp + 10 * r)
        layernorm(P, X, tt)
        pack(P, Rp + 10 * r, X)
        P('s_add_u32 %s, %s, 0x%x' % (s(t1), s(t0), XN + r * 1280))
        row_store(P, Rp + 10 * r, vR2, ws, t1)
    signal_wg(P, sB, '1', 4)
    P.label(Lskip)


def role_p(P):
    vS, vF, Bf, acc, pkd, vSt = 8, 16, 24, 64, 96, 104
    Wf = lambda kk: a(4 * kk, 4)
    sMat, sH, sPar = sK0, sK1, sK2
    sX0, sL0, sDst, sLnOk = sC2, sD, sE, sF
    P('s_lshl_b32 %s, %s, 3' % (s(t0), s(sMat)))
    P('s_add_u32 %s, %s, %d' % (s(t0), s(t0), KA_WQ))
    P('s_load_dwordx2 s[76:77], s[0:1], %s' % s(t0))
    P('s_waitcnt lgkmcnt(0)')
    srd(P, S_TMP, 76, 640 * 8192)
    P('s_lshl_b32 %s, %s, 8' % (s(t3), s(sH)))
    load_w1(P, Wf, 8192, t3, 24)
    stage_setup(P, vS, vF, None, 24)
    P('v_and_b32 %s, 15, %s' % (v(24), v(vLane)))
    P('v_bfe_u32 %s, %s, 4, 1' % (v(25), v(vLane)))
    P('v_lshrrev_b32 %s, 5, %s' % (v(26), v(vLane)))
    P('v_lshl_add_u32 %s, %s, 4, %s' % (v(24), v(26), v(24)))
    P('v_lshlrev_b32 %s, 4, %s' % (v(24), v(24)))
    P('v_lshl_add_u32 %s, %s, 10, %s' % (v(vSt), v(25), v(24)))
    P('s_cmp_eq_u32 %s, 0' % s(sMat))
    P('s_cselect_b32 %s, 3, %s' % (s(t0), s(sMat)))
    P('s_sub_u32 %s, %s, 1' % (s(t0), s(t0)))
    P('s_lshl_b32 %s, %s, 24' % (s(sDst), s(t0)))
    P('s_lshl_b32 %s, %s, 2' % (s(t0), s(sH)))
    P('s_add_u32 %s, %s, %s' % (s(t0), s(t0), s(sW)))
    P('s_lshl_b32 %s, %s, 11' % (s(t0), s(t0)))
    P('s_add_u32 %s, %s, %s' % (s(sDst), s(sDst), s(t0)))
    P('s_lshl_b32 %s, %s, 18' % (s(t0), s(sPar)))
    P('s_add_u32 %s, %s, %s' % (s(sDst), s(sDst), s(t0)))
    P('s_add_u32 %s, %s, 0x%x' % (s(sDst), s(sDst), KX))
    P('s_mul_i32 %s, %s, 5120' % (s(sLdsW), s(sW)))
    P('s_mul_i32 %s, %s, 40960' % (s(t0), s(sPar)))
    P('s_add_u32 %s, %s, %s' % (s(sX0), s(t0), s(sLdsW)))
    P('s_add_u32 %s, %s, 0x%x' % (s(sX0), s(sX0), XN))
    R.wait_all(P)
    P('s_mov_b32 %s, 1' % s(sNeed))
    P('s_mov_b32 %s, 0x%x' % (s(t0), LNFLAG))
    poll_ge(P, t0, 64, sNeed, 24)
    P('s_mov_b32 %s, 0x%x' % (s(t0), LNFLAG + 256))
    poll_ge(P, t0, 64, sNeed, 24)
    for i in range(2):
        P('s_add_u32 %s, %s, %d' % (s(sL0), s(sLdsW), i * 40960))
        for x in stage_issue(vS, sX0, sL0):
            P(x)
        P('s_add_u32 %s, %s, %d' % (s(sX0), s(sX0), 81920))
    P('s_mov_b32 %s, 0' % s(sIt))
    P('s_waitcnt vmcnt(10)')
    Lv, Lend = P.newlabel('P_v'), P.newlabel('P_end')
    P('s_cmp_eq_u32 %s, 2' % s(sMat))
    P('s_cbranch_scc1 %s' % Lv)
    for isv in (0, 1):
        if isv:
            P.label(Lv)
        Ltop, Lx = P.newlabel('P_top'), P.newlabel('P_x')
        P.label(Ltop)
        for slot in range(3):
            P('s_waitcnt vmcnt(12)')
            P('s_barrier')
            Lnf = P.newlabel('P_nf')
            P('s_cmp_lg_u32 %s, 0' % s(sW))
            P('s_cbranch_scc1 %s' % Lnf)
            P('s_max_u32 %s, %s, 1' % (s(t0), s(sIt)))
            P('s_sub_u32 %s, %s, 1' % (s(t0), s(t0)))
            put_flag(P, sA, t0, 28)
            P.label(Lnf)
            E = LgkmTrack(P)
            rd = ['ds_read_b128 %s, %s offset:%d' % (v(Bf + 4 * (kk % 8), 4), v(vF + (kk & 7)), (kk >> 3) * 256) for kk in range(40)]
            for kk in range(6):
                E(rd[kk])
            P('s_add_u32 %s, %s, %d' % (s(sL0), s(sLdsW), ((slot + 2) % 3) * 40960))
            dma = stage_issue(vS, sX0, sL0)
            main = []
            for kk in range(40):
                A_, B_ = (v(Bf + 4 * (kk % 8), 4), Wf(kk)) if isv else (Wf(kk), v(Bf + 4 * (kk % 8), 4))
                main.append('v_mfma_f32_32x32x16_bf16 %s, %s, %s, %s' % (v(acc, 16), A_, B_, '0' if kk == 0 else v(acc, 16)))
            fill = {}
            addfill(fill, 0, rd[6:])
            k = 1
            while dma:
                n = 3 if dma[0].startswith('s_add_u32 s') else 2
                fill.setdefault(k, []).extend(dma[:n]); dma = dma[n:]; k += 3
            addfill(fill, 34, ['v_add_u32 %s, %d, %s' % (v(vF + i), 40960 if slot < 2 else -81920, v(vF + i)) for i in range(6)])
            E.weave(main, fill)
            for i in (6, 7):
                P('v_add_u32 %s, %d, %s' % (v(vF + i), 40960 if slot < 2 else -81920, v(vF + i)))
            P('s_add_u32 %s, %s, %d' % (s(sX0), s(sX0), 81920))
            for n, i in enumerate((0, 2, 1, 3)):
                P(cvt(pkd + 2 * n, acc + 4 * i)); P(cvt(pkd + 2 * n + 1, acc + 4 * i + 2))
            P('buffer_store_dwordx4 %s, %s, %s, %s offen sc1' % (v(pkd, 4), v(vSt), ws, s(sDst)))
            P('buffer_store_dwordx4 %s, %s, %s, %s offen offset:512 sc1' % (v(pkd + 4, 4), v(vSt), ws, s(sDst)))
            P('s_add_u32 %s, %s, 0x80000' % (s(sDst), s(sDst)))
            P('s_add_u32 %s, %s, 1' % (s(sIt), s(sIt)))
            P('s_cmp_eq_u32 %s, 32' % s(sIt))
            P('s_cbranch_scc1 %s' % Lend)
        P('s_branch %s' % Ltop)
    P.label(Lend)
    signal_wg(P, sA, '32', 28)


def role_at(P):
    sSet, sH = sK0, S_IDX
    sKQ, sKMo, sPart, sRow = sA, sB, sC2, sD
    sFlagAT, sFlagZ = sE, sF
    W2 = lambda T, ks: a(32 * T + 4 * ks, 4)
    vTW, vTR, vGO, vOW, vSel, vRo, vR2 = 2, 3, 8, 13, 16, 14, 15
    Q, K, KMr, V, VMr = 20, 36, 68, 84, 100
    S_, O_, Bx, Bm, mx, tm = 108, 120, 136, 140, 142, 143
    U, acc, pkd = 144, 176, 208
    Dd, X, Rp, tt, GB = 216, 20, 236, 246, 40
    L_O, L_T = 0, 8192
    P('s_sub_u32 %s, %s, 2' % (s(sSet), s(S_CLS)))
    load_ptr(P, KA_WO, 4096 * 1280)
    P('s_mul_i32 %s, %s, %d' % (s(t4), s(sH), 128 * 1280))
    load_w2(P, W2, t4, True, 20)
    b5_setup(P, vTW, vTR, vGO, L_T, 32, 20)
    row_consts(P, vSel, vRo, vR2, 20)
    load_ptr(P, KA_X, S * D * 2, S_OUT)
    P('s_and_b32 %s, %s, 1' % (s(t0), s(sW)))
    P('s_lshr_b32 %s, %s, 1' % (s(t1), s(sW)))
    P('v_lshrrev_b32 v20, 5, %s' % v(vLane))
    P('v_bfe_u32 v21, %s, 4, 1' % v(vLane))
    P('v_and_b32 v22, 15, %s' % v(vLane))
    P('v_lshl_add_u32 v21, v21, 5, v22')
    P('v_lshlrev_b32 v21, 4, v21')
    P('v_lshl_add_u32 v21, v20, 10, v21')
    P('s_lshl_b32 %s, %s, 12' % (s(t2), s(t1)))
    P('s_lshl_b32 %s, %s, 8' % (s(t3), s(t0)))
    P('s_add_u32 %s, %s, %s' % (s(t2), s(t2), s(t3)))
    P('v_add_u32 %s, %s, v21' % (v(vOW), s(t2)))
    P('s_lshl_b32 %s, %s, 4' % (s(t2), s(t0)))
    P('v_add_u32 v22, %s, v22' % s(t2))
    P('v_lshrrev_b32 v20, 4, %s' % v(vLane))
    P('v_lshlrev_b32 v20, 2, v20')
    P('v_sub_u32 v22, v22, v20')
    for k in range(8):
        P('v_cmp_le_i32 %s, %d, v22' % (s(sMask + 2 * k, 2), 16 * (k >> 2) + (k & 3)))
    P('s_mov_b32 %s, 0x3e0293ee' % s(sPk))
    P('s_mov_b32 %s, 0x3e0293ee' % s(sPk + 1))
    P('s_lshl_b32 %s, %s, 10' % (s(sPk + 2), s(t0)))
    P('s_lshl_b32 %s, %s, 12' % (s(sPk + 3), s(t1)))
    P('s_lshl_b32 %s, %s, 11' % (s(sPk + 4), s(t1)))
    P('s_lshl_b32 %s, %s, 7' % (s(t2), s(sSet)))
    P('s_lshl_b32 %s, %s, 2' % (s(t3), s(sH)))
    P('s_add_u32 %s, %s, %s' % (s(t2), s(t2), s(t3)))
    P('s_add_u32 %s, %s, 0x%x' % (s(sFlagAT), s(t2), ATFLAG))
    P('s_add_u32 %s, %s, 0x%x' % (s(sFlagZ), s(t2), ZFLAG))
    P('s_mov_b32 %s, %s' % (s(sSeg), s(sSet)))
    P('s_mov_b32 %s, 0' % s(sIt))
    Ltop, Lend, Lnc = P.newlabel('AT_top'), P.newlabel('AT_end'), P.newlabel('AT_nc')
    P.label(Ltop)
    P('s_lshl_b32 %s, %s, 7' % (s(t0), s(sH)))
    P('s_add_u32 %s, %s, 1' % (s(sNeed), s(sIt)))
    poll_ge(P, t0, 6, sNeed, 246)
    P('s_lshl_b32 %s, %s, 5' % (s(t0), s(sSeg)))
    P('s_add_u32 %s, %s, %s' % (s(t0), s(t0), s(sH)))
    P('s_lshl_b32 %s, %s, 13' % (s(sKQ), s(t0)))
    P('s_add_u32 %s, %s, 0x%x' % (s(sKQ), s(sKQ), KX))
    P('s_lshl_b32 %s, %s, 12' % (s(sKMo), s(t0)))
    P('s_add_u32 %s, %s, 0x%x' % (s(sKMo), s(sKMo), KM))
    P('s_add_u32 %s, %s, 4096' % (s(t1), s(sKQ)))
    for w_ in range(4):
        for t in range(2):
            P('buffer_load_dwordx4 %s, %s, %s, %s offen offset:%d sc1' % (v(K + 8 * w_ + 4 * t, 4), v(vL16), ws, s(sKQ if w_ < 2 else t1), (w_ & 1) * 2048 + t * 1024))
    P('s_add_u32 %s, %s, %s' % (s(t0), s(sKQ), s(sPk + 2)))
    P('s_add_u32 %s, %s, 0x%x' % (s(t0), s(t0), QX - KX))
    P('s_add_u32 %s, %s, 4096' % (s(t1), s(t0)))
    for w_ in range(4):
        P('buffer_load_dwordx4 %s, %s, %s, %s offen offset:%d sc1' % (v(Q + 4 * w_, 4), v(vL16), ws, s(t0 if w_ < 2 else t1), (w_ & 1) * 2048))
    P('s_add_u32 %s, %s, %s' % (s(t0), s(sKQ), s(sPk + 3)))
    P('s_add_u32 %s, %s, 0x%x' % (s(t0), s(t0), VX - KX))
    for i in range(4):
        P('buffer_load_dwordx4 %s, %s, %s, %s offen offset:%d sc1' % (v(V + 4 * i, 4), v(vL16), ws, s(t0), 1024 * i))
    P('s_waitcnt vmcnt(4)')
    mm = lambda d, a_, b_, c_: P('v_mfma_f32_16x16x32_bf16 %s, %s, %s, %s' % (v(d, 4), v(a_, 4), v(b_, 4), c_))
    for w_ in range(4):
        for t in range(2):
            mm(S_ + 4 + 4 * t, K + 8 * w_ + 4 * t, Q + 4 * w_, '0' if w_ == 0 else v(S_ + 4 + 4 * t, 4))
    P('s_lshl_b32 %s, %s, 7' % (s(t0), s(sH)))
    P('s_add_u32 %s, %s, 0x%x' % (s(t0), s(t0), KMFLAG))
    P('s_add_u32 %s, %s, 1' % (s(sNeed), s(sSeg)))
    poll_ge(P, t0, 2, sNeed, 246, sleep=1)
    for w_ in range(4):
        P('buffer_load_dwordx4 %s, %s, %s, %s offen offset:%d sc1' % (v(KMr + 4 * w_, 4), v(vL16), ws, s(sKMo), 1024 * w_))
    P('s_add_u32 %s, %s, %s' % (s(t0), s(sKMo), s(sPk + 4)))
    P('s_add_u32 %s, %s, 0x%x' % (s(t0), s(t0), VM - KM))
    for i in range(2):
        P('buffer_load_dwordx4 %s, %s, %s, %s offen offset:%d sc1' % (v(VMr + 4 * i, 4), v(vL16), ws, s(t0), 1024 * i))
    P('v_mov_b32 %s, 0xff800000' % v(tm))
    for k in range(8):
        P('v_cndmask_b32 %s, %s, %s, %s' % (v(S_ + 4 + k), v(tm), v(S_ + 4 + k), s(sMask + 2 * k, 2)))
    P('v_max3_f32 %s, %s, %s, %s' % (v(mx), v(S_ + 4), v(S_ + 5), v(S_ + 6)))
    P('v_max3_f32 %s, %s, %s, %s' % (v(mx), v(mx), v(S_ + 7), v(S_ + 8)))
    P('v_max3_f32 %s, %s, %s, %s' % (v(mx), v(mx), v(S_ + 9), v(S_ + 10)))
    P('v_max_f32 %s, %s, %s' % (v(mx), v(mx), v(S_ + 11)))
    for w_ in range(4):
        P('s_waitcnt vmcnt(%d)' % (5 - w_))
        mm(S_, KMr + 4 * w_, Q + 4 * w_, '0' if w_ == 0 else v(S_, 4))
    P('v_max3_f32 %s, %s, %s, %s' % (v(mx), v(mx), v(S_), v(S_ + 1)))
    P('v_max3_f32 %s, %s, %s, %s' % (v(mx), v(mx), v(S_ + 2), v(S_ + 3)))
    for sw in ('16', '32'):
        P('v_mov_b32 %s, %s' % (v(tm), v(mx)))
        P('v_permlane%s_swap_b32 %s, %s' % (sw, v(mx), v(tm)))
        P('v_max_f32 %s, %s, %s' % (v(mx), v(mx), v(tm)))
    P('v_mul_f32 %s, %s, %s' % (v(mx), s(sPk), v(mx)))
    for r in range(0, 12, 2):
        P('v_pk_fma_f32 %s, %s, %s, %s op_sel_hi:[1,1,0] neg_lo:[0,0,1] neg_hi:[0,0,1]' % (v(S_ + r, 2), v(S_ + r, 2), s(sPk, 2), v(mx, 2)))
    for r in range(12):
        P('v_exp_f32 %s, %s' % (v(S_ + r), v(S_ + r)))
    for i in range(4):
        P(cvt(Bx + i, S_ + 4 + 2 * i))
    for i in range(2):
        P(cvt(Bm + i, S_ + 2 * i))
    P('s_waitcnt vmcnt(0)')
    for i in range(4):
        mm(O_ + 4 * i, V + 4 * i, Bx, '0')
    for i in range(4):
        P('v_mfma_f32_16x16x16_bf16 %s, %s, %s, %s' % (v(O_ + 4 * i, 4), v(VMr + 2 * i, 2), v(Bm, 2), v(O_ + 4 * i, 4)))
    P(pk('add', S_, S_, S_ + 2)); P(pk('add', S_ + 4, S_ + 4, S_ + 6)); P(pk('add', S_ + 8, S_ + 8, S_ + 10))
    P(pk('add', S_ + 4, S_ + 4, S_ + 8))
    P('v_add_f32 %s, %s, %s' % (v(S_), v(S_), v(S_ + 1)))
    P('v_add_f32 %s, %s, %s' % (v(S_ + 4), v(S_ + 4), v(S_ + 5)))
    P('v_fma_f32 %s, %s, 0.5, %s' % (v(mx), v(S_), v(S_ + 4)))
    for sw in ('16', '32'):
        P('v_mov_b32 %s, %s' % (v(tm), v(mx)))
        P('v_permlane%s_swap_b32 %s, %s' % (sw, v(mx), v(tm)))
        P('v_add_f32 %s, %s, %s' % (v(mx), v(mx), v(tm)))
    P('v_rcp_f32 %s, %s' % (v(mx), v(mx)))
    for r in range(0, 16, 2):
        P('v_pk_mul_f32 %s, %s, %s op_sel_hi:[1,0]' % (v(O_ + r, 2), v(O_ + r, 2), v(mx, 2)))
    for i in range(8):
        P(cvt(pkd + i, O_ + 2 * i))
    for i in range(2):
        P('ds_write_b128 %s, %s offset:%d' % (v(vOW), v(pkd + 4 * i, 4), L_O + 2048 * i))
    P('s_and_b32 %s, %s, 1' % (s(t0), s(sIt)))
    P('s_lshl_b32 %s, %s, 1' % (s(t1), s(sSet)))
    P('s_add_u32 %s, %s, %s' % (s(t0), s(t0), s(t1)))
    P('s_mul_i32 %s, %s, 0x%x' % (s(sPart), s(t0), APART_SLOT))
    P('s_add_u32 %s, %s, 0x%x' % (s(sPart), s(sPart), APART))
    P('s_mul_i32 %s, %s, 1280' % (s(t0), s(sH)))
    P('s_mul_i32 %s, %s, 320' % (s(t1), s(sW)))
    P('s_add_u32 %s, %s, %s' % (s(t0), s(t0), s(t1)))
    P('s_add_u32 %s, %s, %s' % (s(t0), s(t0), s(sPart)))
    P('s_add_u32 %s, %s, %d' % (s(t1), s(t0), 16 * 32 * 1280))
    P('s_waitcnt lgkmcnt(0)')
    P('s_barrier')
    b5(P, W2, L_O, U, acc, pkd, vTW, vTR, vGO, t0, t1)
    P('s_add_u32 %s, %s, 1' % (s(sIt), s(sIt)))
    signal_wg(P, sFlagAT, sIt, 246)
    P('s_cmp_lg_u32 %s, 0' % s(sW))
    P('s_cbranch_scc1 %s' % Lnc)
    P('s_lshl_b32 %s, %s, 5' % (s(sRow), s(sSeg)))
    P('s_add_u32 %s, %s, %s' % (s(sRow), s(sRow), s(sH)))
    P('s_mul_i32 %s, %s, 1280' % (s(sRow), s(sRow)))
    row_load(P, Rp, vR2, s(S_OUT, 4), sRow, '')
    P('s_lshl_b32 %s, %s, 7' % (s(t0), s(sSet)))
    P('s_add_u32 %s, %s, 0x%x' % (s(t0), s(t0), ATFLAG))
    poll_ge(P, t0, 32, sIt, 246, sleep=1)
    P('s_mul_i32 %s, %s, %d' % (s(t0), s(sH), 32 * 1280))
    P('s_add_u32 %s, %s, %s' % (s(t0), s(t0), s(sPart)))
    gather_sum(P, Dd, GB, vSel, vRo, vRo, t0, 8, t1)
    add_rounded(P, X, Dd, Rp, GB)
    P('s_add_u32 %s, %s, 0x%x' % (s(t0), s(sRow), HB))
    row_store(P, Rp, vR2, ws, t0)
    unpack(P, X, Rp)
    layernorm(P, X, tt)
    pack(P, GB, X)
    P('s_add_u32 %s, %s, 0x%x' % (s(t0), s(sRow), YB))
    row_store(P, GB, vR2, ws, t0)
    unpack(P, X, GB)
    layernorm(P, X, tt)
    pack(P, GB + 10, X)
    P('s_add_u32 %s, %s, 0x%x' % (s(t0), s(sRow), ZB))
    row_store(P, GB + 10, vR2, ws, t0)
    P('s_waitcnt vmcnt(0)')
    put_flag(P, sFlagZ, sIt, 246)
    P.label(Lnc)
    P('s_add_u32 %s, %s, 2' % (s(sSeg), s(sSeg)))
    P('s_cmp_lt_u32 %s, 32' % s(sIt))
    P('s_cbranch_scc1 %s' % Ltop)


def role_df(P, sCl, sJ):
    W1 = lambda kk: a(4 * kk, 4)
    def W2(T, ks):
        n = 8 * T + ks
        return a(160 + 4 * n, 4) if n < 24 else v(192 + 4 * (n - 24), 4)
    vTW, vTR, vGO, vS, vF, vUW = 2, 3, 8, 13, 18, 26
    Bf, acc, pkd, U = 28, 60, 92, 100
    L_Z, L_U, L_T = 0, 46080, 54272
    sIsF, sSl, sSrc, sDst, sStr, sFlag = sK0, sK1, sA, sB, sC2, sD
    sNp, sDr = sE, sF
    Lf, Lj = P.newlabel('DF_f'), P.newlabel('DF_j')
    P('s_cmp_ge_u32 %s, 5' % s(sJ))
    P('s_cselect_b32 %s, 1, 0' % s(sIsF))
    P('s_cbranch_scc1 %s' % Lf)
    P('s_mov_b32 %s, %s' % (s(sSl), s(sJ)))
    load_ptr(P, KA_W1, 640 * 1280)
    P('s_lshl_b32 %s, %s, 8' % (s(t3), s(sSl)))
    load_w1(P, W1, 1280, t3, 28)
    load_ptr(P, KA_W2, 640 * 1280)
    P('s_mov_b32 %s, 5' % s(sNp))
    P('s_mov_b32 %s, 0x%x' % (s(sSrc), ZB - 2560))
    P('s_mov_b32 %s, 0x%x' % (s(sDst), DPART))
    P('s_lshl_b32 %s, %s, 2' % (s(t0), s(sSl)))
    P('s_add_u32 %s, %s, %s' % (s(t0), s(t0), s(sW)))
    P('s_mul_i32 %s, %s, 52' % (s(t0), s(t0)))
    P('s_lshr_b32 %s, %s, 8' % (s(t0), s(t0)))
    P('s_lshl_b32 %s, %s, 2' % (s(t0), s(t0)))
    P('s_lshr_b32 %s, 0x4031, %s' % (s(sDr), s(t0)))
    P('s_and_b32 %s, %s, 15' % (s(sDr), s(sDr)))
    P('s_mov_b32 %s, %s' % (s(sFlag), s(sSl)))
    P('s_branch %s' % Lj)
    P.label(Lf)
    P('s_sub_u32 %s, %s, 5' % (s(sSl), s(sJ)))
    load_ptr(P, KA_W3, 640 * 3456)
    P('s_lshl_b32 %s, %s, 8' % (s(t3), s(sSl)))
    load_w1(P, W1, 3456, t3, 28)
    load_ptr(P, KA_W4, 1728 * 1280)
    P('s_mov_b32 %s, 14' % s(sNp))
    P('s_mov_b32 %s, 0x%x' % (s(sSrc), Z2 - 2560))
    P('s_mov_b32 %s, 0x%x' % (s(sDst), FPART))
    P('s_mov_b32 %s, 2' % s(sDr))
    P('s_add_u32 %s, %s, 8' % (s(sFlag), s(sSl)))
    P.label(Lj)
    P('s_mul_i32 %s, %s, %d' % (s(t4), s(sSl), 128 * 1280))
    load_w2(P, W2, t4, False, 28)
    b5_setup(P, vTW, vTR, vGO, L_T, s(sNp), 28)
    stage_setup(P, vS, vF, sDr, 28)
    P('s_lshl_b32 %s, %s, 11' % (s(t0), s(sW)))
    P('s_add_u32 %s, %s, %d' % (s(t0), s(t0), L_U))
    P('v_add_u32 %s, %s, %s' % (v(vUW), s(t0), v(vL16)))
    P('s_lshl_b32 %s, %s, 2' % (s(sFlag), s(sFlag)))
    P('s_lshl_b32 %s, %s, 7' % (s(t0), s(sCl)))
    P('s_add_u32 %s, %s, %s' % (s(sFlag), s(sFlag), s(t0)))
    P('s_add_u32 %s, %s, 0x%x' % (s(sFlag), s(sFlag), DFLAG))
    P('s_mul_i32 %s, %s, %d' % (s(sStr), s(sNp), 32 * 1280))
    P('s_mul_i32 %s, %s, 5120' % (s(sLdsW), s(sW)))
    P('s_add_u32 %s, %s, %s' % (s(sSrc), s(sSrc), s(sLdsW)))
    P('s_mul_i32 %s, %s, 1280' % (s(t0), s(sSl)))
    P('s_mul_i32 %s, %s, 320' % (s(t1), s(sW)))
    P('s_add_u32 %s, %s, %s' % (s(t0), s(t0), s(t1)))
    P('s_add_u32 %s, %s, %s' % (s(sDst), s(sDst), s(t0)))
    c0 = -2.0 * 1.4426950408889634 * 0.7978845608028654
    import struct
    fb = lambda x: struct.unpack('<I', struct.pack('<f', x))[0]
    for i in range(2):
        P('s_mov_b32 %s, 0x%08x' % (s(sPk + i), fb(c0 * 0.044715)))
    P('v_mov_b32 v132, 0x%08x' % fb(c0))
    P('v_mov_b32 v133, 0x%08x' % fb(c0))
    P('s_mov_b32 %s, %s' % (s(sSeg), s(sCl)))
    P('s_mov_b32 %s, 0' % s(sIt))
    Ltop, Lpf, Lgo, Ln9 = P.newlabel('DF_top'), P.newlabel('DF_pf'), P.newlabel('DF_go'), P.newlabel('DF_n9')
    P.label(Ltop)
    P('s_cmp_eq_u32 %s, 1' % s(sIsF))
    P('s_cbranch_scc1 %s' % Lpf)
    P('s_add_u32 %s, %s, 1' % (s(t1), s(sSeg)))
    P('s_min_u32 %s, %s, 63' % (s(t1), s(t1)))
    P('s_lshr_b32 %s, %s, 1' % (s(sNeed), s(t1)))
    P('s_add_u32 %s, %s, 1' % (s(sNeed), s(sNeed)))
    P('s_mov_b32 %s, 0x%x' % (s(t0), ZFLAG))
    poll_ge(P, t0, 32, sNeed, 28)
    P('s_add_u32 %s, %s, 1' % (s(sNeed), s(t1)))
    P('s_lshr_b32 %s, %s, 1' % (s(sNeed), s(sNeed)))
    P('s_mov_b32 %s, 0x%x' % (s(t0), ZFLAG + 128))
    poll_ge(P, t0, 32, sNeed, 28)
    P('s_branch %s' % Lgo)
    P.label(Lpf)
    P('s_add_u32 %s, %s, 1' % (s(sNeed), s(sSeg)))
    P('s_mov_b32 %s, 0x%x' % (s(t0), EFLAG))
    poll_ge(P, t0, 32, sNeed, 28)
    P.label(Lgo)
    P('s_mul_i32 %s, %s, 40960' % (s(t0), s(sSeg)))
    P('s_add_u32 %s, %s, %s' % (s(t0), s(t0), s(sSrc)))
    st = stage_issue(vS, t0, sLdsW, 3)
    for x in st[:22]:
        P(x)
    P('s_cmp_lg_u32 %s, 0' % s(sW))
    P('s_cbranch_scc1 %s' % Ln9)
    for x in st[22:]:
        P(x)
    P.label(Ln9)
    P('s_mul_i32 %s, %s, %s' % (s(t0), s(sSeg), s(sStr)))
    P('s_add_u32 %s, %s, %s' % (s(t0), s(t0), s(sDst)))
    P('s_lshr_b32 %s, %s, 1' % (s(t1), s(sStr)))
    P('s_add_u32 %s, %s, %s' % (s(t1), s(t1), s(t0)))
    P('s_waitcnt vmcnt(0)')
    P('s_barrier')
    E = LgkmTrack(P)
    rd = ['ds_read_b128 %s, %s offset:%d' % (v(Bf + 4 * (kk % 8), 4), v(vF + (kk & 7)), (kk >> 3) * 256) for kk in range(40)]
    for kk in range(6):
        E(rd[kk])
    main = ['v_mfma_f32_32x32x16_bf16 %s, %s, %s, %s' % (v(acc, 16), W1(kk), v(Bf + 4 * (kk % 8), 4), '0' if kk == 0 else v(acc, 16)) for kk in range(40)]
    fill = {}
    addfill(fill, 0, rd[6:])
    E.weave(main, fill)
    g = acc + 16
    for r in range(0, 16, 2):
        P(pk('mul', g + r, acc + r, acc + r))
    for r in range(0, 16, 2):
        P('v_pk_fma_f32 %s, %s, %s, v[132:133]' % (v(g + r, 2), v(g + r, 2), s(sPk, 2)))
    for r in range(0, 16, 2):
        P(pk('mul', g + r, g + r, acc + r))
    for r in range(16):
        P('v_exp_f32 %s, %s' % (v(g + r), v(g + r)))
    for r in range(16):
        P('v_add_f32 %s, 1.0, %s' % (v(g + r), v(g + r)))
    for r in range(16):
        P('v_rcp_f32 %s, %s' % (v(g + r), v(g + r)))
    for r in range(0, 16, 2):
        P(pk('mul', g + r, g + r, acc + r))
    for i in range(8):
        P(cvt(pkd + i, g + 2 * i))
    for i in range(2):
        P('ds_write_b128 %s, %s offset:%d' % (v(vUW), v(pkd + 4 * i, 4), 1024 * i))
    P('s_waitcnt lgkmcnt(0)')
    P('s_barrier')
    b5(P, W2, L_U, U, acc, pkd, vTW, vTR, vGO, t0, t1)
    P('s_add_u32 %s, %s, 1' % (s(sIt), s(sIt)))
    signal_wg(P, sFlag, sIt, 28)
    P('s_add_u32 %s, %s, %d' % (s(sSeg), s(sSeg), NCL))
    P('s_cmp_lt_u32 %s, 64' % s(sSeg))
    P('s_cbranch_scc1 %s' % Ltop)


def role_eg(P, isG, sRowI):
    nprod = 14 if isG else 5
    nq = (nprod + 3) // 4
    vSel, vRo, vRoL, vR2 = 4, 2, 3, 8
    Dd, X, Rp, Rq, tt, GB = 12, 32, 52, 62, 72, 80
    sRow, sP, sFlag = sA, sB, sC2
    row_consts(P, vSel, vRo, vR2, 12)
    P('v_lshrrev_b32 v12, 4, %s' % v(vLane))
    P('v_cmp_gt_u32 vcc, %d, v12' % (nprod - 4 * (nq - 1)))
    P('v_mov_b32 v13, 0x7fff0000')
    P('v_cndmask_b32 %s, v13, %s, vcc' % (v(vRoL), v(vRo)))
    if isG:
        load_ptr(P, KA_OUT, S * D * 2, S_OUT)
    P('s_lshl_b32 %s, %s, 2' % (s(sFlag), s(sRowI)))
    P('s_add_u32 %s, %s, 0x%x' % (s(sFlag), s(sFlag), EFLAG))
    P('s_mul_i32 %s, %s, 1280' % (s(sRow), s(sRowI)))
    P('s_mul_i32 %s, %s, %d' % (s(sP), s(sRowI), nprod * 1280))
    P('s_add_u32 %s, %s, 0x%x' % (s(sP), s(sP), FPART if isG else DPART))
    P('s_mov_b32 %s, 0' % s(sSeg))
    Ltop = P.newlabel('EG_top')
    P.label(Ltop)
    P('s_and_b32 %s, %s, %d' % (s(t0), s(sSeg), NCL - 1))
    P('s_lshl_b32 %s, %s, 7' % (s(t0), s(t0)))
    P('s_add_u32 %s, %s, 0x%x' % (s(t0), s(t0), DFLAG + (32 if isG else 0)))
    P('s_lshr_b32 %s, %s, %d' % (s(sNeed), s(sSeg), {1: 0, 2: 1, 4: 2}[NCL]))
    P('s_add_u32 %s, %s, 1' % (s(sNeed), s(sNeed)))
    poll_ge(P, t0, nprod, sNeed, 12, sleep=1)
    P('s_add_u32 %s, %s, 0x%x' % (s(t0), s(sRow), X1 if isG else YB))
    row_load(P, Rp, vR2, ws, t0)
    if isG:
        P('s_add_u32 %s, %s, 0x%x' % (s(t0), s(sRow), HB))
        row_load(P, Rq, vR2, ws, t0)
    gather_sum(P, Dd, GB, vSel, vRo, vRoL, sP, nq, t1)
    add_rounded(P, X, Dd, Rp, GB)
    if isG:
        unpack(P, X, Rp)
        unpack(P, Dd, Rq)
        for i in range(0, 20, 2):
            P(pk('add', X + i, X + i, Dd + i))
        pack(P, Rp, X)
        row_store(P, Rp, vR2, s(S_OUT, 4), sRow, '')
    else:
        P('s_add_u32 %s, %s, 0x%x' % (s(t0), s(sRow), X1))
        row_store(P, Rp, vR2, ws, t0)
        unpack(P, X, Rp)
        layernorm(P, X, tt)
        pack(P, Rq, X)
        P('s_add_u32 %s, %s, 0x%x' % (s(t0), s(sRow), Z2))
        row_store(P, Rq, vR2, ws, t0)
        P('s_waitcnt vmcnt(0)')
        P('s_add_u32 %s, %s, 1' % (s(t0), s(sSeg)))
        put_flag(P, sFlag, t0, 12)
    P('s_add_u32 %s, %s, 40960' % (s(sRow), s(sRow)))
    P('s_add_u32 %s, %s, %d' % (s(sP), s(sP), FPART_S if isG else DPART_S))
    P('s_add_u32 %s, %s, 1' % (s(sSeg), s(sSeg)))
    P('s_cmp_lt_u32 %s, 64' % s(sSeg))
    P('s_cbranch_scc1 %s' % Ltop)


def role_post(P, Ldone):
    Lm, Le, Lg = P.newlabel('post_m'), P.newlabel('post_e'), P.newlabel('post_g')
    P('s_cmp_ge_u32 %s, 4' % s(S_CLS))
    P('s_cbranch_scc1 %s' % Lm)
    role_at(P)
    P('s_branch %s' % Ldone)
    P.label(Lm)
    P('s_sub_u32 s46, %s, 4' % s(S_CLS))
    P('s_cmp_ge_u32 %s, 19' % s(S_IDX))
    P('s_cbranch_scc1 %s' % Le)
    role_df(P, 46, S_IDX)
    P('s_branch %s' % Ldone)
    P.label(Le)
    P('s_cmp_ge_u32 %s, 23' % s(S_IDX))
    P('s_cbranch_scc1 %s' % Lg)
    P('s_cmp_ge_u32 %s, 2' % s(sW))
    P('s_cbranch_scc1 %s' % Ldone)
    P('s_sub_u32 s47, %s, 19' % s(S_IDX))
    P('s_lshl_b32 s46, s46, 2')
    P('s_add_u32 s46, s46, s47')
    P('s_lshl_b32 s46, s46, 1')
    P('s_add_u32 s46, s46, %s' % s(sW))
    role_eg(P, False, 46)
    P('s_branch %s' % Ldone)
    P.label(Lg)
    P('s_cmp_ge_u32 %s, 31' % s(S_IDX))
    P('s_cbranch_scc1 %s' % Ldone)
    P('s_cmp_ge_u32 %s, 1' % s(sW))
    P('s_cbranch_scc1 %s' % Ldone)
    P('s_sub_u32 s47, %s, 23' % s(S_IDX))
    P('s_lshl_b32 s46, s46, 3')
    P('s_add_u32 s46, s46, s47')
    role_eg(P, True, 46)
    P('s_branch %s' % Ldone)


def role_worker(P, Ldone, stop=None):
    base_regs(P)
    flag_offsets(P)
    init_clear(P)
    role_ln0(P)
    role_p(P)
    if stop == 'p':
        P('s_branch %s' % Ldone)
        return
    role_post(P, Ldone)
```

```python
import sys
from asmlib import *
from layout import *
import role_r as R
import role_w as Wk

NAME = 'sequential_preLN__memory_aug_recurrent_mem_tr__mixer_s_mlp__prompt'

def common(P):
    P('s_cmp_ge_u32 s2, 256')
    P('s_cbranch_scc1 L_done')
    P('s_load_dwordx4 s[20:23], s[0:1], %d' % KA_DBG)
    P('s_and_b32 s%d, s2, 7' % R.S_CLS)
    P('s_lshr_b32 s%d, s2, 3' % R.S_IDX)
    P('v_lshrrev_b32 v1, 6, v0')
    P('s_mov_b32 s%d, 0' % R.S_SPIN)
    P('v_readfirstlane_b32 s%d, v1' % R.S_WAVE)
    P('s_waitcnt lgkmcnt(0)')
    R.srd(P, R.S_DBG, 20, 256)
    R.srd(P, R.S_WS, 22, WS_BYTES)

def finish(P):
    P('s_cmp_lt_u32 s%d, %d' % (R.S_SPIN, R.SPIN_LIMIT))
    P('s_cbranch_scc1 L_done')
    P('v_mov_b32 v0, 1')
    P('v_mov_b32 v1, 0')
    P('buffer_atomic_add v0, v1, s[%d:%d], 0 offen offset:%d' % (R.S_DBG, R.S_DBG + 3, DBG_ERR))
    P.label('L_done')
    P('s_endpgm')

def wrap(body, kname, header):
    return header + '''.amdgcn_target "amdgcn-amd-amdhsa--gfx950"
.text
.globl %s
.p2align 8
.type %s,@function
%s:
%s.section .rodata,"a"
.p2align 6
.amdhsa_kernel %s
  .amdhsa_next_free_vgpr 512
  .amdhsa_next_free_sgpr 102
  .amdhsa_accum_offset 256
  .amdhsa_group_segment_fixed_size 0
  .amdhsa_kernarg_size 120
  .amdhsa_user_sgpr_count 2
  .amdhsa_user_sgpr_kernarg_segment_ptr 1
  .amdhsa_system_sgpr_workgroup_id_x 1
  .amdhsa_float_denorm_mode_32 3
.end_amdhsa_kernel
''' % (kname, kname, kname, body, kname)

def build_rtest(diag=True):
    P = Prog()
    common(P)
    P('s_cmp_lt_u32 s%d, 2' % R.S_CLS)
    P('s_cbranch_scc1 L_R')
    R.arrive(P)
    P('s_branch L_done')
    P.label('L_R')
    R.role_r(P, diag)
    finish(P)
    n = P.fix_hazards_timed(verbose='-v' in sys.argv)
    print('instructions', P.ninst(), 'nops inserted', n)
    return wrap(P.text(), NAME + '_kernel', '; @launch grid=(256,1,1) block=(256,1,1) lds=163840\n')

def build_full(diag=0, stop=None):
    P = Prog()
    common(P)
    P('s_cmp_lt_u32 s%d, 2' % R.S_CLS)
    P('s_cbranch_scc1 L_R')
    Wk.role_worker(P, 'L_fin', stop)
    P.label('L_R')
    R.role_r(P, diag)
    P.label('L_fin')
    finish(P)
    n = P.fix_hazards_timed(verbose='-v' in sys.argv)
    print('instructions', P.ninst(), 'nops inserted', n)
    hdr = open('cdna_kernels/%s.s.ref' % NAME).read().split('; Override launch')[0]
    return wrap(P.text(), NAME + '_kernel', hdr + '; @launch grid=(256,1,1) block=(256,1,1) lds=163840\n')

if __name__ == '__main__':
    args = [a for a in sys.argv[1:] if not a.startswith('-')]
    if not args:
        for name, dg in (('rtest', 1), ('rtest_a', 1 | 2 | 4 ), ('rtest_b', 1 | 4 | 8), ('rtest_c', 1 | 8 | 16), ('rtest_d', 1 | 16 | 32), ('rtest_e', 1 | 32 | 64)):
            open('gen/%s.s' % name, 'w').write(build_rtest(dg))
    for a in args:
        name, kv = a.split(':') if ':' in a else (a, '')
        dg = 1
        for x in kv.split(','):
            if not x: continue
            k, val = x.split('=')
            if k == 'diag': dg = int(val)
            else: R.CFG[k] = int(val)
        if name.startswith('full'):
            open('gen/%s.s' % name, 'w').write(build_full(dg))
        else:
            open('gen/%s.s' % name, 'w').write(build_rtest(dg))
```

```python
import re

REG_RE = re.compile(r'^(-?)(abs\()?([vas])(?:(\d+)|\[(\d+):(\d+)\])\)?$')


def regs_of(tok):
    tok = tok.strip()
    m = REG_RE.match(tok)
    if m:
        f = m.group(3)
        if m.group(4) is not None:
            lo = hi = int(m.group(4))
        else:
            lo, hi = int(m.group(5)), int(m.group(6))
        return {(f, i) for i in range(lo, hi + 1)}
    if tok == 'vcc':
        return {('s', 'vcc_lo'), ('s', 'vcc_hi')}
    if tok in ('vcc_lo', 'vcc_hi'):
        return {('s', tok)}
    if tok == 'exec':
        return {('s', 'exec_lo'), ('s', 'exec_hi')}
    if tok in ('exec_lo', 'exec_hi'):
        return {('s', tok)}
    if tok == 'm0':
        return {('s', 'm0')}
    return set()


def v(i, n=1):
    return 'v%d' % i if n == 1 else 'v[%d:%d]' % (i, i + n - 1)


def a(i, n=1):
    return 'a%d' % i if n == 1 else 'a[%d:%d]' % (i, i + n - 1)


def s(i, n=1):
    return 's%d' % i if n == 1 else 's[%d:%d]' % (i, i + n - 1)


TRANS = ('v_exp_f32', 'v_log_f32', 'v_rcp_f32', 'v_rsq_f32', 'v_sqrt_f32', 'v_sin_f32', 'v_cos_f32')
NODST_S = ('s_cmp', 's_waitcnt', 's_barrier', 's_branch', 's_cbranch', 's_nop', 's_setprio', 's_sleep',
           's_endpgm', 's_bitcmp', 's_setpc', 's_sethalt', 's_setreg')


class Inst:
    def __init__(self, text):
        self.text = text
        body = text.split(';')[0].strip()
        parts = body.split(None, 1)
        self.op = parts[0]
        rest = parts[1] if len(parts) > 1 else ''
        toks = [t.strip() for t in re.split(r',(?![^\[]*\])', rest)] if rest else []
        self.mods = ''
        if toks:
            last = toks[-1].split(None, 1)
            toks[-1] = last[0]
            self.mods = last[1] if len(last) > 1 else ''
        self.toks = toks
        self.classify()

    def classify(self):
        op, t = self.op, self.toks
        R = [regs_of(x) for x in t]
        U = lambda xs: set().union(*xs) if xs else set()
        self.kind = 'other'
        self.wr, self.rd = set(), set()
        self.srcA = self.srcB = self.srcC = set()
        self.passes = 0
        self.dpp = ('row_' in self.mods or 'quad_perm' in self.mods or 'wave_' in self.mods or op.endswith('_dpp'))
        self.trans = any(op.startswith(x) for x in TRANS)
        self.wide_store = set()
        if op.startswith('v_mfma'):
            self.kind = 'mfma'
            self.wr = R[0]; self.srcA, self.srcB, self.srcC = R[1], R[2], R[3]
            self.rd = R[1] | R[2] | R[3]
            self.passes = 8 if '32x32' in op else 4
        elif op.startswith('v_smfmac'):
            self.kind = 'mfma'
            self.wr = R[0]; self.srcA, self.srcB, self.srcC = R[1], R[2] | R[3], R[0]
            self.rd = R[0] | R[1] | R[2] | R[3]
            self.passes = 8 if '32x32' in op else 4
        elif op.startswith('v_permlane'):
            self.kind = 'valu'
            self.wr = R[0] | R[1]; self.rd = R[0] | R[1]
        elif op.startswith('v_'):
            self.kind = 'valu'
            if op.startswith('v_nop'):
                pass
            elif op.startswith(('v_add_co', 'v_sub_co', 'v_addc_co', 'v_subb_co', 'v_subrev_co')):
                self.wr = R[0] | R[1]; self.rd = U(R[2:])
            else:
                self.wr = R[0]; self.rd = U(R[1:])
                if op.startswith(('v_fmac', 'v_pk_fmac', 'v_dot2c', 'v_writelane')) or self.dpp or 'dst_sel' in self.mods:
                    self.rd |= R[0]
        elif op.startswith('buffer_') or op.startswith('global_') or op.startswith('flat_'):
            self.kind = 'vmem'
            mods = self.mods.split()
            if op.startswith('buffer_wbl2') or op.startswith('buffer_inv'):
                pass
            elif op.startswith('buffer_load'):
                if 'lds' in mods:
                    self.rd = U(R) | {('s', 'm0')}
                else:
                    self.wr = R[0]; self.rd = U(R[1:])
            elif op.startswith('global_load_lds'):
                self.rd = U(R) | {('s', 'm0')}
            elif op.startswith('global_load'):
                self.wr = R[0]; self.rd = U(R[1:])
            elif op.startswith('buffer_store'):
                self.rd = U(R)
                if 'x4' in op or 'x3' in op:
                    self.wide_store = R[0]
            elif op.startswith('global_store') or op.startswith('flat_store'):
                self.rd = U(R)
                if 'x4' in op or 'x3' in op:
                    self.wide_store = R[1]
            elif op.startswith('buffer_atomic'):
                self.rd = U(R)
                if 'sc0' in mods:
                    self.wr = R[0]
            elif op.startswith('global_atomic'):
                if 'sc0' in mods:
                    self.wr = R[0]; self.rd = U(R[1:])
                else:
                    self.rd = U(R)
            else:
                raise ValueError(op)
        elif op.startswith('ds_'):
            self.kind = 'ds'
            if op.startswith(('ds_read', 'ds_bpermute', 'ds_permute', 'ds_swizzle')) or '_rtn' in op:
                self.wr = R[0]; self.rd = U(R[1:])
            else:
                self.rd = U(R)
        elif op.startswith('s_'):
            self.kind = 'salu'
            if op.startswith(NODST_S):
                self.rd = U(R)
            elif op.startswith('s_load') or op.startswith('s_memtime') or op.startswith('s_memrealtime'):
                self.kind = 'smem'
                self.wr = R[0]; self.rd = U(R[1:])
            elif 'saveexec' in op:
                self.wr = R[0] | regs_of('exec'); self.rd = U(R[1:]) | regs_of('exec')
            else:
                self.wr = R[0]; self.rd = U(R[1:])
                if op.startswith(('s_addk', 's_mulk', 's_cmov', 's_bitset')):
                    self.rd |= R[0]
        else:
            raise ValueError('unknown op ' + op)

    def states(self):
        if self.op == 's_nop':
            return int(self.toks[0], 0) + 1
        return 1


def vec(x):
    return {r for r in x if r[0] in 'va'}


def sca(x):
    return {r for r in x if r[0] == 's'}


def need(p, c):
    n = 0
    if p.kind == 'valu':
        w = vec(p.wr)
        if c.kind == 'mfma' and (w & c.rd):
            n = max(n, 2)
        if c.kind == 'valu':
            if c.dpp and (w & c.rd):
                n = max(n, 2)
            if c.op.startswith('v_permlane') and (w & c.rd):
                n = max(n, 2)
            if c.op.startswith(('v_readlane', 'v_readfirstlane')) and (w & c.rd):
                n = max(n, 1)
            if p.trans and not c.trans and (w & c.rd):
                n = max(n, 1)
            if ('dst_sel' in p.mods or ('op_sel' in p.mods and not p.op.startswith('v_pk_'))) and (w & (c.rd | c.wr)):
                n = max(n, 1)
        sw = sca(p.wr)
        if sw:
            if c.kind in ('valu', 'mfma') and (sw & c.rd):
                n = max(n, 4 if c.op.startswith(('v_readlane', 'v_writelane')) else 2)
            if c.kind == 'vmem' and (sw & c.rd):
                n = max(n, 5)
            if c.kind == 'salu' and (sw & c.rd):
                n = max(n, 1)
    if p.kind == 'mfma':
        D = p.wr
        big = {4: 8, 8: 12}[p.passes]
        if c.kind == 'mfma':
            if D & (c.srcA | c.srcB):
                n = max(n, big)
            if D & c.srcC:
                if not (D == c.srcC and p.passes == c.passes):
                    n = max(n, {4: 6, 8: 10}[p.passes])
            elif D & c.wr and D != c.wr:
                n = max(n, {4: 6, 8: 10}[p.passes])
        elif c.kind in ('valu', 'vmem', 'ds'):
            if D & (c.rd | c.wr):
                n = max(n, big)
        if c.kind == 'valu' and (p.srcC & c.wr):
            n = max(n, {4: 3, 8: 7}[p.passes])
    if p.kind == 'salu' and ('s', 'm0') in p.wr and c.kind == 'vmem' and ('s', 'm0') in c.rd:
        n = max(n, 1)
    if p.wide_store:
        if p.wide_store & c.wr:
            n = max(n, 2 if c.kind in ('valu', 'mfma') else 1)
    return n


class Prog:
    def __init__(self):
        self.items = []
        self.uid = 0

    def __call__(self, text):
        for line in text.split('\n'):
            line = line.strip()
            if not line:
                continue
            if line.startswith(';') or line.startswith('.'):
                self.items.append(('r', line))
            elif line.endswith(':'):
                self.items.append(('l', line[:-1]))
            else:
                self.items.append(('i', Inst(line)))

    def label(self, name):
        self.items.append(('l', name))

    def newlabel(self, base='L'):
        self.uid += 1
        return '%s_%d' % (base, self.uid)

    def raw(self, text):
        self.items.append(('r', text))

    def fix_hazards(self, verbose=False):
        MAXW = 12
        inserted = 0
        changed = True
        while changed:
            changed = False
            items = self.items
            labels = {it[1]: k for k, it in enumerate(items) if it[0] == 'l'}
            jumps = {}
            for k, it in enumerate(items):
                if it[0] == 'i' and (it[1].op.startswith('s_branch') or it[1].op.startswith('s_cbranch')):
                    tgt = it[1].toks[0]
                    if tgt in labels:
                        jumps.setdefault(labels[tgt], []).append(k)

            def preds(k):
                out = []
                stack = [k]
                seen = set()
                while stack:
                    q = stack.pop()
                    j = q - 1
                    while j >= 0:
                        it = items[j]
                        if it[0] == 'l':
                            for b in jumps.get(j, []):
                                if b not in seen:
                                    seen.add(b); out.append(b)
                            j -= 1
                            continue
                        if it[0] == 'r':
                            j -= 1
                            continue
                        if it[1].op in ('s_branch', 's_endpgm') or it[1].op.startswith('s_setpc'):
                            break
                        if j not in seen:
                            seen.add(j); out.append(j)
                        break
                return out

            pc = {}
            for k, it in enumerate(items):
                if it[0] != 'i':
                    continue
                c = it[1]
                if c.kind in ('salu', 'smem') and not c.rd:
                    continue
                short = 0
                stack = [(k, 0)]
                best = {}
                while stack:
                    q, dist = stack.pop()
                    if q not in pc:
                        pc[q] = preds(q)
                    for pj in pc[q]:
                        p = items[pj][1]
                        nd = need(p, c)
                        if nd > dist:
                            short = max(short, nd - dist)
                        d2 = dist + p.states()
                        if d2 < MAXW and best.get(pj, 99) > d2:
                            best[pj] = d2
                            stack.append((pj, d2))
                if short > 0:
                    if verbose:
                        print('nop %d before: %s' % (short, c.text))
                    items.insert(k, ('i', Inst('s_nop %d' % (short - 1))))
                    inserted += 1
                    changed = True
                    break
        return inserted

    def fix_hazards_fast(self, verbose=False):
        MAXW = 12
        items = self.items
        k = 0
        inserted = 0
        while True:
            labels = {it[1]: i for i, it in enumerate(items) if it[0] == 'l'}
            jumps = {}
            for i, it in enumerate(items):
                if it[0] == 'i' and (it[1].op.startswith('s_branch') or it[1].op.startswith('s_cbranch')):
                    tgt = it[1].toks[0]
                    if tgt in labels:
                        jumps.setdefault(labels[tgt], []).append(i)
            new = []
            todo = {}

            def preds(k):
                out = []
                j = k - 1
                while j >= 0:
                    it = items[j]
                    if it[0] == 'l':
                        out.extend(jumps.get(j, []))
                        j -= 1
                        continue
                    if it[0] == 'r':
                        j -= 1
                        continue
                    if it[1].op in ('s_branch', 's_endpgm') or it[1].op.startswith('s_setpc'):
                        break
                    out.append(j)
                    break
                return out
            pc = {}
            for k, it in enumerate(items):
                if it[0] != 'i':
                    continue
                c = it[1]
                short = 0
                stack = [(k, 0)]
                best = {}
                while stack:
                    q, dist = stack.pop()
                    if q not in pc:
                        pc[q] = preds(q)
                    for pj in pc[q]:
                        p = items[pj][1]
                        nd = need(p, c)
                        if nd > dist:
                            short = max(short, nd - dist)
                        d2 = dist + p.states() + todo.get(pj, 0)
                        if d2 < MAXW and best.get(pj, 99) > d2:
                            best[pj] = d2
                            stack.append((pj, d2))
                if short > 0:
                    todo[k] = short
                    if verbose:
                        print('nop %d before: %s' % (short, c.text))
            if not todo:
                break
            for k, it in enumerate(items):
                if k in todo:
                    new.append(('i', Inst('s_nop %d' % (todo[k] - 1))))
                    inserted += 1
                new.append(it)
            self.items = items = new
        return inserted

    def fix_hazards_timed(self, verbose=False):
        items = self.items
        inserted = 0
        while True:
            labels = {it[1]: i for i, it in enumerate(items) if it[0] == 'l'}
            n = len(items)

            def succs(k):
                it = items[k][1]
                out = []
                if it.op.startswith('s_branch') or it.op.startswith('s_cbranch'):
                    j = labels.get(it.toks[0])
                    if j is not None:
                        while j < n and items[j][0] != 'i':
                            j += 1
                        if j < n:
                            out.append(j)
                if it.op in ('s_branch', 's_endpgm') or it.op.startswith('s_setpc'):
                    return out
                j = k + 1
                while j < n and items[j][0] != 'i':
                    j += 1
                if j < n:
                    out.append(j)
                return out
            todo = {}
            sc = {}
            for k, it in enumerate(items):
                if it[0] != 'i':
                    continue
                p = it[1]
                if p.kind in ('salu', 'smem', 'ds') and not (p.kind == 'salu' and ('s', 'm0') in p.wr):
                    continue
                lim = 56
                mf0 = 4 * p.passes if p.kind == 'mfma' else 0
                stack = []
                if k not in sc:
                    sc[k] = succs(k)
                for q in sc[k]:
                    stack.append((q, 4, mf0))
                seen = {}
                while stack:
                    q, tnow, mf = stack.pop()
                    c = items[q][1]
                    tnow += 4 * todo.get(q, 0)
                    if c.kind == 'mfma' and p.kind == 'mfma':
                        tnow = max(tnow, mf)
                    key = (q, tnow, mf)
                    if key in seen:
                        continue
                    seen[key] = 1
                    nd = need(p, c)
                    if nd and tnow < 4 + 4 * nd:
                        add = (4 + 4 * nd - tnow + 3) // 4
                        todo[q] = todo.get(q, 0) + add
                        tnow += 4 * add
                        if verbose:
                            print('nop %d before: %s   <- %s' % (add, c.text, p.text))
                    t2 = tnow + 4 * c.states()
                    mf2 = tnow + 4 * c.passes if (c.kind == 'mfma' and p.kind == 'mfma') else mf
                    if t2 < lim:
                        if q not in sc:
                            sc[q] = succs(q)
                        for r in sc[q]:
                            stack.append((r, t2, mf2))
            if not todo:
                break
            new = []
            for k, it in enumerate(items):
                if k in todo:
                    x = todo[k]
                    while x > 0:
                        new.append(('i', Inst('s_nop %d' % (min(x, 16) - 1))))
                        x -= 16
                    inserted += 1
                new.append(it)
            self.items = items = new
        return inserted

    def align8(self, wrap, wother=0.2, nopcost=None):
        import subprocess, tempfile, os
        def sizes():
            d = tempfile.mkdtemp()
            open(d + '/a.s', 'w').write(wrap(self.text()))
            subprocess.run(['clang', '-x', 'assembler', '-target', 'amdgcn-amd-amdhsa', '-mcpu=gfx950', '-c', d + '/a.s', '-o', d + '/a.o'], check=True)
            out = subprocess.run(['llvm-objdump', '-d', '--mcpu=gfx950', d + '/a.o'], capture_output=True, text=True).stdout
            res = []
            for line in out.split('\n'):
                m = re.search(r'// ([0-9A-F]{12}): ((?:[0-9A-F]{8} ?)+)', line)
                if m:
                    res.append((int(m.group(1), 16), 4 * len(m.group(2).split()), line.strip().split()[0]))
            return res
        lst = sizes()
        k = 0
        info = []
        pad = False
        for idx, it in enumerate(self.items):
            if it[0] == 'r' and it[1].startswith('.p2align'):
                al = 1 << int(it[1].split()[1])
                while lst[k][0] % al:
                    k += 1
                info.append((idx, 'align', 0))
            elif it[0] == 'i':
                info.append((idx, lst[k][1], lst[k][2]))
                k += 1
        INF = 1e18
        cost = [0.0, INF]
        back = []
        for idx, sz, op in info:
            if sz == 'align':
                p = 0 if cost[0] <= cost[1] else 1
                back.append({0: (p, None)})
                cost = [min(cost), INF]
                continue
            I = self.items[idx][1]
            w = 0.75 if I.kind == 'valu' else wother
            prom = sz == 4 and op.endswith('_e32') and not op.startswith(('v_readfirstlane', 'v_permlane', 'v_accvgpr', 'v_nop'))
            nc = [INF, INF]
            b = {}
            for p in (0, 1):
                if cost[p] >= INF:
                    continue
                opts = []
                if sz == 4:
                    opts.append((1 - p, 0.0, None))
                    if prom:
                        opts.append((p, 0.01 + (w if p else 0), 'e64'))
                else:
                    opts.append((p if sz % 8 == 0 else 1 - p, w if p else 0, None))
                    if p and nopcost is not None:
                        opts.append((0 if sz % 8 == 0 else 1, nopcost, 'nop'))
                for q, c, act in opts:
                    if cost[p] + c < nc[q]:
                        nc[q] = cost[p] + c
                        b[q] = (p, act)
            back.append(b)
            cost = nc
        q = 0 if cost[0] <= cost[1] else 1
        acts = {}
        for (idx, sz, op), b in zip(reversed(info), reversed(back)):
            p, act = b[q]
            if act:
                acts[idx] = act
            q = p
        new = []
        n = 0
        for idx, it in enumerate(self.items):
            a_ = acts.get(idx)
            if a_ == 'e64':
                parts = it[1].text.split(None, 1)
                it = ('i', Inst(parts[0] + '_e64 ' + parts[1]))
                n += 1
            elif a_ == 'nop':
                new.append(('i', Inst('s_nop 0')))
                n += 1
            new.append(it)
        self.items = new
        return n

    def text(self):
        out = []
        for kind, x in self.items:
            if kind == 'i':
                out.append('    ' + x.text)
            elif kind == 'l':
                out.append(x + ':')
            else:
                out.append(x)
        return '\n'.join(out) + '\n'

    def ninst(self):
        return sum(1 for it in self.items if it[0] == 'i')
```

```python
S, D, H, DH, M, SEG, NSEG, F = 2048, 640, 32, 128, 8, 32, 64, 1728

KA_X, KA_MEM0, KA_WQ, KA_WK, KA_WV, KA_WO = 0, 8, 16, 24, 32, 40
KA_W1, KA_W2, KA_W3, KA_W4 = 64, 72, 80, 88
KA_OUT, KA_DBG, KA_WS = 96, 104, 112

WS_BYTES = 268435456
PFLAG = 0x0000
KMFLAG = 0x1000
LNFLAG = 0x2000
ATFLAG = 0x2400
ZFLAG = 0x2600
DFLAG = 0x2800
EFLAG = 0x2c00
GDFLAG = 0x2e00
NCL = 3
MEMR = 0x10000
MEML = 0x20000
PART = 0x40000
PART_X = 0x28000
KX = 0x0100000
VX = KX + 0x1000000
QX = VX + 0x1000000
KM = QX + 0x1000000
VM = KM + 0x0800000
ROWS = 0x0290000
XN = VM + 0x0800000 + 2560
ZB = XN + ROWS
Z2 = ZB + ROWS
HB = Z2 + ROWS
YB = HB + ROWS
X1 = YB + ROWS
MEM0S = VM + 0x0800000 + 6 * ROWS
APART = MEM0S + 0x200000
APART_S = 32 * 32 * 1280
DPART = APART + 3 * APART_S
DPART_S = 32 * 5 * 1280
FPART = DPART + 6 * DPART_S
FPART_S = 32 * 14 * 1280
Z2R = FPART + 6 * FPART_S + 2560
END0 = (Z2R + 6 * 40960 + 2560 + 0xffff) & ~0xffff
assert END0 + 0x100000 < WS_BYTES

DBG_ARRIVE, DBG_XCCMASK0, DBG_NEAR, DBG_ERR = 0, 4, 40, 44
```

```python
from asmlib import *
from layout import *

def tt(f):
    return sum((f(a_, b_, c_) & 1) << ((a_ << 2) | (b_ << 1) | c_) for a_ in (0, 1) for b_ in (0, 1) for c_ in (0, 1))
TT_XX = tt(lambda a_, b_, c_: (a_ ^ c_) | (b_ ^ c_))
TT_OM = tt(lambda a_, b_, c_: (a_ | b_) & c_)
TT_XO = tt(lambda a_, b_, c_: (a_ ^ c_) | b_)

S_WS, S_DBG, S_TMP = 8, 12, 16
S_CLS, S_IDX, S_WAVE, S_SPIN = 3, 4, 5, 6
SPIN_LIMIT = 400000
EARLY = 58
sX, sH, sW = S_CLS, S_IDX, S_WAVE
sStep, sTagP, sTagR, sK1P, sK1R, sT16P, sT16R = 20, 21, 22, 23, 24, 25, 26
sPartSt0, sPartSt1, sPartLd, sMemLSt, sMemRSt, sMemLLd, sMemRLd = 27, 28, 29, 30, 31, 32, 33
sKV, sKM, sTch, sFlagOff, sKmFlagOff, sFast, sT0, sT1, sT2, sT3 = 34, 35, 36, 37, 38, 39, 40, 41, 42, 43
sC8 = 44
sEx8 = 46
sExSt = 48
sScale = 50
sVXoff = 51
sChk = 52
sScale2 = 54
sPartSt2 = 53
sSelM = 60
sOdd = 76
sProg = 79
sMemRNx = 56
sStamp = 86

vKx, vVx = 0, 8
vSig, vIdx, vL16, vW1K, vVW, vOWr, vPSt = 16, 18, 19, 20, 21, 22, 23
X_, AV, T_, Y_, Z_, SP = 24, 40, 48, 56, 76, 92
accQ, accK = X_, X_ + 8
vL4 = T_ + 5

L_MEM, L_SX, L_W = 0, 10240, 16384
L_O = 5 * 1024

LDS_PAIRS = [('q', 0), ('k', 1), ('q', 3), ('k', 4), ('v', 2), ('q', 8), ('k', 6), ('k', 9), ('v', 9)]

def weight_regs():
    free = [a(8 * i, 8) for i in range(32)] + [v(96 + 8 * i, 8) for i in range(20)]
    m = {}
    for mat in 'qkv':
        for p in range(10):
            if (mat, p) in LDS_PAIRS:
                continue
            for nt in range(2):
                m[(mat, p, nt)] = free.pop(0)
    for kt2 in range(2):
        for T in range(5):
            m[('o', kt2, T)] = free.pop(0)
    assert not free
    return m
WR = weight_regs()

def sub(reg, off, n):
    f, lo = reg[0], int(reg[2:reg.index(':')])
    return (a if f == 'a' else v)(lo + off, n)


def srd(P, dst, lo, nbytes):
    P('s_mov_b32 %s, %s' % (s(dst), s(lo)))
    P('s_and_b32 %s, %s, 0xffff' % (s(dst + 1), s(lo + 1)))
    P('s_mov_b32 %s, 0x%x' % (s(dst + 2), nbytes))
    P('s_mov_b32 %s, 0x20000' % s(dst + 3))


def r_prologue(P, diag):
    ws = s(S_WS, 4)
    P('; ===== R prologue =====')
    lane, t0, t1, t2, t3 = 92, 93, 94, 95, 91
    P('v_and_b32 %s, 63, v0' % v(lane))
    P('v_lshlrev_b32 %s, 4, %s' % (v(vL16), v(lane)))
    zz = 24
    for i in range(4):
        P('v_mov_b32 %s, 0' % v(zz + i))
    P('s_mul_i32 %s, %s, 0x%x' % (s(sT0), s(sX), PART_X))
    P('s_add_u32 %s, %s, 0x%x' % (s(sT0), s(sT0), PART))
    P('s_lshl_b32 %s, %s, 5' % (s(sT1), s(sW)))
    P('s_add_u32 %s, %s, %s' % (s(sT1), s(sT1), s(sH)))
    P('s_lshl_b32 %s, %s, 11' % (s(sT2), s(sT1)))
    P('s_add_u32 %s, %s, %s' % (s(sPartLd), s(sT0), s(sT2)))
    P('s_lshl_b32 %s, %s, 6' % (s(sT2), s(sH)))
    P('s_add_u32 %s, %s, %s' % (s(sPartSt0), s(sT0), s(sT2)))
    P('s_lshl_b32 %s, %s, 11' % (s(sT2), s(sW)))
    P('s_add_u32 %s, %s, %s' % (s(sPartSt1), s(sPartSt0), s(sT2)))
    P('s_add_u32 %s, %s, 0x%x' % (s(sPartSt1), s(sPartSt1), 64 * 2048))
    Lnoclr = P.newlabel('R_noclr')
    P('s_cmp_ge_u32 %s, 80' % s(sT1))
    P('s_cbranch_scc1 %s' % Lnoclr)
    for i in range(2):
        P('buffer_store_dwordx4 %s, %s, %s, %s offen offset:%d sc1' % (v(zz, 4), v(vL16), ws, s(sPartLd), 1024 * i))
    P.label(Lnoclr)
    P('s_lshr_b32 %s, %s, 4' % (s(sT2), s(sT1)))
    P('s_lshl_b32 %s, %s, 10' % (s(sT2), s(sT2)))
    P('s_bfe_u32 %s, %s, 0x20002' % (s(sT3), s(sT1)))
    P('s_lshl_b32 %s, %s, 5' % (s(sT3), s(sT3)))
    P('s_add_u32 %s, %s, %s' % (s(sT2), s(sT2), s(sT3)))
    P('s_and_b32 %s, %s, 3' % (s(sT3), s(sT1)))
    P('s_lshl_b32 %s, %s, 8' % (s(sT3), s(sT3)))
    P('s_add_u32 %s, %s, %s' % (s(sT2), s(sT2), s(sT3)))
    P('s_lshl_b32 %s, %s, 15' % (s(sT3), s(sX)))
    P('s_add_u32 %s, %s, 0x%x' % (s(sT3), s(sT3), MEML))
    P('s_add_u32 %s, %s, %s' % (s(sMemLSt), s(sT3), s(sT2)))
    P('s_xor_b32 %s, %s, 0x4000' % (s(sMemLLd), s(sT3)))
    P('s_lshl_b32 %s, %s, 15' % (s(sT1), s(sX)))
    P('s_add_u32 %s, %s, %s' % (s(sMemRSt), s(sT1), s(sT2)))
    P('s_add_u32 %s, %s, 0x%x' % (s(sMemRSt), s(sMemRSt), MEMR))
    P('s_xor_b32 %s, %s, 0x8000' % (s(sT1), s(sT1)))
    P('s_add_u32 %s, %s, 0x%x' % (s(sMemRLd), s(sT1), MEMR))
    Lw3 = P.newlabel('R_w3clr')
    P('s_cmp_lg_u32 %s, 3' % s(sW))
    P('s_cbranch_scc1 %s' % Lw3)
    P('s_lshl_b32 %s, %s, 7' % (s(sKmFlagOff), s(sH)))
    P('s_lshl_b32 %s, %s, 2' % (s(sT0), s(sX)))
    P('s_add_u32 %s, %s, %s' % (s(sKmFlagOff), s(sKmFlagOff), s(sT0)))
    P('s_add_u32 %s, %s, 0x%x' % (s(sKmFlagOff), s(sKmFlagOff), KMFLAG))
    P('buffer_store_dword %s, %s, %s, %s offen sc1' % (v(zz), v(zz), ws, s(sKmFlagOff)))
    P('s_cmp_ge_u32 %s, 6' % s(sH))
    P('s_cbranch_scc1 %s' % Lw3)
    P('s_lshl_b32 %s, %s, 15' % (s(sT0), s(sX)))
    P('s_lshl_b32 %s, %s, 13' % (s(sT1), s(sH)))
    P('s_add_u32 %s, %s, %s' % (s(sT0), s(sT0), s(sT1)))
    P('s_add_u32 %s, %s, 0x%x' % (s(sT0), s(sT0), MEMR - 0x2000))
    P('s_cmp_eq_u32 %s, 0' % s(sH))
    P('s_cselect_b32 %s, %s, %s' % (s(sT0), s(sT3), s(sT0)))
    P('s_cmp_eq_u32 %s, 5' % s(sH))
    P('s_cselect_b32 %s, %s, %s' % (s(sT0), s(sMemLLd), s(sT0)))
    P('s_add_u32 %s, %s, 0x1000' % (s(sT1), s(sT0)))
    for i in range(8):
        P('buffer_store_dwordx4 %s, %s, %s, %s offen offset:%d sc1' % (v(zz, 4), v(vL16), ws, s(sT0 if i < 4 else sT1), 1024 * (i & 3)))
    P.label(Lw3)

    P('s_load_dwordx4 s[60:63], s[0:1], %d' % KA_WQ)
    P('s_load_dwordx4 s[64:67], s[0:1], %d' % KA_WV)
    P('s_load_dwordx2 s[68:69], s[0:1], %d' % KA_MEM0)
    vD = 28
    P('v_lshrrev_b32 %s, 4, %s' % (v(t0), v(lane)))
    P('v_and_b32 %s, 15, %s' % (v(t1), v(lane)))
    P('v_and_b32 %s, 1, %s' % (v(t2), v(t0)))
    P('v_lshlrev_b32 %s, 1, %s' % (v(t2), v(t2)))
    P('v_xor_b32 %s, %s, %s' % (v(t1), v(t1), v(t2)))
    P('s_lshl_b32 %s, %s, 4' % (s(sT0), s(sW)))
    P('v_add_u32 %s, %s, %s' % (v(t0), s(sT0), v(t0)))
    for i in range(4):
        sig = ((i & 1) << 1 | ((i >> 1) & 1) << 2) << 1
        P('v_xor_b32 %s, %d, %s' % (v(t2), sig, v(t1)))
        P('v_lshlrev_b32 %s, 4, %s' % (v(t2), v(t2)))
        P('v_add_u32 %s, %d, %s' % (v(t3), 4 * i, v(t0)))
        P('v_lshl_add_u32 %s, %s, 13, %s' % (v(vD + i), v(t3), v(t2)))
    vD2 = 49
    P('v_lshrrev_b32 %s, 4, %s' % (v(t0), v(lane)))
    P('v_and_b32 %s, 15, %s' % (v(t1), v(lane)))
    P('s_and_b32 %s, %s, 1' % (s(sT1), s(sW)))
    P('s_lshl_b32 %s, %s, 2' % (s(sT1), s(sT1)))
    P('v_add_u32 %s, %s, %s' % (v(t2), s(sT1), v(t0)))
    P('v_lshlrev_b32 %s, 1, %s' % (v(t2), v(t2)))
    P('v_xor_b32 %s, %s, %s' % (v(t1), v(t1), v(t2)))
    P('v_lshlrev_b32 %s, 4, %s' % (v(t1), v(t1)))
    P('v_add_u32 %s, %s, %s' % (v(t0), s(sT0), v(t0)))
    for i in range(4):
        P('v_add_u32 %s, %d, %s' % (v(t3), 4 * i, v(t0)))
        P('v_lshl_add_u32 %s, %s, 13, %s' % (v(vD2 + i), v(t3), v(t1)))
    vTR = 32
    gb, r4, cq = 34, 35, 36
    P('v_lshrrev_b32 %s, 4, %s' % (v(gb), v(lane)))
    P('v_bfe_u32 %s, %s, 2, 2' % (v(r4), v(lane)))
    P('v_and_b32 %s, 3, %s' % (v(cq), v(lane)))
    P('v_lshrrev_b32 %s, 1, %s' % (v(t0), v(gb)))
    P('v_lshlrev_b32 %s, 4, %s' % (v(t0), v(t0)))
    P('v_and_b32 %s, 1, %s' % (v(t1), v(gb)))
    P('v_lshl_add_u32 %s, %s, 2, %s' % (v(t0), v(t1), v(t0)))
    P('v_and_b32 %s, 1, %s' % (v(t2), v(r4)))
    P('v_add_u32 %s, %s, %s' % (v(t0), v(t0), v(t2)))
    P('v_lshrrev_b32 %s, 1, %s' % (v(t3), v(r4)))
    P('v_lshl_add_u32 %s, %s, 3, %s' % (v(t0), v(t3), v(t0)))
    P('v_lshl_add_u32 %s, %s, 1, %s' % (v(t2), v(t1), v(t2)))
    P('v_lshl_add_u32 %s, %s, 2, %s' % (v(t2), v(t3), v(t2)))
    P('s_lshl_b32 %s, %s, 1' % (s(sT0), s(sW)))
    P('v_xor_b32 %s, %s, %s' % (v(t2), s(sT0), v(t2)))
    P('v_lshlrev_b32 %s, 5, %s' % (v(t2), v(t2)))
    P('v_lshl_add_u32 %s, %s, 8, %s' % (v(t2), v(t0), v(t2)))
    P('v_lshl_add_u32 %s, %s, 3, %s' % (v(vTR), v(cq), v(t2)))
    P('v_xor_b32 %s, 32, %s' % (v(vTR + 1), v(vTR)))
    vTR2 = 54
    P('v_and_b32 %s, 1, %s' % (v(t0), v(gb)))
    P('v_lshrrev_b32 %s, 1, %s' % (v(t1), v(r4)))
    P('v_lshl_add_u32 %s, %s, 1, %s' % (v(t0), v(t1), v(t0)))
    P('v_and_b32 %s, 1, %s' % (v(t1), v(r4)))
    P('v_lshl_add_u32 %s, %s, 2, %s' % (v(t2), v(t1), v(t0)))
    P('v_lshl_add_u32 %s, %s, 4, %s' % (v(t0), v(t1), v(t0)))
    P('v_lshrrev_b32 %s, 1, %s' % (v(t1), v(gb)))
    P('v_lshl_add_u32 %s, %s, 2, %s' % (v(t0), v(t1), v(t0)))
    P('v_xor_b32 %s, %s, %s' % (v(t2), s(sT0), v(t2)))
    P('v_lshlrev_b32 %s, 5, %s' % (v(t2), v(t2)))
    P('v_lshl_add_u32 %s, %s, 8, %s' % (v(t2), v(t0), v(t2)))
    P('v_lshl_add_u32 %s, %s, 3, %s' % (v(vTR2), v(cq), v(t2)))
    P('v_xor_b32 %s, 32, %s' % (v(vTR2 + 1), v(vTR2)))
    vOR, vOC = 37, 42
    P('s_mov_b32 %s, 0xcccd' % s(sT0))
    for i in range(5):
        P('v_add_u32 %s, %d, %s' % (v(t0), 64 * i, v(lane)))
        P('v_mul_lo_u32 %s, %s, %s' % (v(t1), v(t0), s(sT0)))
        P('v_lshrrev_b32 %s, 21, %s' % (v(t1), v(t1)))
        P('v_mul_u32_u24 %s, 40, %s' % (v(t2), v(t1)))
        P('v_sub_u32 %s, %s, %s' % (v(t2), v(t0), v(t2)))
        P('v_lshlrev_b32 %s, 4, %s' % (v(vOC + i), v(t2)))
        P('v_mul_u32_u24 %s, 1280, %s' % (v(vOR + i), v(t1)))
    P('s_waitcnt lgkmcnt(0)')
    reg_items = [(m_, p) for m_ in 'qkv' for p in range(10) if (m_, p) not in LDS_PAIRS]
    items = reg_items + LDS_PAIRS
    assert len(items) == 30 and len(reg_items) == 21
    slot_of = lambda j: j % 10
    tmp = s(S_TMP, 4)
    ptr = {'q': 60, 'k': 62, 'v': 64}
    sHB, sXK = 70, 71
    P('s_lshl_b32 %s, %s, 8' % (s(sHB), s(sH)))
    P('s_mul_i32 %s, %s, 5' % (s(sXK), s(sX)))
    P('s_lshl_b32 s72, %s, 12' % s(sW))
    vM0 = 76
    srd(P, S_TMP, 68, 8 * 640 * 2)
    P('v_and_b32 %s, 7, %s' % (v(t0), v(lane)))
    P('v_mul_u32_u24 %s, 1280, %s' % (v(t0), v(t0)))
    P('v_lshrrev_b32 %s, 3, %s' % (v(t1), v(lane)))
    P('v_lshl_add_u32 %s, %s, 2, %s' % (v(t0), v(t1), v(t0)))
    P('s_lshl_b32 %s, %s, 10' % (s(sT3), s(sW)))
    P('v_add_u32 %s, %s, %s' % (v(vW1K), s(sT3), v(vL16)))
    P('v_lshrrev_b32 %s, 2, %s' % (v(vL4), v(vW1K)))
    P('v_bfe_u32 %s, %s, 2, 3' % (v(t1), v(lane)))
    P('v_mul_u32_u24 %s, 1280, %s' % (v(t1), v(t1)))
    P('v_lshrrev_b32 %s, 5, %s' % (v(t2), v(lane)))
    P('v_lshl_add_u32 %s, %s, 4, %s' % (v(t1), v(t2), v(t1)))
    P('v_and_b32 %s, 3, %s' % (v(t2), v(lane)))
    P('v_lshl_add_u32 %s, %s, 2, %s' % (v(t1), v(t2), v(t1)))
    P('s_mul_i32 %s, %s, 640' % (s(sT0), s(sX)))
    P('s_sub_u32 %s, 640, %s' % (s(sT1), s(sT0)))
    P('s_mul_i32 %s, %s, 160' % (s(sT2), s(sW)))
    P('s_add_u32 %s, %s, %s' % (s(sT0), s(sT0), s(sT2)))
    P('s_add_u32 %s, %s, %s' % (s(sT1), s(sT1), s(sT2)))
    for d, so in ((0, sT0), (8, sT1)):
        for e in range(8):
            P('buffer_load_ushort %s, %s, %s, %s offen offset:%d' % (v(d + e), v(t0), tmp, s(so), 32 * (e & 3) + 2 * (e >> 2)))
    P('buffer_load_dword %s, %s, %s, %s offen offset:128' % (v(vM0 + 4), v(t1), tmp, s(sT0)))
    P('buffer_load_dword %s, %s, %s, %s offen offset:128' % (v(vM0 + 5), v(t1), tmp, s(sT1)))
    srd(P, S_TMP, 66, 32 * 128 * 640 * 2)
    P('s_mul_i32 %s, %s, %d' % (s(sT0), s(sH), 128 * 1280))
    P('s_mul_i32 %s, %s, %d' % (s(sT1), s(sW), 32 * 1280))
    P('s_add_u32 %s, %s, %s' % (s(sT0), s(sT0), s(sT1)))
    P('s_mul_i32 %s, %s, 640' % (s(sT1), s(sX)))
    P('s_add_u32 %s, %s, %s' % (s(sT0), s(sT0), s(sT1)))
    P('s_mul_i32 %s, %s, %d' % (s(sT1), s(sW), 32 * 640))
    P('s_add_u32 %s, %s, %d' % (s(sT1), s(sT1), 5 * 16384))
    for grp in range(4):
        P('s_lshl_b32 %s, %s, 1' % (s(sT2), s(sW)))
        P('s_add_u32 %s, %s, %d' % (s(sT2), s(sT2), grp >> 1))
        P('s_and_b32 %s, %s, 3' % (s(sT2), s(sT2)))
        P('s_lshl_b32 %s, %s, 5' % (s(sT2), s(sT2)))
        for i in range(5):
            P('v_xor_b32 %s, %s, %s' % (v(t0), s(sT2), v(vOC + i)))
            P('v_add_u32 %s, %s, %s' % (v(t0), v(t0), v(vOR + i)))
            P('s_mov_b32 m0, %s' % s(sT1))
            P('s_add_u32 %s, %s, 1024' % (s(sT1), s(sT1)))
            P('buffer_load_dwordx4 %s, %s, %s offen lds' % (v(t0), tmp, s(sT0)))
        P('s_add_u32 %s, %s, %d' % (s(sT0), s(sT0), 8 * 1280))
    cur = [None]

    def issue_item(j):
        mat, p = items[j]
        if cur[0] != mat:
            srd(P, S_TMP, ptr[mat], 640 * 8192)
            cur[0] = mat
        kt = p % 5
        P('s_add_u32 %s, %s, %d' % (s(sT0), s(73 if p < 5 else 74), (80 * kt if kt < 4 else 64) << 13))
        if kt == 4:
            P('s_lshl_b32 %s, %s, 19' % (s(sT1), s(sW)))
            P('s_add_u32 %s, %s, %s' % (s(sT0), s(sT0), s(sT1)))
        for i in range(4):
            P('s_add_u32 m0, s72, %d' % (slot_of(j) * 16384 + i * 1024))
            P('s_nop 0')
            P('buffer_load_dwordx4 %s, %s, %s offen lds' % (v((vD if kt == 4 else vD2) + i), tmp, s(sT0)))
    P('s_mul_i32 s73, %s, %d' % (s(sX), 320 << 13))
    P('s_sub_u32 s74, %d, s73' % (320 << 13))
    P('s_add_u32 s73, s73, %s' % s(sHB))
    P('s_add_u32 s74, s74, %s' % s(sHB))
    for j in range(5):
        issue_item(j)
    P('s_waitcnt vmcnt(40)')
    P('s_barrier')
    arrive(P)
    for d, src in ((vM0, 0), (vM0 + 8, 8)):
        for q in range(4):
            P('v_lshl_or_b32 %s, %s, 16, %s' % (v(d + q), v(src + 2 * q + 1), v(src + 2 * q)))
    P('v_add_u32 %s, 4, %s' % (v(vL4), v(vL4)))
    P('s_lshl_b32 s75, s2, 13')
    P('s_add_u32 s75, s75, 0x%x' % MEM0S)
    P('buffer_store_dwordx4 %s, %s, %s, s75 offen sc1' % (v(vM0 + 8, 4), v(vW1K), ws))
    P('buffer_store_dword %s, %s, %s, s75 offen offset:4092 sc1' % (v(vM0 + 5), v(vL4), ws))
    P('s_waitcnt vmcnt(20)')
    P('s_barrier')
    P('v_lshrrev_b32 %s, 1, %s' % (v(t0), v(r4)))
    P('v_and_b32 %s, 1, %s' % (v(t1), v(gb)))
    P('v_lshl_add_u32 %s, %s, 1, %s' % (v(t3), v(t0), v(t1)))
    P('v_lshlrev_b32 %s, 4, %s' % (v(t0), v(t3)))
    P('v_lshrrev_b32 %s, 1, %s' % (v(t1), v(gb)))
    P('v_lshl_add_u32 %s, %s, 2, %s' % (v(t0), v(t1), v(t0)))
    P('v_and_b32 %s, 1, %s' % (v(t1), v(r4)))
    P('v_add_u32 %s, %s, %s' % (v(t0), v(t0), v(t1)))
    P('v_mul_u32_u24 %s, 640, %s' % (v(t0), v(t0)))
    P('v_lshl_add_u32 %s, %s, 3, %s' % (v(t0), v(cq), v(t0)))
    P('v_add_u32 %s, %d, %s' % (v(t0), 5 * 16384, v(t0)))
    P('s_mul_i32 %s, %s, 5' % (s(sT0), s(sW)))
    for T in range(5):
        P('s_add_u32 %s, %s, %d' % (s(sT1), s(sT0), T))
        P('v_xor_b32 %s, %s, %s' % (v(t1), s(sT1), v(t3)))
        P('v_lshl_add_u32 %s, %s, 5, %s' % (v(t1), v(t1), v(t0)))
        for kt2 in range(2):
            for j in range(4):
                off = (64 * kt2 + 8 * (j >> 1) + 2 * (j & 1)) * 640
                P('ds_read_b64_tr_b16 %s, %s offset:%d' % (sub(WR[('o', kt2, T)], 2 * j, 2), v(t1), off))
        P('s_waitcnt lgkmcnt(0)')
    P('s_barrier')
    for j in range(5, 10):
        issue_item(j)
    P('s_lshl_b32 %s, %s, 2' % (s(sT0), s(sH)))
    P('s_add_u32 %s, %s, %s' % (s(sT0), s(sT0), s(sW)))
    P('s_lshl_b32 %s, %s, 11' % (s(sKV), s(sT0)))
    P('s_add_u32 %s, %s, 0x%x' % (s(sKV), s(sKV), KX))
    P('s_lshl_b32 %s, %s, 10' % (s(sKM), s(sT0)))
    P('s_mul_i32 %s, %s, 0x%x' % (s(sT1), s(sX), VM - KM))
    P('s_add_u32 %s, %s, %s' % (s(sKM), s(sKM), s(sT1)))
    P('s_add_u32 %s, %s, 0x%x' % (s(sKM), s(sKM), KM))
    P('s_lshl_b32 %s, %s, 13' % (s(sTch), s(sH)))
    P('s_add_u32 %s, %s, 0x%x' % (s(sTch), s(sTch), KX + 0x80000))
    P('s_lshl_b32 %s, %s, 7' % (s(sFlagOff), s(sH)))
    P('s_add_u32 %s, %s, 0x%x' % (s(sFlagOff), s(sFlagOff), PFLAG + 8))
    P('s_add_u32 %s, %s, 0x%x' % (s(sVXoff), s(sKV), VX - KX))

    def first_loads():
        P('v_lshlrev_b32 v6, 3, %s' % v(vL16))
        for back in (0x80000, 0x40000):
            P('s_sub_u32 %s, %s, 0x%x' % (s(sT0), s(sTch), back))
            P('s_add_u32 %s, %s, 0x%x' % (s(sT1), s(sT0), VX - KX))
            P('buffer_load_dword v5, v6, %s, %s offen sc1' % (ws, s(sT0)))
            P('buffer_load_dword v5, v6, %s, %s offen sc1' % (ws, s(sT1)))
        for t in range(2):
            P('buffer_load_dwordx4 %s, %s, %s, %s offen offset:%d sc1' % (v(vVx + 4 * t, 4), v(vL16), ws, s(sVXoff), 1024 * t))
    vA = 47
    for j in range(30):
        last_issued = min(29, 9 if j == 0 else j + 8)
        P('s_waitcnt vmcnt(%d)' % (4 * (last_issued - j) + (8 if j > 20 else 0)))
        P('s_barrier')
        if j >= 1 and j + 9 <= 29:
            issue_item(j + 9)
        if j == 20:
            P('v_lshrrev_b32 v7, 2, %s' % v(vL16))
            P('v_mov_b32 v6, 0')
            P('buffer_load_dword v4, v7, %s, 0 offen sc1' % s(S_DBG, 4))
            P('buffer_load_dwordx4 v[0:3], v6, %s, %s offen sc1' % (ws, s(sFlagOff)))
            first_loads()
        mat, p = items[j]
        for nt in range(2):
            P('v_add_u32 %s, %d, %s' % (v(vA + nt), slot_of(j) * 16384, v((vTR if p % 5 == 4 else vTR2) + nt)))
        for nt in range(2):
            dst = WR[(mat, p, nt)] if j < 21 else v(56 + 8 * nt, 8)
            for q in range(4):
                off = (q & 1) * 512 + (q >> 1) * 8192 if p % 5 == 4 else (q & 1) * 8192 + (q >> 1) * 2048
                P('ds_read_b64_tr_b16 %s, %s offset:%d' % (sub(dst, 2 * q, 2), v(vA + nt), off))
        P('s_waitcnt lgkmcnt(0)')
        if j >= 21:
            P('s_barrier')
            P('s_add_u32 %s, s72, %d' % (s(sT0), slot_of(j) * 16384))
            P('v_add_u32 %s, %s, %s' % (v(vA), s(sT0), v(vL16)))
            for q in range(4):
                P('ds_write_b128 %s, %s offset:%d' % (v(vA), v(56 + 4 * q, 4), 1024 * q))
            P('s_waitcnt lgkmcnt(0)')
    P('ds_write_b128 %s, %s' % (v(vW1K), v(vM0, 4)))
    P('ds_write_b32 %s, %s offset:4092' % (v(vL4), v(vM0 + 4)))
    P('v_and_b32 %s, 7, %s' % (v(t0), v(lane)))
    P('v_bfe_u32 %s, %s, 4, 1' % (v(t1), v(lane)))
    P('v_lshlrev_b32 %s, 2, %s' % (v(t1), v(t1)))
    P('v_sub_u32 %s, %s, %s' % (v(t0), v(t0), v(t1)))
    P('v_mov_b32 %s, 0x3f80' % v(t1))
    P('v_mov_b32 %s, 0x3f800000' % v(t2))
    for i in range(2):
        P('v_cmp_eq_u32 vcc, %d, %s' % (2 * i, v(t0)))
        P('v_cndmask_b32 %s, 0, %s, vcc' % (v(vSig + i), v(t1)))
        P('v_cmp_eq_u32 vcc, %d, %s' % (2 * i + 1, v(t0)))
        P('v_cndmask_b32 %s, %s, %s, vcc' % (v(vSig + i), v(vSig + i), v(t2)))
    P('s_mov_b32 %s, 0xff00ff00' % s(sC8))
    P('s_mov_b32 %s, 0xff00ff00' % s(sC8 + 1))
    P('s_mov_b32 %s, 0x00ff00ff' % s(sEx8))
    P('s_mov_b32 %s, 0x00ff00ff' % s(sEx8 + 1))
    P('s_mov_b32 %s, 0x00330033' % s(sExSt))
    P('s_mov_b32 %s, 0x00330033' % s(sExSt + 1))
    P('v_mov_b32 %s, 0x4444' % v(t0))
    P('v_mov_b32 %s, 0xeeee' % v(t1))
    P('v_cndmask_b32 %s, %s, %s, %s' % (v(vIdx), v(t0), v(t1), s(sC8, 2)))
    P('s_mov_b32 %s, 0xcccccccc' % s(sT0))
    P('s_mov_b32 %s, 0xcccccccc' % s(sT1))
    P('v_cndmask_b32 %s, %s, %s, %s' % (v(t0), v(t0), v(t1), s(sT0, 2)))
    P('v_lshl_add_u32 %s, %s, 16, %s' % (v(vIdx), v(t0), v(vIdx)))
    P('s_add_u32 %s, s72, %d' % (s(sT0), L_W))
    P('v_add_u32 %s, %s, %s' % (v(vVW), s(sT0), v(vL16)))
    P('s_lshr_b32 %s, %s, 1' % (s(sT0), s(sW)))
    P('s_lshl_b32 %s, %s, 10' % (s(sT0), s(sT0)))
    P('s_and_b32 %s, %s, 1' % (s(sT1), s(sW)))
    P('s_lshl_b32 %s, %s, 5' % (s(sT1), s(sT1)))
    P('s_add_u32 %s, %s, %s' % (s(sT0), s(sT0), s(sT1)))
    P('s_add_u32 %s, %s, %d' % (s(sT0), s(sT0), L_O))
    P('v_and_b32 %s, 0x60, %s' % (v(t0), v(vL16)))
    P('v_and_b32 %s, 0x310, %s' % (v(t1), v(vL16)))
    P('v_lshl_add_u32 %s, %s, 1, %s' % (v(t0), v(t0), v(t1)))
    P('v_add_u32 %s, %s, %s' % (v(vOWr), s(sT0), v(t0)))
    P('v_lshrrev_b32 %s, 2, %s' % (v(t0), v(lane)))
    P('s_lshl_b32 %s, %s, 4' % (s(sT0), s(sW)))
    P('v_add_u32 %s, %s, %s' % (v(t0), s(sT0), v(t0)))
    P('v_and_b32 %s, 0x30, %s' % (v(t1), v(vL16)))
    P('v_lshl_add_u32 %s, %s, 11, %s' % (v(vPSt), v(t0), v(t1)))
    for q in range(4):
        P('s_mov_b32 %s, 0x%08x' % (s(sSelM + 2 * q), 0x03030303 << (2 * q)))
        P('s_mov_b32 %s, 0x%08x' % (s(sSelM + 2 * q + 1), 0x03030303 << (2 * q)))
    P('s_mov_b32 %s, 0xaaaaaaaa' % s(sOdd))
    P('s_mov_b32 %s, 0xaaaaaaaa' % s(sOdd + 1))
    P('s_mov_b32 %s, 0x%08x' % (s(sScale), 0x3e0293ee))
    P('s_mov_b32 %s, 0' % s(sStep))
    P('s_mov_b32 %s, 0' % s(sTagP))
    P('s_mov_b32 m0, 14336')
    P('s_mov_b32 %s, 0' % s(sTagR))
    P('s_mov_b32 %s, 0' % s(sChk))
    P('s_mov_b32 %s, %s' % (s(sScale2), s(sScale)))
    P('s_mov_b32 %s, %s' % (s(sScale2 + 1), s(sScale)))
    dbg = s(S_DBG, 4)
    Lslow, Lgo = P.newlabel('R_slow'), P.newlabel('R_go')
    P('s_waitcnt vmcnt(0)')
    P('v_and_b32 v5, 63, v4')
    P('v_cmp_eq_u32 vcc, 32, v5')
    P('v_min_u32 v0, v0, v2')
    P('v_min3_u32 v0, v0, v1, v3')
    P('v_lshlrev_b32 v0, 1, v0')
    P('s_and_b32 %s, vcc_lo, 0x1fe' % s(sT0))
    P('v_readfirstlane_b32 %s, v0' % s(sProg))
    P('s_cmp_lg_u32 %s, 0x1fe' % s(sT0))
    P('s_cbranch_scc1 %s' % Lslow)
    P('s_cmp_gt_u32 %s, 2' % s(sProg))
    P('s_cbranch_scc1 %s' % Lgo)
    P.label(Lslow)
    wait_all(P)
    P('s_mov_b32 %s, 0' % s(sProg))
    flag_poll(P, 2, first=True)
    P('buffer_load_dword v4, v7, %s, 0 offen sc1' % dbg)
    first_loads()
    P('s_waitcnt vmcnt(0)')
    P.label(Lgo)
    P('s_add_u32 %s, %s, 1' % (s(sT0), s(sX)))
    P('v_readlane_b32 %s, v4, %s' % (s(sT0), s(sT0)))
    P('v_readlane_b32 %s, v4, %d' % (s(sT2), DBG_NEAR // 4))
    mode_from_word(P, sFast, sT0, sT1)
    P('v_readlane_b32 %s, v4, 1' % s(sT3))
    P('s_xor_b32 %s, %s, %s' % (s(sT2), s(sT2), s(sT3)))
    P('s_and_b32 %s, %s, 0x2000' % (s(sT2), s(sT2)))
    P('s_add_u32 %s, %s, %s' % (s(sMemRSt), s(sMemRSt), s(sT2)))
    P('s_add_u32 %s, %s, %s' % (s(sMemRNx), s(sMemRLd), s(sT2)))
    P('s_mov_b32 %s, s75' % s(sMemRLd))
    for i in range(4):
        P('v_mov_b32 %s, %s' % (v(T_ + i), v(vM0 + 8 + i)))
    P('v_mov_b32 %s, %s' % (v(T_ + 4), v(vM0 + 5)))
    P('v_lshrrev_b32 %s, 2, %s' % (v(vL4), v(vW1K)))
    P('v_add_u32 %s, 4, %s' % (v(vL4), v(vL4)))
    for i in range(24):
        P('v_mov_b32 %s, 0' % v(X_ + i))
    for i in range(4):
        P('v_mov_b32 %s, 0' % v(SP + i))
    for x in land(0):
        P(x)
    P('s_waitcnt vmcnt(0) lgkmcnt(0)')
    P('s_barrier')


def arrive(P):
    L = P.newlabel('arr')
    dbg = s(S_DBG, 4)
    P('s_cmp_lg_u32 %s, 3' % s(S_WAVE))
    P('s_cbranch_scc1 %s' % L)
    P('s_mov_b64 exec, 1')
    P('v_mov_b32 v89, 0')
    calibrate(P)
    P('s_getreg_b32 s7, hwreg(HW_REG_XCC_ID)')
    P('s_and_b32 s7, s7, 15')
    P('v_mov_b32 v88, s7')
    P('v_mul_u32_u24 v88, s7, v88')
    P('v_lshlrev_b32 v88, 15, v88')
    P('s_lshl_b32 s7, s7, 6')
    P('v_add3_u32 v88, v88, s7, 1')
    P('s_lshl_b32 s7, %s, 2' % s(S_CLS))
    P('buffer_atomic_add v88, v89, %s, s7 offen offset:%d' % (dbg, DBG_XCCMASK0))
    P('s_mov_b64 exec, -1')
    P.label(L)


def read_mode(P, vt, sfast, sa, sb):
    P('v_mov_b32 %s, 0' % v(vt))
    P('s_lshl_b32 %s, %s, 2' % (s(sa), s(S_CLS)))
    P('buffer_load_dword %s, %s, %s, %s offen offset:%d sc1' % (v(vt + 1), v(vt), s(S_DBG, 4), s(sa), DBG_XCCMASK0))
    P('s_waitcnt vmcnt(0)')
    P('v_readfirstlane_b32 %s, %s' % (s(sa), v(vt + 1)))
    mode_from_word(P, sfast, sa, sb)


def mode_from_word(P, sfast, sa, sb):
    P('s_bfe_u32 %s, %s, 0x90006' % (s(sb), s(sa)))
    P('s_mul_i32 %s, %s, %s' % (s(sb), s(sb), s(sb)))
    P('s_lshr_b32 %s, %s, 15' % (s(sa), s(sa)))
    P('s_lshl_b32 %s, %s, 5' % (s(sa), s(sa)))
    P('s_cmp_eq_u32 %s, %s' % (s(sa), s(sb)))
    P('s_cselect_b32 %s, 1, 0' % s(sfast))


def calibrate(P):
    L = P.newlabel('cal')
    ws = s(S_WS, 4)
    P('s_cmp_lg_u32 s2, 7')
    P('s_cbranch_scc1 %s' % L)
    P('s_waitcnt vmcnt(0)')
    P('s_mov_b32 s80, -1')
    P('s_mov_b32 s81, -1')
    P('s_mov_b32 s86, 0x%x' % (MEMR + 0x1c00))
    P('s_mov_b32 s87, 0x%x' % (MEMR + 0x3c00))
    for it in range(6):
        for hf in range(2):
            P('s_memtime s[82:83]')
            P('s_waitcnt lgkmcnt(0)')
            P('buffer_store_dword v89, v89, %s, s%d offen sc1' % (ws, 86 + hf))
            P('s_waitcnt vmcnt(0)')
            P('s_memtime s[84:85]')
            P('s_waitcnt lgkmcnt(0)')
            P('s_sub_u32 s84, s84, s82')
            P('s_min_u32 s%d, s%d, s84' % (80 + hf, 80 + hf))
    P('s_cmp_lt_u32 s81, s80')
    P('s_cselect_b32 s84, 0x2000, 0')
    P('s_getreg_b32 s85, hwreg(HW_REG_XCC_ID)')
    P('s_lshl_b32 s85, s85, 11')
    P('s_xor_b32 s84, s84, s85')
    P('v_mov_b32 v88, s84')
    P('buffer_store_dword v88, v89, %s, 0 offen offset:%d sc1' % (s(S_DBG, 4), DBG_NEAR))
    P('v_mov_b32 v88, s80')
    P('buffer_store_dword v88, v89, %s, 0 offen offset:%d sc1' % (s(S_DBG, 4), 48))
    P('v_mov_b32 v88, s81')
    P('buffer_store_dword v88, v89, %s, 0 offen offset:%d sc1' % (s(S_DBG, 4), 52))
    P('s_waitcnt vmcnt(0)')
    P.label(L)


def spin_retry(P, Lpoll, Lok):
    P('s_add_u32 %s, %s, 1' % (s(S_SPIN), s(S_SPIN)))
    P('s_cmp_lt_u32 %s, %d' % (s(S_SPIN), SPIN_LIMIT))
    P('s_cbranch_scc1 %s' % Lpoll)
    P('s_branch %s' % Lok)


def wait_all(P):
    Lp, Lok = P.newlabel('wa'), P.newlabel('waok')
    P('v_mbcnt_lo_u32_b32 v89, -1, 0')
    P('v_and_b32 v89, 7, v89')
    P('v_lshlrev_b32 v89, 2, v89')
    P.label(Lp)
    P('buffer_load_dword v88, v89, %s, 0 offen offset:%d sc1' % (s(S_DBG, 4), DBG_XCCMASK0))
    P('s_waitcnt vmcnt(0)')
    P('v_and_b32 v88, 63, v88')
    P('v_cmp_ne_u32 vcc, 32, v88')
    P('s_cbranch_vccz %s' % Lok)
    P('s_sleep 2')
    spin_retry(P, Lp, Lok)
    P.label(Lok)


def flag_poll(P, ahead, first=False):
    Lp, Lok = P.newlabel('fp'), P.newlabel('fpok')
    f = T_
    P('s_add_u32 %s, %s, %d' % (s(sT0), s(sStep), ahead))
    P('s_min_u32 %s, %s, 63' % (s(sT0), s(sT0)))
    P.label(Lp)
    P('s_cmp_lt_u32 %s, %s' % (s(sT0), s(sProg)))
    P('s_cbranch_scc1 %s' % Lok)
    P('v_mov_b32 %s, 0' % v(f + 4))
    P('buffer_load_dwordx4 %s, %s, %s, %s offen sc1' % (v(f, 4), v(f + 4), s(S_WS, 4), s(sFlagOff)))
    P('s_waitcnt vmcnt(0)')
    P('v_min_u32 %s, %s, %s' % (v(f), v(f), v(f + 2)))
    P('v_min3_u32 %s, %s, %s, %s' % (v(f), v(f), v(f + 1), v(f + 3)))
    P('v_lshlrev_b32 %s, 1, %s' % (v(f), v(f)))
    P('v_readfirstlane_b32 %s, %s' % (s(sProg), v(f)))
    spin_retry(P, Lp, Lok)
    P.label(Lok)


def land(k):
    return ['ds_read_b128 %s, %s offset:%d' % (v(Z_ + 8 * nt + 4 * q, 4), v(vVW), (k & 3) * 16384 + nt * 2048 + q * 1024)
            for nt in range(2) for q in range(2)]


def W(mat, p, nt):
    return v(Z_ + 8 * nt, 8) if (mat, p) in LDS_PAIRS else WR[(mat, p, nt)]


def smf(acc, A, B):
    return 'v_smfmac_f32_16x16x64_bf16 %s, %s, %s, %s' % (v(acc, 4), v(A, 4), B, v(vIdx))


def cvt(d, a_):
    return 'v_cvt_pk_bf16_f32 %s, %s, %s' % (v(d), v(a_), v(a_ + 1))


def pk(op, d, a_, b_):
    return 'v_pk_%s_f32 %s, %s, %s' % (op, v(d, 2), v(a_, 2), v(b_, 2))


def chk5(t, stag, mask, d=T_):
    return ['v_bitop3_b32 %s, %s, %s, %s bitop3:0x%x' % (v(t), v(d), v(d + 1), s(stag), TT_XX),
            'v_bitop3_b32 %s, %s, %s, %s bitop3:0x%x' % (v(t + 1), v(d + 2), v(d + 3), s(stag), TT_XX),
            'v_bitop3_b32 %s, %s, %s, %s bitop3:0x%x' % (v(t), v(d + 4), v(t), s(stag), TT_XO),
            'v_bitop3_b32 %s, %s, %s, %s bitop3:0x%x' % (v(t), v(t), v(t + 1), mask, TT_OM),
            'v_cmp_ne_u32 vcc, 0, %s' % v(t)]


class LgkmTrack:
    def __init__(self, P):
        self.P, self.q = P, []
    def __call__(self, ins):
        I = Inst(ins)
        regs = I.rd | (I.wr if I.kind != 'ds' else set())
        last = -1
        for k, w in enumerate(self.q):
            if w & regs:
                last = k
        if last >= 0:
            self.P('s_waitcnt lgkmcnt(%d)' % (len(self.q) - 1 - last))
            self.q = self.q[last + 1:]
        self.P(ins)
        if I.kind == 'ds':
            self.q.append(set(I.wr))
    def drain(self):
        self.P('s_waitcnt lgkmcnt(0)')
        self.q = []
    def weave(self, main, fill):
        for k, m in enumerate(main):
            self(m)
            for f in fill.get(k, []):
                self(f)


def addfill(fill, start, ins, step=1):
    for k, x in enumerate(ins):
        fill.setdefault(start + k * step, []).append(x)


PTS = [[0, 1, 2, 3, 4, 5], [0, 'b1', 1, 4, 'ipoll', 5], [0, 'b1', 'b5', 'bend', 'cvm', 1], [1, 'b2', 'dq', 'dend', 'esx', 2], [2, 'b3', 'fsum', 'fexp', 'gw', 3], [3, 'b4', 'hm', 4, 'ipoll', 5]]
CFG = dict(stag=0, vg=4, vs=1, dR=-1, r2=1, lateb=0, nb0=5, trace=0, vpos=2, pts=0, dI=25, dA=60, dAn=0, preC=0, xs=0, km=1, touch=1, iso=0, lfirst=1, dA2=25, dI2=30, rg1=4, rg2=-1, kg=0, tg=5, tstr=64)


def delay(P, n):
    while n > 0:
        P('s_nop %d' % (min(n, 16) - 1))
        n -= 16


def r_loop(P, fast, X, reducer, w3, diag):
    ws = s(S_WS, 4)
    lc = '' if fast else ' sc1'
    tails = []
    Ltop, Lent, Lexit, Ldone = P.newlabel('R_top'), P.newlabel('R_ent'), P.newlabel('R_exit'), P.newlabel('R_done')
    E = LgkmTrack(P)

    def stamp(k):
        if diag > 1 and k in PTS[CFG['pts']]:
            P('%s %s' % ('s_memrealtime' if CFG['trace'] else 's_memtime', s(sStamp + 2 * PTS[CFG['pts']].index(k), 2)))
    A = lambda i: Y_ + 4 * (i % 5)
    gload = lambda base, d=T_: ['buffer_load_dwordx4 %s, %s, %s, %s offen sc1' % (v(d, 4), v(vW1K), ws, s(base)),
                                'buffer_load_dword %s, %s, %s, %s offen offset:4092 sc1' % (v(d + 4), v(vL4), ws, s(base))]
    P('s_branch %s' % Lent)
    P('.p2align 6')
    P.label(Ltop)
    early = CFG['dR'] >= 0
    T1, T2 = vKx, (vVx if early else T_)
    def a_try(base_reg):
        P('ds_write_b128 %s, %s' % (v(vW1K), v(base_reg, 4)))
        P('ds_write_b32 %s, %s offset:4092' % (v(vL4), v(base_reg + 4)))
        for x in chk5(Y_, sTagR, '1', base_reg):
            P(x)
    Lp, Lok, Lr = P.newlabel('R_pa'), P.newlabel('R_paok'), P.newlabel('R_par')
    for x in gload(sMemLLd, T1):
        P(x)
    delay(P, CFG['dA2'])
    for x in gload(sMemLLd, T2):
        P(x)
    if early:
        delay(P, CFG['dR'])
        for x in gload(sMemRLd):
            P(x)
        P('s_waitcnt vmcnt(4)')
    else:
        P.label(Lp)
        P('s_waitcnt vmcnt(2)')
    a_try(T1)
    P('s_cbranch_vccnz %s' % Lr)
    P.label(Lok)
    def a_tail(Lp=Lp, Lok=Lok):
        if early:
            P('s_waitcnt vmcnt(2)')
            a_try(T2)
            P('s_cbranch_vccz %s' % Lok)
            P.label(Lp)
            for x in gload(sMemLLd, T1) + gload(sMemRLd):
                P(x)
            P('s_waitcnt vmcnt(2)')
            a_try(T1)
            P('s_cbranch_vccz %s' % Lok)
            spin_retry(P, Lp, Lok)
            return
        for x in gload(sMemLLd, T1):
            P(x)
        P('s_waitcnt vmcnt(2)')
        a_try(T2)
        P('s_cbranch_vccz %s' % Lok)
        for x in gload(sMemLLd, T2):
            P(x)
        spin_retry(P, Lp, Lok)
    tails.append((Lr, a_tail))
    if not early:
        for x in gload(sMemRLd):
            P(x)
    stamp(0)
    P('s_waitcnt lgkmcnt(0)')
    P('s_barrier')
    P.label(Lent)
    stamp('b1')
    rdl = ['ds_read_b128 %s, %s offset:%d' % (v(A(i), 4), v(vL16), L_MEM + 1024 * i) for i in range(5)]
    nb0 = CFG['nb0']
    for x in rdl[:nb0]:
        E(x)
    main = []
    for i in range(5):
        main += [smf(accQ, A(i), W('q', i, 0)), smf(accQ + 4, A(i), W('q', i, 1)),
                 smf(accK, A(i), W('k', i, 0)), smf(accK + 4, A(i), W('k', i, 1))]
    fill = {}
    addfill(fill, 0, land(1)); addfill(fill, 6, land(2)); addfill(fill, 12, land(3))
    for k, x in enumerate(rdl[nb0:]):
        fill.setdefault((0, 4, 5, 10)[k + nb0 - 1], []).append(x)
    addfill(fill, 16, ['v_add_u32 %s, 0x10000, %s' % (v(vVW), v(vVW))])
    addfill(fill, 18, land(4)[:2])
    addfill(fill, 0, ['s_xor_b32 %s, %s, 1' % (s(sTagP), s(sTagP)),
                      's_min_u32 %s, %s, 1' % (s(sT0), s(sStep)), 's_lshl_b32 %s, %s, 17' % (s(sT1), s(sT0))])
    vo = CFG['stag'] * (2 if w3 else (1 if reducer == 'h16' else 0))
    addfill(fill, CFG['kg'] + vo, ['buffer_load_dwordx4 %s, %s, %s, %s offen offset:%d sc1' % (v(vKx + 4 * t, 4), v(vL16), ws, s(sKV), 1024 * t) for t in range(2)])
    for g in (CFG['rg1'], CFG['rg2']):
        if g >= 0:
            addfill(fill, g + vo, gload(sMemRLd, vVx if CFG['r2'] else T_))
    if CFG['km']:
        addfill(fill, 16 - vo, ['buffer_store_dwordx4 %s, %s, %s, %s offen sc1' % (v(SP, 4), v(vL16), ws, s(sKM))])
    addfill(fill, 17, ['s_add_u32 %s, %s, %s' % (s(sKM), s(sKM), s(sT1))])
    x = ['s_add_u32 %s, %s, 0x%x' % (s(sKV), s(sKV), 0 if CFG['iso'] else 0x40000), 's_add_u32 %s, %s, 0x%x' % (s(sVXoff), s(sKV), VX - KX)]
    addfill(fill, 17, x[::-1] if CFG['vpos'] == 2 else x)
    E.weave(main[:1], fill)
    stamp('b5')
    E.weave(main[1:], {k - 1: x for k, x in fill.items() if k > 0})
    stamp('bend')
    vm = [smf(AV + 4 * nt, A(i), W('v', i, nt)) for i in range(5) for nt in range(2)]
    l4 = land(4)[2:]
    E.weave(vm[:2], {0: l4[:1], 1: l4[1:]})
    Lp, Lok, Lr, Lp2 = P.newlabel('R_pc'), P.newlabel('R_pcok'), P.newlabel('R_pcr'), P.newlabel('R_pc2')
    P('s_waitcnt vmcnt(%d)' % ((1 if CFG['km'] else 0) + (2 if CFG['r2'] else 0)))
    stamp('cvm')
    E('ds_write_b128 %s, %s offset:5120' % (v(vW1K), v(T_, 4)))
    E('ds_write_b32 %s, %s offset:%d' % (v(vL4), v(T_ + 4), 5120 + 4092))
    c5 = chk5(T_ + 6, sTagR, s(sChk))
    E.weave(vm[2:6], {0: c5[0:2], 1: c5[2:4], 2: c5[4:5]})
    P('s_cbranch_vccnz %s' % Lr)
    P.label(Lok)
    def c_tail(Lr=Lr, Lp2=Lp2, Lok=Lok):
        if CFG['r2']:
            Lr = P.newlabel('R_pcr2')
            P('s_waitcnt vmcnt(%d)' % (1 if CFG['km'] else 0))
            P('ds_write_b128 %s, %s offset:5120' % (v(vW1K), v(vVx, 4)))
            P('ds_write_b32 %s, %s offset:%d' % (v(vL4), v(vVx + 4), 5120 + 4092))
            for x in chk5(T_ + 6, sTagR, s(sChk), vVx):
                P(x)
            P('s_cbranch_vccz %s' % Lok)
            P.label(Lr)
        spin_retry(P, Lp2, Lok)
        P.label(Lp2)
        P('s_waitcnt lgkmcnt(0)')
        for x in gload(sMemRLd):
            P(x)
        P('s_waitcnt vmcnt(0)')
        P('ds_write_b128 %s, %s offset:5120' % (v(vW1K), v(T_, 4)))
        P('ds_write_b32 %s, %s offset:%d' % (v(vL4), v(T_ + 4), 5120 + 4092))
        for x in chk5(T_ + 6, sTagR, s(sChk)):
            P(x)
        P('s_cbranch_vccnz %s' % Lr)
        P('s_branch %s' % Lok)
    tails.append((Lr, c_tail))
    if w3:
        P('v_lshlrev_b32 %s, 3, %s' % (v(T_ + 7), v(vL16)))
        P('s_add_u32 %s, %s, 0x%x' % (s(sT2), s(sTch), VX - KX))
    stamp(1)
    E.drain()
    P('s_barrier')
    stamp('b2')
    rd = ['ds_read_b128 %s, %s offset:%d' % (v(A(i), 4), v(vL16), L_MEM + 5120 + 1024 * i) for i in range(5)]
    E(rd[0]); E(rd[1])
    fill = {0: [rd[2]], 1: [rd[3]], 3: [rd[4]]}
    E.weave(vm[6:], fill)
    stamp('dq')
    main = [smf(accQ + 4 * nt, A(i), W('q', 5 + i, nt)) for i in range(5) for nt in range(2)]
    main += [smf(accK + 4 * nt, A(i), W('k', 5 + i, nt)) for i in range(5) for nt in range(2)]
    fill = {}
    addfill(fill, 0, land(5)); addfill(fill, 6, land(6)); addfill(fill, 12, land(7))
    addfill(fill, CFG['vg'] + (vo if not w3 else -CFG['stag']), ['buffer_load_dwordx4 %s, %s, %s, %s offen offset:%d sc1' % (v(vVx + 4 * t, 4), v(vL16), ws, s(sVXoff), 1024 * t) for t in range(2)], CFG['vs'])
    if w3 and CFG['touch']:
        addfill(fill, 10, ['buffer_load_dword %s, %s, %s offen sc1 lds' % (v(T_ + 7), ws, s(b_)) for b_ in (sTch, sT2)])
    addfill(fill, 17, ['v_add_u32 %s, 0x10000, %s' % (v(vVW), v(vVW))])
    addfill(fill, 18, land(8)[:2])
    addfill(fill, 5, ['s_mov_b32 %s, %s' % (s(sMemRLd), s(sMemRNx)), 's_xor_b32 %s, %s, 0x4000' % (s(sMemRNx), s(sMemRNx)),
                      's_xor_b32 %s, %s, 0x4000' % (s(sMemLLd), s(sMemLLd))])
    addfill(fill, 0, ['s_andn2_b32 %s, 1, %s' % (s(sT0), s(sStep)),
                      's_xor_b32 %s, %s, %s' % (s(sTagR), s(sTagR), s(sT0)), 's_mov_b32 %s, 1' % s(sChk),
                      's_min_u32 %s, %s, 1' % (s(sT0), s(sStep))])
    if w3:
        addfill(fill, 4, ['s_cmp_gt_u32 %s, %d' % (s(sStep), EARLY), 's_cselect_b32 %s, 0, %s' % (s(sT0), s(sT0))])
        addfill(fill, 6, ['s_sub_u32 %s, %s, %s' % (s(sT0), s(sStep), s(sT0)), 'v_mov_b32 %s, %s' % (v(T_ + 1), s(sT0)),
                          'v_mov_b32 %s, 0' % v(T_ + 6),
                          'buffer_store_dword %s, %s, %s, %s offen sc1' % (v(T_ + 1), v(T_ + 6), ws, s(sKmFlagOff))])
    addfill(fill, 13, [cvt(T_, accQ), cvt(T_ + 1, accQ + 2), cvt(T_ + 2, accQ + 4), cvt(T_ + 3, accQ + 6)])
    E.weave(main, fill)
    stamp('dend')
    Ak = SP if X == 0 else T_ + 4
    tr = lambda d, a_: 'v_mfma_f32_16x16x16_bf16 %s, %s, %s, 0' % (v(d, 4), v(a_, 2), v(vSig, 2))
    mm = lambda d, a_, b_: 'v_mfma_f32_16x16x32_bf16 %s, %s, %s, 0' % (v(d, 4), v(a_, 4), v(b_, 4))
    E(tr(accQ, T_)); E(land(8)[2]); E(tr(accQ + 4, T_ + 2)); E(land(8)[3])
    E(cvt(T_ + 4, accK)); E(cvt(T_ + 5, accK + 2)); E(cvt(T_ + 6, accK + 4)); E(cvt(T_ + 7, accK + 6))
    E(tr(accK, T_ + 4))
    E(cvt(T_, accQ))
    E(tr(accK + 4, T_ + 6))
    E(cvt(T_ + 1, accQ + 2)); E(cvt(T_ + 2, accQ + 4)); E(cvt(T_ + 3, accQ + 6))
    E(mm(accQ, vKx, T_)); E(mm(accQ + 4, vKx + 4, T_))
    for i in range(4):
        E(cvt(Ak + i, accK + 2 * i))
    E(mm(accK, Ak, T_))
    for r in range(4):
        E('v_cndmask_b32 %s, %s, %s, %s' % (v(accQ + r), v(accQ + r), v(accQ + 4 + r), s(sC8, 2)))
    E('ds_write_b128 %s, %s offset:%d' % (v(vW1K), v(accQ, 4), L_SX))
    for r in range(2):
        E('v_cndmask_b32 %s, %s, %s, %s' % (v(accK + r), v(accK + r), v(accK + 2 + r), s(sC8, 2)))
    E('ds_write_b64 %s, %s offset:%d' % (v(vW1K), v(accK, 2), L_MEM))
    stamp('esx')
    vr = [smf(AV + 4 * nt, A(i), W('v', 5 + i, nt)) for i in range(5) for nt in range(2)]
    adr = [T_ + 4, T_ + 6, X_ + 10]
    E.weave(vr[:5], {k: ['v_xor_b32 %s, 0x%x, %s' % (v(adr[k]), 1024 * (k + 1), v(vW1K))] for k in range(3)})
    P('s_cmp_eq_u32 %s, 63' % s(sStep))
    P('s_cbranch_scc1 %s' % Lexit)
    stamp(2)
    E.drain()
    P('s_barrier')
    stamp('b3')
    xd = [X_ + 4, X_ + 12, T_]
    rds = []
    for k in range(3):
        rds.append('ds_read_b128 %s, %s offset:%d' % (v(xd[k], 4), v(adr[k]), L_SX))
        rds.append('ds_read_b64 %s, %s offset:%d' % (v(adr[k], 2), v(adr[k]), L_MEM))
    E(rds[0]); E(rds[1])
    E.weave(vr[5:], {k: [rds[2 + k]] for k in range(4)})
    m_ = X_ + 8
    E(pk('add', X_, X_, X_ + 4)); E(pk('add', X_ + 2, X_ + 2, X_ + 6)); E(pk('add', m_, m_, T_ + 4))
    E(pk('add', X_ + 12, X_ + 12, T_)); E(pk('add', X_ + 14, X_ + 14, T_ + 2)); E(pk('add', T_ + 6, T_ + 6, X_ + 10))
    E(pk('add', X_, X_, X_ + 12)); E(pk('add', X_ + 2, X_ + 2, X_ + 14)); E(pk('add', m_, m_, T_ + 6))
    stamp('fsum')
    mx, tm = X_ + 10, X_ + 11
    Vm = SP if X == 1 else Z_
    vc = [cvt(Vm + i, AV + 2 * i) for i in range(4)]
    E('v_max3_f32 %s, %s, %s, %s' % (v(mx), v(X_), v(X_ + 1), v(X_ + 2)))
    E('v_max3_f32 %s, %s, %s, %s' % (v(mx), v(mx), v(X_ + 3), v(m_)))
    E('v_max_f32 %s, %s, %s' % (v(mx), v(mx), v(m_ + 1)))
    E(vc[0]); E(vc[1])
    E('v_max_f32_dpp %s, %s, %s row_ror:8 row_mask:0xf bank_mask:0xf' % (v(mx), v(mx), v(mx)))
    E('v_mov_b32 %s, %s' % (v(tm), v(mx)))
    E(vc[2]); E(vc[3])
    E('v_permlane16_swap_b32 %s, %s' % (v(mx), v(tm)))
    E('v_max_f32 %s, %s, %s' % (v(mx), v(mx), v(tm)))
    E('v_mov_b32 %s, %s' % (v(tm), v(mx)))
    E('v_mov_b32 %s, 0' % v(Y_)); E('v_mov_b32 %s, 0' % v(Y_ + 1))
    E('v_permlane32_swap_b32 %s, %s' % (v(mx), v(tm)))
    E('v_max_f32 %s, %s, %s' % (v(mx), v(mx), v(tm)))
    E('v_mul_f32 %s, %s, %s' % (v(mx), s(sScale), v(mx)))
    for r in (X_, X_ + 2, m_):
        E('v_pk_fma_f32 %s, %s, %s, %s op_sel_hi:[1,1,0] neg_lo:[0,0,1] neg_hi:[0,0,1]' % (v(r, 2), v(r, 2), s(sScale2, 2), v(mx, 2)))
    for r in (X_, X_ + 1, X_ + 2, X_ + 3, m_, m_ + 1):
        E('v_exp_f32 %s, %s' % (v(r), v(r)))
    stamp('fexp')
    Bx, Bm = T_, T_ + 4
    E(cvt(Bx, X_)); E(cvt(Bx + 1, X_ + 2)); E(cvt(Bm, m_))
    for d, a_ in ((Bx + 2, Bx), (Bx + 3, Bx + 1), (Bm + 1, Bm)):
        E('v_mov_b32_dpp %s, %s row_ror:8 row_mask:0xf bank_mask:0xf' % (v(d), v(a_)))
    O0, O1 = X_ + 4, X_ + 12
    ls, lt = X_ + 10, X_ + 11
    E(pk('add', X_, X_, X_ + 2))
    if CFG['vpos'] == 2:
        E('s_waitcnt vmcnt(%d)' % ((1 + 2 * CFG['touch']) if w3 else 0))
    E(mm(O0, vVx, Bx))
    E('v_add_f32 %s, %s, %s' % (v(m_), v(m_), v(m_ + 1)))
    E('v_add_f32 %s, %s, %s' % (v(X_), v(X_), v(X_ + 1)))
    E(mm(O1, vVx + 4, Bx))
    E('v_fma_f32 %s, %s, 0.5, %s' % (v(ls), v(m_), v(X_)))
    E('v_mfma_f32_16x16x16_bf16 %s, %s, %s, %s' % (v(O0, 4), v(Vm, 2), v(Bm, 2), v(O0, 4)))
    E('v_mov_b32 %s, 0' % v(Y_ + 2))
    E('v_add_f32_dpp %s, %s, %s row_ror:8 row_mask:0xf bank_mask:0xf' % (v(ls), v(ls), v(ls)))
    E('v_mfma_f32_16x16x16_bf16 %s, %s, %s, %s' % (v(O1, 4), v(Vm + 2, 2), v(Bm, 2), v(O1, 4)))
    E('v_mov_b32 %s, %s' % (v(lt), v(ls)))
    E('v_mov_b32 %s, 0' % v(Y_ + 3)); E('v_mov_b32 %s, 0' % v(Y_ + 4))
    E('v_permlane16_swap_b32 %s, %s' % (v(ls), v(lt)))
    E('v_add_f32 %s, %s, %s' % (v(ls), v(ls), v(lt)))
    E('v_mov_b32 %s, %s' % (v(lt), v(ls)))
    E('v_mov_b32 %s, 0' % v(Y_ + 5)); E('v_mov_b32 %s, 0' % v(Y_ + 6))
    E('v_permlane32_swap_b32 %s, %s' % (v(ls), v(lt)))
    E('v_add_f32 %s, %s, %s' % (v(ls), v(ls), v(lt)))
    E('v_rcp_f32 %s, %s' % (v(ls), v(ls)))
    E('s_mov_b64 exec, %s' % s(sEx8, 2))
    for r in (O0, O0 + 2, O1, O1 + 2):
        E('v_pk_mul_f32 %s, %s, %s op_sel_hi:[1,0]' % (v(r, 2), v(r, 2), v(ls, 2)))
    E(cvt(X_, O0)); E(cvt(X_ + 1, O0 + 2)); E(cvt(X_ + 2, O1)); E(cvt(X_ + 3, O1 + 2))
    E('ds_write_b128 %s, %s' % (v(vOWr), v(X_, 4)))
    stamp('gw')
    E('s_mov_b64 exec, -1')
    for i in range(7, 20):
        E('v_mov_b32 %s, 0' % v(Y_ + i))
    stamp(3)
    E.drain()
    P('s_barrier')
    stamp('b4')
    for k in range(2):
        E('ds_read_b128 %s, %s offset:%d' % (v(T_ + 4 * k, 4), v(vL16), L_O + 1024 * k))
    p1, Pk = X_, X_ + 4
    E('v_subrev_u32 %s, 0x20000, %s' % (v(vVW), v(vVW)))
    E('v_lshrrev_b32 %s, 8, %s' % (v(p1), v(vL16)))
    E('v_bfe_u32 %s, %s, 2, 6' % (v(p1 + 1), v(vL16)))
    E('v_lshl_add_u32 %s, %s, 13, %s' % (v(p1), v(p1), v(p1 + 1)))
    D = lambda T: Y_ + 4 * T
    main = [smf(D(T), T_ + 4 * k, WR[('o', k, T)]) + ' abid:1' for T in range(5) for k in range(2)]
    sw = lambda a_, b_: 'v_permlane32_swap_b32 %s, %s' % (v(a_), v(b_))
    bfi = lambda r: 'v_bfi_b32 %s, 1, %s, %s' % (v(r), s(sTagP), v(r))
    ha = lambda T, r: 'v_add_f32 %s, %s, %s' % (v(D(T) + r), v(D(T) + r), v(D(T) + 2 + r))
    hs = lambda T: pk('add', D(T), D(T), D(T) + 2)
    E.weave(main, {3: [ha(0, 0)], 4: [ha(0, 1)], 5: [cvt(Pk, D(0)), ha(1, 0)], 6: [ha(1, 1), bfi(Pk)], 7: [cvt(Pk + 1, D(1)), ha(2, 0)],
                   8: [ha(2, 1)], 9: [ha(3, 0), ha(3, 1), cvt(Pk + 2, D(2)), cvt(Pk + 3, D(3))]})
    E('buffer_store_dwordx4 %s, %s, %s, %s offen%s' % (v(Pk, 4), v(vPSt), ws, s(sPartSt0), lc))
    stamp('hm')
    E(hs(4)); E(cvt(D(4), D(4))); E(bfi(D(4)))
    E('buffer_store_dword %s, %s, %s, %s offen%s' % (v(D(4)), v(p1), ws, s(sPartSt1), lc))
    stamp(4)
    vl = ['buffer_load_dwordx4 %s, %s, %s, %s offen offset:%d sc1' % (v(vVx + 4 * t, 4), v(vL16), ws, s(sVXoff), 1024 * t) for t in range(2)]
    if CFG['vpos'] == 0:
        P(vl[0]); P(vl[1])
    Lne = P.newlabel('R_noearly')
    P('s_cmp_lt_u32 %s, %d' % (s(sStep), EARLY))
    P('s_cbranch_scc1 %s' % Lne)
    P('buffer_store_dwordx4 %s, %s, %s, %s offen sc1' % (v(SP, 4), v(vL16), ws, s(sKM)))
    P.label(Lne)
    def idle_list():
        return (['v_mov_b32 %s, 0' % v(X_ + i) for i in range(24)] + land(0) +
                ['v_lshrrev_b32 %s, 2, %s' % (v(vL4), v(vW1K)), 'v_add_u32 %s, 4, %s' % (v(vL4), v(vL4)),
                 's_add_u32 %s, %s, 1' % (s(sStep), s(sStep))])
    def idle_work():
        for x in idle_list():
            P(x)
    Lnored, Ljoin = P.newlabel('R_nored'), P.newlabel('R_join')
    if reducer == 'h16':
        P('s_cmp_ge_u32 %s, 16' % s(sH))
        P('s_cbranch_scc1 %s' % Lnored)
    pl = lambda R_: ['buffer_load_dwordx4 %s, %s, %s, %s offen offset:%d sc1' % (v(R_ + 4 * i, 4), v(vL16), ws, s(sPartLd), 1024 * i) for i in range(2)]
    if reducer:
        Lp, Lok, Lr = P.newlabel('R_pi'), P.newlabel('R_piok'), P.newlabel('R_pir')
        msk, mst, sel, Dr = T_ + 6, T_ + 7, Y_ + 8, Y_ + 12
        pre = ['v_mov_b32 %s, 0xfffe0000' % v(msk),
               'v_lshrrev_b32 %s, 2, %s' % (v(T_), v(vL16)),
               'v_and_b32 %s, 0x80, %s' % (v(T_), v(T_)),
               'v_and_or_b32 %s, %s, 16, %s' % (v(mst), v(vL16), v(T_)),
               'v_lshrrev_b32 %s, 5, %s' % (v(T_), v(vL16)),
               'v_and_or_b32 %s, %s, 8, %s' % (v(mst), v(T_), v(mst)),
               'v_lshrrev_b32 %s, 4, %s' % (v(T_), v(vL16)),
               'v_and_or_b32 %s, %s, 4, %s' % (v(mst), v(T_), v(mst)),
               'v_mov_b32 %s, 0x3f80' % v(T_),
               'v_cndmask_b32 %s, %s, 1.0, %s' % (v(T_), v(T_), s(sOdd, 2))]
        pre += ['v_cndmask_b32 %s, 0, %s, %s' % (v(sel + q), v(T_), s(sSelM + 2 * q, 2)) for q in range(4)]
        pre += ['s_lshl_b32 %s, %s, 16' % (s(sT16R), s(sTagR)), 's_sub_u32 %s, 0x10000, %s' % (s(sK1R), s(sT16R))]
        work = idle_list() + pre
        n1 = min(len(work), CFG['dI'])
        for x in work[:n1]:
            P(x)
        delay(P, CFG['dI'] - n1)
        for x in pl(Y_):
            P(x)
        n2 = min(len(work), n1 + CFG['dI2'])
        for x in work[n1:n2]:
            P(x)
        delay(P, CFG['dI2'] - (n2 - n1))
        for x in pl(vKx):
            P(x)
        for x in work[n2:]:
            P(x)
        def i_try(R_):
            xx = lambda d, i: 'v_bitop3_b32 %s, %s, %s, %s bitop3:0x%x' % (v(d), v(R_ + 2 * i), v(R_ + 2 * i + 1), s(sTagP), TT_XX)
            P('s_waitcnt vmcnt(3)')
            P('v_mfma_f32_16x16x32_bf16 %s, %s, %s, 0' % (v(Dr, 4), v(R_, 4), v(sel, 4)))
            if reducer == 'h16':
                P(xx(T_, 0)); P(xx(T_ + 1, 1))
            P('s_waitcnt vmcnt(2)')
            stamp('ipoll')
            P('v_mfma_f32_16x16x32_bf16 %s, %s, %s, %s' % (v(Dr, 4), v(R_ + 4, 4), v(sel, 4), v(Dr, 4)))
            if reducer == 'h16':
                P(xx(T_ + 2, 2)); P(xx(T_ + 3, 3))
                P('v_or3_b32 %s, %s, %s, %s' % (v(T_), v(T_), v(T_ + 2), v(T_ + 3)))
                P('v_bitop3_b32 %s, %s, %s, 1 bitop3:0x%x' % (v(T_), v(T_), v(T_ + 1), TT_OM))
            else:
                P('v_bitop3_b32 %s, %s, %s, %s bitop3:0x%x' % (v(T_), v(R_), v(R_ + 4), s(sTagP), TT_XX))
                P('v_and_b32 %s, 1, %s' % (v(T_), v(T_)))
            P('v_cmp_ne_u32 vcc, 0, %s' % v(T_))
        def i_fin():
            P(sw(Dr, Dr + 2)); P(sw(Dr + 1, Dr + 3))
            P(pk('add', Dr, Dr, Dr + 2))
            P('v_permlane16_swap_b32 %s, %s' % (v(Dr), v(Dr + 1)))
            P('v_add_f32 %s, %s, %s' % (v(Dr), v(Dr), v(Dr + 1)))
            P('v_add_u32 %s, %s, %s' % (v(Dr + 2), s(sK1R), v(Dr)))
            P('v_bfi_b32 %s, %s, %s, %s' % (v(Dr + 2), v(msk), v(Dr + 2), s(sT16R)))
            P('v_mov_b32_dpp %s, %s row_shl:2 row_mask:0xf bank_mask:0xf' % (v(Dr + 1), v(Dr)))
        Lok2 = P.newlabel('R_piok2')
        P.label(Lp)
        i_try(Y_)
        if CFG['lateb']:
            i_fin()
        P('s_cbranch_vccnz %s' % Lr)
        P.label(Lok)
        if not CFG['lateb']:
            i_fin()
        def i_tail(Lp=Lp, Lok=Lok):
            for x in pl(Y_):
                P(x)
            i_try(vKx)
            if CFG['lateb']:
                i_fin()
            P('s_cbranch_vccz %s' % Lok)
            for x in pl(vKx):
                P(x)
            spin_retry(P, Lp, Lok)
        tails.append((Lr, i_tail))
        P('s_mov_b64 exec, %s' % s(sExSt, 2))
        P('v_cvt_pk_bf16_f32 %s, %s, %s' % (v(Dr + 2), v(Dr + 2), v(Dr + 1)))
        P('buffer_store_dword %s, %s, %s, %s offen%s' % (v(Dr + 2), v(mst), ws, s(sMemLSt), lc))
        P('buffer_store_dword %s, %s, %s, %s offen sc1' % (v(Dr + 2), v(mst), ws, s(sMemRSt)))
        P('s_mov_b64 exec, -1')
        stamp(5)
        P('s_xor_b32 %s, %s, 0x4000' % (s(sMemRSt), s(sMemRSt)))
        P('s_xor_b32 %s, %s, 0x4000' % (s(sMemLSt), s(sMemLSt)))
        if reducer == 'h16':
            P('s_branch %s' % Ljoin)
    if reducer in (False, 'h16'):
        P.label(Lnored)
        if w3 and not CFG['iso']:
            flag_poll(P, 3)
            P('s_add_u32 %s, %s, 0x40000' % (s(sTch), s(sTch)))
        idle_work()
        stamp(5)
        P.label(Ljoin)
    P('s_barrier')
    if CFG['vpos'] == 1:
        P(vl[0]); P(vl[1])
    delay(P, CFG['dA'])
    if diag > 1 and CFG['trace']:
        Ld = P.newlabel('R_tr')
        P('s_waitcnt lgkmcnt(0)')
        P('s_sub_u32 s75, %s, 30' % s(sStep))
        P('s_cmp_ge_u32 s75, 16')
        P('s_cbranch_scc1 %s' % Ld)
        P('s_mul_i32 s75, s75, 24')
        P('s_mul_i32 s74, %s, 384' % s(sW))
        P('s_add_u32 s75, s75, s74')
        P('s_add_u32 s75, s75, 14592')
        P('v_mov_b32 %s, s75' % v(Y_))
        for k in range(6):
            P('v_mov_b32 %s, %s' % (v(Y_ + 1), s(sStamp + 2 * k)))
            P('ds_write_b32 %s, %s offset:%d' % (v(Y_), v(Y_ + 1), 4 * k))
        P.label(Ld)
    elif diag > 1:
        Ld = P.newlabel('R_dg')
        P('s_waitcnt lgkmcnt(0)')
        P('s_cmp_lt_u32 %s, 4' % s(sStep))
        P('s_cbranch_scc1 %s' % Ld)
        for k in range(6):
            P('s_sub_u32 s75, %s, %s' % (s(sStamp + 2 * k), 's74' if k == 0 else s(sStamp + 2 * k - 2)))
            P('s_add_u32 %s, %s, s75' % (s(80 + k), s(80 + k)))
            P('s_max_u32 %s, %s, s75' % (s(68 + k), s(68 + k)))
        P.label(Ld)
        P('s_mov_b32 s74, %s' % s(sStamp + 10))
    P('s_branch %s' % Ltop)
    for k, t in enumerate(tails):
        P.label(t[0])
        if diag:
            P('s_add_u32 s78, s78, 0x%x' % (1 << (10 * k)))
        t[1]()
    P.label(Lexit)
    P('s_waitcnt lgkmcnt(0)')
    if X == 1:
        for x in vr[5:]:
            P(x)
        for x in vc:
            P(x)
    P('buffer_store_dwordx4 %s, %s, %s, %s offen sc1' % (v(SP, 4), v(vL16), ws, s(sKM)))


def role_r(P, diag=False):
    r_prologue(P, diag)
    Lend = P.newlabel('R_end')
    if diag:
        P('s_memtime s[98:99]')
        P('s_memrealtime s[100:101]')
        P('s_waitcnt lgkmcnt(0)')
        for k in list(range(80, 86)) + list(range(68, 75)) + [78]:
            P('s_mov_b32 s%d, 0' % k)
    names = (('r', True, False), ('h', 'h16', False), ('w3', False, True))
    lab = {(f, X, nm): P.newlabel('R_v%d%d%s' % (f, X, nm)) for f in (1, 0) for X in (0, 1) for nm, _, _ in names}
    sel = {(f, X): P.newlabel('R_s%d%d' % (f, X)) for f in (1, 0) for X in (0, 1)}
    Lsafe = P.newlabel('R_safe')
    P('s_cmp_lg_u32 %s, 1' % s(sFast))
    P('s_cbranch_scc1 %s' % Lsafe)
    for f in (1, 0):
        if not f:
            P.label(Lsafe)
        P('s_cmp_eq_u32 %s, 1' % s(sX))
        P('s_cbranch_scc1 %s' % sel[(f, 1)])
        for X in (0, 1):
            P.label(sel[(f, X)])
            P('s_cmp_eq_u32 %s, 2' % s(sW))
            P('s_cbranch_scc1 %s' % lab[(f, X, 'h')])
            P('s_cmp_eq_u32 %s, 3' % s(sW))
            P('s_cbranch_scc1 %s' % lab[(f, X, 'w3')])
            P('s_branch %s' % lab[(f, X, 'r')])
    for f in (1, 0):
        for X in (0, 1):
            for nm, red, w3 in names:
                P.label(lab[(f, X, nm)])
                r_loop(P, f, X, red, w3, diag)
                P('s_branch %s' % Lend)
    P.label(Lend)
    P('s_waitcnt vmcnt(0) lgkmcnt(0)')
    P('s_barrier')
    L = P.newlabel('R_fin')
    P('s_cmp_lg_u32 %s, 3' % s(sW))
    P('s_cbranch_scc1 %s' % L)
    P('v_mov_b32 v0, 64')
    P('v_mov_b32 v1, 0')
    P('s_mov_b64 exec, 1')
    P('buffer_store_dword v0, v1, %s, %s offen sc1' % (s(S_WS, 4), s(sKmFlagOff)))
    P('s_mov_b64 exec, -1')
    P.label(L)
    if diag > 1 and CFG['trace']:
        P('v_mbcnt_lo_u32_b32 v0, -1, 0'); P('v_mbcnt_hi_u32_b32 v0, -1, v0')
        P('v_lshlrev_b32 v0, 3, v0')
        P('s_mul_i32 s74, %s, 384' % s(sW))
        P('v_add_u32 v1, s74, v0')
        P('ds_read_b64 v[2:3], v1 offset:14592')
        P('s_lshl_b32 s7, s2, 2'); P('s_add_u32 s7, s7, %s' % s(sW)); P('s_lshl_b32 s7, s7, 9'); P('s_add_u32 s7, s7, 0x%x' % (END0 + 0x120000))
        P('s_waitcnt lgkmcnt(0)')
        P('buffer_store_dwordx2 v[2:3], v0, %s, s7 offen' % s(S_WS, 4))
    if diag:
        P('s_memtime s[92:93]')
        P('s_memrealtime s[96:97]')
        P('s_waitcnt lgkmcnt(0)')
        P('s_sub_u32 s86, s92, s98')
        P('s_sub_u32 s87, s96, s100')
        if diag == 1:
            P('s_mov_b32 s80, s100')
            P('s_mov_b32 s81, s96')
        P('s_mov_b32 s88, s78')
        P('s_mov_b32 s89, %s' % s(sFast))
        P('s_lshl_b32 s7, s2, 2')
        P('s_add_u32 s7, s7, %s' % s(sW))
        P('s_lshl_b32 s7, s7, 6')
        P('s_add_u32 s7, s7, 0x%x' % END0)
        P('v_mov_b32 v1, 0')
        for k in range(16):
            P('v_mov_b32 v0, s%d' % (80 + k if k < 10 else 58 + k))
            P('buffer_store_dword v0, v1, %s, s7 offen offset:%d' % (s(S_WS, 4), 4 * k))
```

```python
from asmlib import *
from layout import *
import role_r as R
from role_r import srd, S_WS, S_DBG, S_TMP, S_CLS, S_IDX, S_WAVE, S_SPIN, spin_retry, cvt, pk, LgkmTrack, addfill

ws = s(S_WS, 4)
tmp = s(S_TMP, 4)
sW = S_WAVE
t0, t1, t2, t3, t4, t5 = 20, 21, 22, 23, 24, 25
sC = 26
sSeg, sIt, sNeed = 27, 28, 29
sLdsW = 30
S_OUT = 32
sA, sB, sC2, sD, sE, sF = 36, 37, 38, 39, 40, 41
sLo32 = 42
sEps = 44
sMask = 48
sK0, sK1, sK2 = 64, 65, 66
sFast = 45
sPk = 68

vLane, vL16 = 0, 1
DIAG = [0]
PX = dict(nodma=0, nost=0, b5cy=0)
TL = END0 + 0x10000


def tl(P, slot, vt=254):
    if DIAG[0] not in (1, 2):
        return
    P('s_memrealtime s[78:79]')
    P('s_memtime s[94:95]')
    P('s_lshl_b32 s80, s2, 2')
    P('s_add_u32 s80, s80, %s' % s(sW))
    P('s_lshl_b32 s80, s80, 9')
    P('s_add_u32 s80, s80, 0x%x' % TL)
    if isinstance(slot, tuple):
        P('s_lshl_b32 s81, %s, 2' % s(slot[0]))
        P('s_add_u32 s80, s80, s81')
        slot = slot[1]
    P('s_waitcnt lgkmcnt(0)')
    P('v_mov_b32 %s, s78' % v(vt))
    P('v_mov_b32 %s, 0' % v(vt + 1))
    P('buffer_store_dword %s, %s, %s, s80 offen offset:%d' % (v(vt), v(vt + 1), ws, 4 * slot))
    P('s_add_u32 s80, s80, 0x80000')
    P('v_mov_b32 %s, s94' % v(vt))
    P('buffer_store_dword %s, %s, %s, s80 offen offset:%d' % (v(vt), v(vt + 1), ws, 4 * slot))


def cy(P, k):
    if DIAG[0] != 3:
        return
    P('s_memtime s[82:83]')
    P('s_waitcnt lgkmcnt(0)')
    if k >= 0:
        P('s_sub_u32 s84, s82, s85')
        P('s_add_u32 s%d, s%d, s84' % (86 + k, 86 + k))
    P('s_mov_b32 s85, s82')


def cy_init(P):
    if DIAG[0] == 3:
        for k in range(12):
            P('s_mov_b32 s%d, 0' % (86 + k))
        cy(P, -1)


def cy_dump(P, vt):
    if DIAG[0] != 3:
        return
    P('s_lshl_b32 s80, s2, 2'); P('s_add_u32 s80, s80, %s' % s(sW)); P('s_lshl_b32 s80, s80, 9'); P('s_add_u32 s80, s80, 0x%x' % TL)
    P('v_mov_b32 %s, 0' % v(vt + 1))
    for k in range(12):
        P('v_mov_b32 %s, s%d' % (v(vt), 86 + k))
        P('buffer_store_dword %s, %s, %s, s80 offen offset:%d' % (v(vt), v(vt + 1), ws, 4 * (100 + k)))


def base_regs(P):
    P('v_and_b32 %s, 63, v0' % v(vLane))
    P('v_lshlrev_b32 %s, 4, %s' % (v(vL16), v(vLane)))
    P('s_sub_u32 %s, %s, 2' % (s(sC), s(S_CLS)))
    P('s_lshl_b32 %s, %s, 5' % (s(sC), s(sC)))
    P('s_add_u32 %s, %s, %s' % (s(sC), s(sC), s(S_IDX)))
    P('s_mov_b32 %s, -1' % s(sLo32))
    P('s_mov_b32 %s, 0' % s(sLo32 + 1))


def load_ptr(P, ka, nbytes, dst=S_TMP):
    P('s_load_dwordx2 s[76:77], s[0:1], %d' % ka)
    P('s_waitcnt lgkmcnt(0)')
    srd(P, dst, 76, nbytes)


def div_rows80(P, vr, vc, k, tt):
    P('v_add_u32 %s, %d, %s' % (v(tt), 64 * k, v(vLane)))
    P('v_mul_u32_u24 %s, 205, %s' % (v(vr), v(tt)))
    P('v_lshrrev_b32 %s, 14, %s' % (v(vr), v(vr)))
    P('v_mul_u32_u24 %s, 80, %s' % (v(vc), v(vr)))
    P('v_sub_u32 %s, %s, %s' % (v(vc), v(tt), v(vc)))


def load_w1(P, dst, rs, sbase, vt, between=None):
    vD, vT, a_, b_ = vt, vt + 1, vt + 2, vt + 3
    P('v_lshrrev_b32 %s, 4, %s' % (v(a_), v(vLane)))
    P('v_and_b32 %s, 15, %s' % (v(b_), v(vLane)))
    P('v_lshlrev_b32 %s, 2, %s' % (v(vD), v(a_)))
    P('v_xor_b32 %s, %s, %s' % (v(vD), v(vD), v(b_)))
    P('v_lshlrev_b32 %s, 4, %s' % (v(vD), v(vD)))
    P('v_mul_u32_u24 %s, %d, %s' % (v(b_), rs, v(a_)))
    P('v_add_u32 %s, %s, %s' % (v(vD), v(vD), v(b_)))
    P('s_mul_i32 %s, %s, %d' % (s(t0), s(sW), 16 * rs))
    P('s_add_u32 %s, %s, %s' % (s(t0), s(t0), s(sbase)))
    P('s_lshl_b32 %s, %s, 12' % (s(t1), s(sW)))
    P('s_barrier')
    for it in range(10):
        for i in range(4):
            P('s_add_u32 m0, %s, %d' % (s(t1), it * 16384 + i * 1024))
            P('s_add_u32 %s, %s, %d' % (s(t2), s(t0), (64 * it + 4 * i) * rs))
            P('buffer_load_dwordx4 %s, %s, %s offen lds' % (v(vD), tmp, s(t2)))
    if between:
        between()
        P('v_lshrrev_b32 %s, 4, %s' % (v(a_), v(vLane)))
    P('v_bfe_u32 %s, %s, 2, 2' % (v(b_), v(vLane)))
    P('v_and_b32 %s, 1, %s' % (v(vT), v(a_)))
    P('s_lshl_b32 %s, %s, 1' % (s(t2), s(sW)))
    P('v_add_u32 %s, %s, %s' % (v(vT), s(t2), v(vT)))
    P('v_lshlrev_b32 %s, 1, %s' % (v(vD), v(b_)))
    P('v_xor_b32 %s, %s, %s' % (v(vT), v(vT), v(vD)))
    P('v_lshlrev_b32 %s, 5, %s' % (v(vT), v(vT)))
    P('v_lshrrev_b32 %s, 1, %s' % (v(a_), v(a_)))
    P('v_lshl_add_u32 %s, %s, 3, %s' % (v(b_), v(a_), v(b_)))
    P('v_lshl_add_u32 %s, %s, 8, %s' % (v(vT), v(b_), v(vT)))
    P('v_and_b32 %s, 3, %s' % (v(a_), v(vLane)))
    P('v_lshl_add_u32 %s, %s, 3, %s' % (v(vT), v(a_), v(vT)))
    for it in range(10):
        P('s_waitcnt vmcnt(%d)' % (36 - 4 * it))
        P('s_barrier')
        for q in range(4):
            for j in range(2):
                P('ds_read_b64_tr_b16 %s, %s offset:%d' % (R.sub(dst(4 * it + q), 2 * j, 2), v(vT), (it & 3) * 16384 + q * 4096 + j * 1024))
        if it & 3 == 3:
            P('v_add_u32 %s, 0x10000, %s' % (v(vT), v(vT)))
    P('s_waitcnt lgkmcnt(0)')
    P('s_barrier')


def load_w2(P, dst, sbase, atmap, vt):
    vD, vT, a_, b_ = vt, vt + 5, vt + 10, vt + 11
    for k in range(5):
        div_rows80(P, a_, b_, k, vT)
        P('v_lshlrev_b32 %s, 2, %s' % (v(vT), v(a_)))
        P('v_xor_b32 %s, %s, %s' % (v(b_), v(b_), v(vT)))
        P('v_mul_u32_u24 %s, 1280, %s' % (v(a_), v(a_)))
        P('v_lshl_add_u32 %s, %s, 4, %s' % (v(vD + k), v(b_), v(a_)))
    P('s_mul_i32 %s, %s, %d' % (s(t1), s(sW), 8 * 1280))
    P('s_add_u32 %s, %s, %s' % (s(t0), s(t1), s(sbase)))
    P('s_barrier')
    for it in range(4):
        for g in range(2):
            P('s_add_u32 %s, %s, %d' % (s(t2), s(t0), (32 * it + 4 * g) * 1280))
            for k in range(5):
                P('s_add_u32 m0, %s, %d' % (s(t1), it * 40960 + g * 5120 + k * 1024))
                P('s_nop 0')
                P('buffer_load_dwordx4 %s, %s, %s offen lds' % (v(vD + k), tmp, s(t2)))
    P('v_bfe_u32 %s, %s, 2, 2' % (v(a_), v(vLane)))
    P('v_lshrrev_b32 %s, 5, %s' % (v(b_), v(vLane)))
    P('v_lshl_add_u32 %s, %s, 2, %s' % (v(b_), v(b_), v(a_)))
    P('v_mul_u32_u24 %s, 1280, %s' % (v(b_), v(b_)))
    P('v_and_b32 %s, 1, %s' % (v(vD), v(vLane)))
    P('v_lshl_add_u32 %s, %s, 3, %s' % (v(b_), v(vD), v(b_)))
    P('v_bfe_u32 %s, %s, 4, 1' % (v(vD), v(vLane)))
    P('v_bfe_u32 %s, %s, 1, 1' % (v(vD + 1), v(vLane)))
    P('v_lshl_add_u32 %s, %s, 1, %s' % (v(vD), v(vD), v(vD + 1)))
    P('v_lshlrev_b32 %s, 2, %s' % (v(a_), v(a_)))
    P('s_mul_i32 %s, %s, 20' % (s(t2), s(sW)))
    for T in range(5):
        P('s_add_u32 %s, %s, %d' % (s(t3), s(t2), 4 * T))
        P('v_add_u32 %s, %s, %s' % (v(vD + 1), s(t3), v(vD)))
        P('v_xor_b32 %s, %s, %s' % (v(vD + 1), v(vD + 1), v(a_)))
        P('v_lshl_add_u32 %s, %s, 4, %s' % (v(vT + T), v(vD + 1), v(b_)))
    for it in range(4):
        P('s_waitcnt vmcnt(%d)' % (30 - 10 * it))
        P('s_barrier')
        for T in range(5):
            for k1 in range(2):
                for j in range(2):
                    row = (16 * j + 8 * k1) if atmap else (16 * k1 + 8 * j)
                    P('ds_read_b64_tr_b16 %s, %s offset:%d' % (R.sub(dst(T, 2 * it + k1), 2 * j, 2), v(vT + T), row * 1280))
            if it < 3:
                P('v_add_u32 %s, %d, %s' % (v(vT + T), 40960, v(vT + T)))
            P('s_waitcnt lgkmcnt(0)')
    P('s_barrier')


def stage_setup(P, vS, vF, drow, tt):
    P('s_lshl_b32 %s, %s, 2' % (s(t0), s(sW)))
    P('v_lshrrev_b32 %s, 4, %s' % (v(tt), v(vLane)))
    P('v_and_b32 %s, 15, %s' % (v(tt + 1), v(vLane)))
    P('v_add_u32 %s, %s, %s' % (v(tt + 2), s(t0), v(tt)))
    P('v_xor_b32 %s, %s, %s' % (v(tt + 1), v(tt + 1), v(tt + 2)))
    P('v_mul_u32_u24 %s, 1280, %s' % (v(tt), v(tt)))
    P('v_lshl_add_u32 %s, %s, 4, %s' % (v(vS), v(tt + 1), v(tt)))
    P('v_and_b32 %s, 31, %s' % (v(tt), v(vLane)))
    if drow is not None:
        P('v_add_u32 %s, %s, %s' % (v(tt), s(drow), v(tt)))
    P('v_and_b32 %s, 15, %s' % (v(tt + 1), v(tt)))
    P('v_lshrrev_b32 %s, 5, %s' % (v(tt + 2), v(vLane)))
    P('v_xor_b32 %s, %s, %s' % (v(tt + 1), v(tt + 1), v(tt + 2)))
    P('v_lshlrev_b32 %s, 8, %s' % (v(tt), v(tt)))
    for k in range(8):
        P('v_xor_b32 %s, %d, %s' % (v(tt + 2), 2 * k, v(tt + 1)))
        P('v_lshl_add_u32 %s, %s, 4, %s' % (v(vF + k), v(tt + 2), v(tt)))


def stage_one(vS, sbase, slds, cg, g, cgstride, st):
    return ['s_add_u32 %s, %s, %d' % (s(st), s(sbase), g * 20480 + cg * 256),
            's_add_u32 m0, %s, %d' % (s(slds), cg * cgstride + g * 4096),
            'buffer_load_dwordx4 %s, %s, %s offen sc1 lds' % (v(vS), ws, s(st))]


def local_stores(P, ins, emit=None):
    Ls, Lj = P.newlabel('ls'), P.newlabel('lj')
    pre = [x for x in ins if not x.startswith('buffer_store')]
    assert not pre
    P('s_cmp_lg_u32 %s, 1' % s(sFast))
    P('s_cbranch_scc1 %s' % Ls)
    (emit or (lambda f: [P(f(x)) for x in ins]))(lambda x: x)
    P('s_branch %s' % Lj)
    P.label(Ls)
    (emit or (lambda f: [P(f(x)) for x in ins]))(lambda x: x + ' sc1')
    P.label(Lj)


def read_mode(P, vt):
    R.read_mode(P, vt, sFast, t0, t1)


def div3(P, sq, sr, sx):
    P('s_mul_i32 %s, %s, 43' % (s(sq), s(sx)))
    P('s_lshr_b32 %s, %s, 7' % (s(sq), s(sq)))
    P('s_mul_i32 %s, %s, 3' % (s(sr), s(sq)))
    P('s_sub_u32 %s, %s, %s' % (s(sr), s(sx), s(sr)))


def poll_ge(P, soff, n, sneed, vt, srd_=None, sleep=2):
    Lp, Lok = P.newlabel('pg'), P.newlabel('pgok')
    P('v_min_u32 %s, %d, %s' % (v(vt), n - 1, v(vLane)))
    P('v_lshlrev_b32 %s, 2, %s' % (v(vt), v(vt)))
    P.label(Lp)
    P('buffer_load_dword %s, %s, %s, %s offen sc1' % (v(vt + 1), v(vt), ws, s(soff)))
    P('s_waitcnt vmcnt(0)')
    P('v_cmp_gt_u32 vcc, %s, %s' % (s(sneed), v(vt + 1)))
    P('s_cbranch_vccz %s' % Lok)
    if sleep:
        P('s_sleep %d' % sleep)
    spin_retry(P, Lp, Lok)
    P.label(Lok)


def poll_cached(P, soff, n, sneed, scache, vt, sleep=1):
    Lp, Lok = P.newlabel('pc'), P.newlabel('pcok')
    P('s_cmp_ge_u32 %s, %s' % (s(scache), s(sneed)))
    P('s_cbranch_scc1 %s' % Lok)
    P('v_min_u32 %s, %d, %s' % (v(vt), n - 1, v(vLane)))
    P('v_lshlrev_b32 %s, 2, %s' % (v(vt), v(vt)))
    P.label(Lp)
    P('buffer_load_dword %s, %s, %s, %s offen sc1' % (v(vt + 1), v(vt), ws, s(soff)))
    P('s_waitcnt vmcnt(0)')
    for k in range(n):
        P('v_readlane_b32 %s, %s, %d' % (s(scache if k == 0 else 7), v(vt + 1), k))
        if k:
            P('s_min_u32 %s, %s, s7' % (s(scache), s(scache)))
    P('s_cmp_ge_u32 %s, %s' % (s(scache), s(sneed)))
    P('s_cbranch_scc1 %s' % Lok)
    if sleep:
        P('s_sleep %d' % sleep)
    spin_retry(P, Lp, Lok)
    P.label(Lok)


def put_flag(P, soff, sval, vt, local=False):
    P('v_mov_b32 %s, %s' % (v(vt), s(sval) if isinstance(sval, int) else sval))
    P('v_mov_b32 %s, 0' % v(vt + 1))
    P('s_mov_b64 exec, 1')
    x = 'buffer_store_dword %s, %s, %s, %s offen' % (v(vt), v(vt + 1), ws, s(soff))
    if local:
        local_stores(P, [x])
    else:
        P(x + ' sc1')
    P('s_mov_b64 exec, -1')


def signal_wg(P, soff, sval, vt, local=False):
    L = P.newlabel('sig')
    P('s_waitcnt vmcnt(0)')
    P('s_barrier')
    P('s_cmp_lg_u32 %s, 0' % s(sW))
    P('s_cbranch_scc1 %s' % L)
    put_flag(P, soff, sval, vt, local)
    P.label(L)


def row_consts(P, vSel, vRo, vR2, tt):
    P('v_and_b32 %s, 15, %s' % (v(tt), v(vLane)))
    P('v_mov_b32 %s, 0x3f80' % v(tt + 1))
    for q in range(8):
        P('v_cmp_eq_u32 vcc, %d, %s' % (2 * q, v(tt)))
        P('v_cndmask_b32 %s, 0, %s, vcc' % (v(vSel + q), v(tt + 1)))
        P('v_cmp_eq_u32 vcc, %d, %s' % (2 * q + 1, v(tt)))
        P('v_cndmask_b32 %s, %s, 1.0, vcc' % (v(vSel + q), v(vSel + q)))
    P('v_lshrrev_b32 %s, 4, %s' % (v(tt), v(vLane)))
    P('v_and_b32 %s, 0xf0, %s' % (v(tt + 1), v(vL16)))
    P('v_mul_u32_u24 %s, 1280, %s' % (v(vRo), v(tt)))
    P('v_add_u32 %s, %s, %s' % (v(vRo), v(vRo), v(tt + 1)))
    P('v_lshrrev_b32 %s, 5, %s' % (v(vR2), v(vLane)))
    P('v_lshl_add_u32 %s, %s, 8, %s' % (v(tt + 1), v(vR2), v(tt + 1)))
    P('v_and_b32 %s, 1, %s' % (v(tt), v(tt)))
    P('v_lshl_add_u32 %s, %s, 3, %s' % (v(vR2), v(tt), v(tt + 1)))
    P('s_mov_b32 %s, 0x3727c5ac' % s(sEps))


def row_load(P, d, vR2, srd_, soff, sc=' sc1'):
    P('v_mov_b32 %s, 0' % v(d + 4))
    P('v_mov_b32 %s, 0' % v(d + 5))
    for k in range(3):
        if k == 2:
            P('s_mov_b64 exec, %s' % s(sLo32, 2))
        P('buffer_load_dwordx2 %s, %s, %s, %s offen offset:%d%s' % (v(d + 2 * k, 2), v(vR2), srd_, s(soff), 512 * k, sc))
    P('s_mov_b64 exec, -1')


def row_store(P, d, vR2, srd_, soff, sc=' sc1'):
    ins = ['buffer_store_dwordx2 %s, %s, %s, %s offen offset:%d' % (v(d + 2 * k, 2), v(vR2), srd_, s(soff), 512 * k) for k in range(3)]
    def emit(f):
        P(f(ins[0])); P(f(ins[1]))
        P('s_mov_b64 exec, %s' % s(sLo32, 2))
        P(f(ins[2]))
        P('s_mov_b64 exec, -1')
    if sc == 'local':
        local_stores(P, ins, emit)
    else:
        emit(lambda x: x + sc)


def unpack(P, dst, src):
    for i in range(6):
        P('v_and_b32 %s, 0xffff0000, %s' % (v(dst + 2 * i + 1), v(src + i)))
        P('v_lshlrev_b32 %s, 16, %s' % (v(dst + 2 * i), v(src + i)))


def pack(P, dst, src):
    for i in range(6):
        P(cvt(dst + i, src + 2 * i))


def xsum(P, r, tt):
    for n in (8, 4, 2, 1):
        P('v_add_f32_dpp %s, %s, %s row_ror:%d row_mask:0xf bank_mask:0xf' % (v(r), v(r), v(r), n))
    for sw in ('16', '32'):
        P('v_mov_b32 %s, %s' % (v(tt), v(r)))
        P('v_permlane%s_swap_b32 %s, %s' % (sw, v(r), v(tt)))
        P('v_add_f32 %s, %s, %s' % (v(r), v(r), v(tt)))


def rnd(P, r, src=None):
    P('v_cvt_pk_bf16_f32 %s, %s, %s' % (v(r), v(r if src is None else src), v(r if src is None else src)))
    P('v_and_b32 %s, 0xffff0000, %s' % (v(r), v(r)))


def rstd(P, r, var):
    rnd(P, r, var)
    P('v_add_f32 %s, %s, %s' % (v(r), s(sEps), v(r)))
    rnd(P, r)
    P('v_sqrt_f32 %s, %s' % (v(r), v(r)))
    rnd(P, r)
    P('v_rcp_f32 %s, %s' % (v(r), v(r)))


def layernorm(P, X, tt):
    P(pk('add', tt, X, X + 2)); P(pk('add', tt + 2, X + 4, X + 6)); P(pk('add', tt + 4, X + 8, X + 10))
    P(pk('add', tt, tt, tt + 2)); P(pk('add', tt, tt, tt + 4))
    P('v_add_f32 %s, %s, %s' % (v(tt), v(tt), v(tt + 1)))
    xsum(P, tt, tt + 1)
    P('v_mul_f32 %s, 0x3acccccd, %s' % (v(tt), v(tt)))
    rnd(P, tt + 4, tt)
    P('v_sub_f32 %s, %s, %s' % (v(tt), v(tt + 4), v(tt)))
    for i in range(0, 12, 2):
        if i == 8:
            P('s_mov_b64 exec, %s' % s(sLo32, 2))
        P('v_pk_add_f32 %s, %s, %s op_sel_hi:[1,0] neg_lo:[0,1] neg_hi:[0,1]' % (v(X + i, 2), v(X + i, 2), v(tt + 4, 2)))
    P('s_mov_b64 exec, -1')
    P(pk('mul', tt + 2, X, X))
    for i in range(2, 12, 2):
        P('v_pk_fma_f32 %s, %s, %s, %s' % (v(tt + 2, 2), v(X + i, 2), v(X + i, 2), v(tt + 2, 2)))
    P('v_add_f32 %s, %s, %s' % (v(tt + 2), v(tt + 2), v(tt + 3)))
    xsum(P, tt + 2, tt + 3)
    P('v_mul_f32 %s, 0x3acccccd, %s' % (v(tt + 2), v(tt + 2)))
    P('v_fma_f32 %s, -%s, %s, %s' % (v(tt + 2), v(tt), v(tt), v(tt + 2)))
    P('v_max_f32 %s, 0, %s' % (v(tt + 3), v(tt + 2)))
    rstd(P, tt + 2, tt + 3)
    for i in range(0, 12, 2):
        P('v_pk_mul_f32 %s, %s, %s op_sel_hi:[1,0]' % (v(X + i, 2), v(X + i, 2), v(tt + 2, 2)))


def layernorm_again(P, X, tt):
    P('v_mul_f32 %s, %s, %s' % (v(tt), v(tt), v(tt + 2)))
    P('v_mul_f32 %s, %s, %s' % (v(tt + 3), v(tt + 3), v(tt + 2)))
    P('v_mul_f32 %s, %s, %s' % (v(tt + 3), v(tt + 3), v(tt + 2)))
    rnd(P, tt)
    rstd(P, tt + 2, tt + 3)
    P('v_mul_f32 %s, %s, %s' % (v(tt), v(tt), v(tt + 2)))
    for i in range(0, 12, 2):
        P('v_pk_fma_f32 %s, %s, %s, %s op_sel_hi:[1,0,0]' % (v(X + i, 2), v(X + i, 2), v(tt + 2, 2), v(tt, 2)))


def gather_sum(P, Dd, B, vSel, vRo, vRoLast, sbase, nq, st):
    if isinstance(B, int):
        B0 = B
        B = lambda n: v(B0 + 4 * n, 4)
    for q in range(nq):
        P('s_add_u32 %s, %s, %d' % (s(st), s(sbase), 5120 * q))
        for cg in range(5):
            P('buffer_load_dwordx4 %s, %s, %s, %s offen offset:%d sc1' % (B(5 * q + cg), v(vRoLast if q == nq - 1 else vRo), ws, s(st), 256 * cg))
    for q in range(nq):
        for cg in range(5):
            d = v(Dd + 4 * (cg >> 1), 4)
            P('s_waitcnt vmcnt(%d)' % (5 * (nq - 1 - q) + 4 - cg))
            P('v_mfma_f32_16x16x32_bf16 %s, %s, %s, %s' % (d, v(vSel + 4 * (cg & 1), 4), B(5 * q + cg), '0' if (q == 0 and cg & 1 == 0) else d))


def add_rounded(P, X, Dd, Rp, tt):
    unpack(P, X, Rp)
    pack(P, tt, Dd)
    unpack(P, Dd, tt)
    for i in range(0, 12, 2):
        P(pk('add', X + i, X + i, Dd + i))
    pack(P, Rp, X)


def b5_setup(P, vTW, vTR, vGO, ldsbase, nprod, tt):
    P('s_mul_i32 %s, %s, 5120' % (s(t0), s(sW)))
    P('s_add_u32 %s, %s, %d' % (s(t0), s(t0), ldsbase))
    P('v_and_b32 %s, 31, %s' % (v(tt), v(vLane)))
    P('v_mul_u32_u24 %s, 80, %s' % (v(tt), v(tt)))
    P('v_lshrrev_b32 %s, 5, %s' % (v(tt + 1), v(vLane)))
    P('v_lshl_add_u32 %s, %s, 4, %s' % (v(tt), v(tt + 1), v(tt)))
    P('v_add_u32 %s, %s, %s' % (v(vTW), s(t0), v(tt)))
    if isinstance(nprod, int):
        P('s_mov_b32 %s, %d' % (s(t1), nprod * 1280))
    else:
        P('s_mul_i32 %s, %s, 1280' % (s(t1), nprod))
    P('v_lshrrev_b32 %s, 2, %s' % (v(tt), v(vLane)))
    P('v_and_b32 %s, 0x30, %s' % (v(tt + 1), v(vL16)))
    P('v_mul_u32_u24 %s, 80, %s' % (v(tt + 2), v(tt)))
    P('v_add3_u32 %s, %s, %s, %s' % (v(vTR), v(tt + 2), v(tt + 1), s(t0)))
    P('v_mul_lo_u32 %s, %s, %s' % (v(tt + 2), v(tt), s(t1)))
    P('v_add_u32 %s, %s, %s' % (v(vGO), v(tt + 2), v(tt + 1)))


def b5(P, W2, ldsU, U, acc, pkd, vTW, vTR, vGO, sdst0, sdst1, extra=()):
    def emit(f):
        E = LgkmTrack(P)
        for ks in range(8):
            E('ds_read_b128 %s, %s offset:%d' % (v(U + 4 * ks, 4), v(vL16), ldsU + 1024 * ks))
        def stA(T):
            a_ = acc + 16 * (T & 1)
            x = [cvt(pkd + i, a_ + 2 * i) for i in range(8)]
            x += ['v_permlane32_swap_b32 %s, %s' % (v(pkd + 4 * h + y), v(pkd + 4 * h + 2 + y)) for h in range(2) for y in range(2)]
            x += ['ds_write_b128 %s, %s offset:%d' % (v(vTW), v(pkd + 4 * h, 4), (T & 1) * 2560 + 32 * h) for h in range(2)]
            x += ['ds_read_b128 %s, %s offset:%d' % (v(pkd + 8 + 4 * q, 4), v(vTR), (T & 1) * 2560 + 1280 * q) for q in range(2)]
            return x
        stB = lambda T: [f('buffer_store_dwordx4 %s, %s, %s, %s offen offset:%d' % (v(pkd + 8 + 4 * q, 4), v(vGO), ws, s(sdst1 if q else sdst0), 64 * T)) for q in range(2)]
        for T in range(5):
            a_ = acc + 16 * (T & 1)
            main = ['v_mfma_f32_32x32x16_bf16 %s, %s, %s, %s' % (v(a_, 16), W2(T, ks), v(U + 4 * ks, 4), '0' if ks == 0 else v(a_, 16)) for ks in range(8)]
            fill = {}
            if T >= 2:
                fill = {0: stB(T - 2)[:1], 7: stB(T - 2)[1:]}
            if T >= 1:
                x = stA(T - 1)
                for g_, part in ((1, x[0:4]), (2, x[4:8]), (3, x[8:10]), (4, x[12:13]), (5, x[10:12]), (6, x[13:14]), (7, x[14:16])):
                    fill.setdefault(g_, []).extend(part)
            E.weave(main, fill)
            if PX['b5cy'] and T in (0, 1, 4):
                cy(P, {0: 7, 1: 8, 4: 9}[T])
        for x in stB(3) + stA(4) + stB(4):
            E(x)
    local_stores(P, [], emit)


def flag_offsets(P):
    P('s_sub_u32 %s, %s, 2' % (s(t0), s(S_CLS)))
    P('s_lshr_b32 %s, %s, 1' % (s(sK0), s(t0)))
    P('s_and_b32 %s, %s, 1' % (s(t0), s(t0)))
    P('s_lshl_b32 %s, %s, 4' % (s(t0), s(t0)))
    P('s_lshr_b32 %s, %s, 1' % (s(t1), s(S_IDX)))
    P('s_add_u32 %s, %s, %s' % (s(sK1), s(t0), s(t1)))
    P('s_and_b32 %s, %s, 1' % (s(sK2), s(S_IDX)))
    P('s_lshl_b32 %s, %s, 7' % (s(sA), s(sK1)))
    P('s_lshl_b32 %s, %s, 3' % (s(t0), s(sK0)))
    P('s_add_u32 %s, %s, %s' % (s(sA), s(sA), s(t0)))
    P('s_lshl_b32 %s, %s, 2' % (s(t0), s(sK2)))
    P('s_add_u32 %s, %s, %s' % (s(sA), s(sA), s(t0)))
    P('s_add_u32 %s, %s, 0x%x' % (s(sA), s(sA), PFLAG))
    P('s_lshl_b32 %s, %s, 2' % (s(sB), s(sC)))
    P('s_add_u32 %s, %s, 0x%x' % (s(sB), s(sB), LNFLAG))


def init_clear(P):
    L, L2 = P.newlabel('ic'), P.newlabel('ic2')
    P('s_cmp_lg_u32 %s, 0' % s(sW))
    P('s_cbranch_scc1 %s' % L)
    put_flag(P, sA, '0', 4)
    put_flag(P, sB, '0', 4)
    P('s_cmp_lg_u32 %s, 0' % s(sC))
    P('s_cbranch_scc1 %s' % L)
    for i in range(4):
        P('v_mov_b32 %s, 0' % v(4 + i))
    for off in (ATFLAG, ATFLAG + 1024, ATFLAG + 2048, ZB - 2560, ZB - 1536, ZB - 1024, ZB + 2048 * 1280, ZB + 2048 * 1280 + 1024, ZB + 2048 * 1280 + 1536):
        P('s_mov_b32 %s, 0x%x' % (s(t0), off))
        P('buffer_store_dwordx4 %s, %s, %s, %s offen sc1' % (v(4, 4), v(vL16), ws, s(t0)))
    P.label(L)


def role_ln0(P):
    Lskip = P.newlabel('ln0skip')
    vR2, X, Rp, tt = 32, 44, 56, 80
    P('s_cmp_ge_u32 %s, 128' % s(sC))
    P('s_cbranch_scc1 %s' % Lskip)
    for r in range(4):
        unpack(P, X, Rp + 6 * r)
        layernorm(P, X, tt)
        pack(P, Rp + 6 * r, X)
        P('s_add_u32 %s, %s, 0x%x' % (s(t1), s(sE), XN + r * 1280))
        row_store(P, Rp + 6 * r, vR2, ws, t1)
    signal_wg(P, sB, '1', 34)
    P.label(Lskip)
    tl(P, 2)
    P('s_waitcnt vmcnt(0)')


def ln0_fetch(P):
    Lskip = P.newlabel('ln0f')
    vR2, Rp = 32, 56
    row_consts(P, 36, 33, vR2, 80)
    P('s_cmp_ge_u32 %s, 128' % s(sC))
    P('s_cbranch_scc1 %s' % Lskip)
    load_ptr(P, KA_X, S * D * 2, S_OUT)
    P('s_lshl_b32 %s, %s, 2' % (s(sE), s(sC)))
    P('s_add_u32 %s, %s, %s' % (s(sE), s(sE), s(sW)))
    P('s_mul_i32 %s, %s, %d' % (s(sE), s(sE), 4 * 1280))
    for r in range(4):
        P('s_add_u32 %s, %s, %d' % (s(t1), s(sE), r * 1280))
        row_load(P, Rp + 6 * r, vR2, s(S_OUT, 4), t1, '')
    P.label(Lskip)


def role_p(P):
    vS, vF, Bf, acc, pkd, vSt = 8, 16, 24, 64, 96, 104
    sEx0 = 46
    Wf = lambda kk: a(4 * kk, 4)
    sMat, sH, sPar = sK0, sK1, sK2
    sX0, sL0, sDst, sLnOk = sC2, sD, sE, sF
    P('s_lshl_b32 %s, %s, 3' % (s(t0), s(sMat)))
    P('s_add_u32 %s, %s, %d' % (s(t0), s(t0), KA_WQ))
    P('s_load_dwordx2 s[76:77], s[0:1], %s' % s(t0))
    P('s_waitcnt lgkmcnt(0)')
    srd(P, S_TMP, 76, 640 * 8192)
    P('s_lshl_b32 %s, %s, 8' % (s(t3), s(sH)))
    def between():
        P('s_waitcnt vmcnt(40)')
        P('s_barrier')
        R.arrive(P)
        tl(P, 1)
        role_ln0(P)
    load_w1(P, Wf, 8192, t3, 24, between)
    tl(P, 3)
    stage_setup(P, vS, vF, None, 24)
    P('v_and_b32 %s, 15, %s' % (v(24), v(vLane)))
    P('v_bfe_u32 %s, %s, 4, 1' % (v(25), v(vLane)))
    P('v_lshrrev_b32 %s, 5, %s' % (v(26), v(vLane)))
    P('v_lshl_add_u32 %s, %s, 4, %s' % (v(24), v(26), v(24)))
    P('v_lshlrev_b32 %s, 4, %s' % (v(24), v(24)))
    P('v_lshl_add_u32 %s, %s, 10, %s' % (v(vSt), v(25), v(24)))
    P('s_cmp_eq_u32 %s, 0' % s(sMat))
    P('s_cselect_b32 %s, 3, %s' % (s(t0), s(sMat)))
    P('s_sub_u32 %s, %s, 1' % (s(t0), s(t0)))
    P('s_lshl_b32 %s, %s, 24' % (s(sDst), s(t0)))
    P('s_lshl_b32 %s, %s, 2' % (s(t0), s(sH)))
    P('s_add_u32 %s, %s, %s' % (s(t0), s(t0), s(sW)))
    P('s_lshl_b32 %s, %s, 11' % (s(t0), s(t0)))
    P('s_add_u32 %s, %s, %s' % (s(sDst), s(sDst), s(t0)))
    P('s_lshl_b32 %s, %s, 18' % (s(t0), s(sPar)))
    P('s_add_u32 %s, %s, %s' % (s(sDst), s(sDst), s(t0)))
    P('s_add_u32 %s, %s, 0x%x' % (s(sDst), s(sDst), KX))
    P('s_mul_i32 %s, %s, 5120' % (s(t1), s(sW)))
    P('s_lshl_b32 %s, %s, 10' % (s(sLdsW), s(sW)))
    P('s_mul_i32 %s, %s, 40960' % (s(t0), s(sPar)))
    P('s_add_u32 %s, %s, %s' % (s(sX0), s(t0), s(t1)))
    P('s_add_u32 %s, %s, 0x%x' % (s(sX0), s(sX0), XN))
    P('s_cmp_eq_u32 %s, 0' % s(sW))
    P('s_cselect_b32 %s, 1, 0' % s(sEx0))
    P('s_mov_b32 %s, 0' % s(sEx0 + 1))
    P('v_mov_b32 v105, 0')
    R.wait_all(P)
    P('s_mov_b32 %s, 1' % s(sNeed))
    P('s_mov_b32 %s, 0x%x' % (s(t0), LNFLAG))
    poll_ge(P, t0, 64, sNeed, 24, sleep=1)
    P('s_mov_b32 %s, 0x%x' % (s(t0), LNFLAG + 256))
    poll_ge(P, t0, 64, sNeed, 24, sleep=1)
    dma = lambda slot: [stage_one(vS, sX0, sLdsW, cg, g, 8192, t4) for cg in range(5) for g in range(2)]
    for i in range(2):
        P('s_add_u32 %s, %s, %d' % (s(sL0), s(sLdsW), i * 40960))
        for cg in range(5):
            for g in range(2):
                for x in stage_one(vS, sX0, sL0, cg, g, 8192, t4):
                    P(x)
        P('s_add_u32 %s, %s, %d' % (s(sX0), s(sX0), 81920))
    P('s_mov_b32 %s, 0' % s(sIt))
    P('s_waitcnt vmcnt(10)')
    if DIAG[0]:
        tl(P, 4); P('s_waitcnt vmcnt(0)')
    P('s_barrier')
    rd = ['ds_read_b128 %s, %s offset:%d' % (v(Bf + 4 * (kk % 8), 4), v(vF + (kk & 7)), (kk >> 3) * 8192) for kk in range(40)]
    for kk in range(5):
        P(rd[kk])
    epi = lambda a_: [cvt(pkd + 2 * n + y, a_ + 4 * i + 2 * y) for n, i in enumerate((0, 2, 1, 3)) for y in range(2)]
    sts = ['buffer_store_dwordx4 %s, %s, %s, %s offen offset:%d sc1' % (v(pkd + 4 * y, 4), v(vSt), ws, s(sDst), 512 * y) for y in range(2)]
    if DIAG[0] in (1, 2):
        P('s_memtime s[90:91]'); P('s_mov_b32 s87, 0'); P('s_mov_b32 s88, 0')
    Lv, Lend = P.newlabel('P_v'), P.newlabel('P_end')
    P('s_cmp_eq_u32 %s, 2' % s(sMat))
    P('s_cbranch_scc1 %s' % Lv)
    for isv in (0, 1):
        if isv:
            P.label(Lv)
        Ltop = P.newlabel('P_top')
        P.label(Ltop)
        for u in range(6):
            slot, a_, ap = u % 3, acc + 16 * (u & 1), acc + 16 * (1 - (u & 1))
            E = LgkmTrack(P)
            E.q = [Inst(x).wr for x in rd[:5]]
            main = []
            for kk in range(40):
                A_, B_ = (v(Bf + 4 * (kk % 8), 4), Wf(kk)) if isv else (Wf(kk), v(Bf + 4 * (kk % 8), 4))
                main.append('v_mfma_f32_32x32x16_bf16 %s, %s, %s, %s' % (v(a_, 16), A_, B_, '0' if kk == 0 else v(a_, 16)))
            fill = {}
            addfill(fill, 0, rd[5:])
            e = epi(ap)
            for k in range(4):
                fill.setdefault(2 + k, []).extend(e[2 * k:2 * k + 2])
            addfill(fill, 6, sts if not PX['nost'] else [])
            fill[0] += ['s_min_u32 %s, %s, 1' % (s(t0), s(sIt)), 's_lshl_b32 %s, %s, 19' % (s(t0), s(t0)),
                        's_add_u32 %s, %s, %d' % (s(sL0), s(sLdsW), ((slot + 2) % 3) * 40960)]
            fill[8] += ['s_add_u32 %s, %s, %s' % (s(sDst), s(sDst), s(t0))]
            k = 8
            for cg in range(5):
                for g in range(2):
                    if not PX['nodma']:
                        fill.setdefault(k, []).extend(stage_one(vS, sX0, sL0, cg, g, 8192, t4))
                    k += 2
            addfill(fill, 28, ['v_add_u32 %s, %d, %s' % (v(vF + i), 40960 if slot < 2 else -81920, v(vF + i)) for i in range(8)])
            fill[30] += ['s_add_u32 %s, %s, %d' % (s(sX0), s(sX0), 81920), 's_max_u32 %s, %s, 1' % (s(t0), s(sIt)),
                         's_sub_u32 %s, %s, 1' % (s(t0), s(t0))]
            fill[31] += ['v_mov_b32 v106, %s' % s(t0), 's_add_u32 %s, %s, 1' % (s(sIt), s(sIt))]
            E.weave(main[:36], fill)
            if DIAG[0] == 2:
                P('s_memtime s[82:83]'); P('s_waitcnt lgkmcnt(0)')
            P('s_waitcnt vmcnt(12) lgkmcnt(0)')
            if DIAG[0] == 2:
                P('s_memtime s[84:85]'); P('s_waitcnt lgkmcnt(0)'); P('s_sub_u32 s86, s84, s82'); P('s_add_u32 s87, s87, s86')
            P('s_barrier')
            if DIAG[0] == 2:
                P('s_memtime s[82:83]'); P('s_waitcnt lgkmcnt(0)'); P('s_sub_u32 s86, s82, s84'); P('s_add_u32 s88, s88, s86')
            E.q = []
            P(rd[0])
            P('s_mov_b64 exec, %s' % s(sEx0, 2))
            P('buffer_store_dword v106, v105, %s, %s offen sc1' % (ws, s(sA)))
            P('s_mov_b64 exec, -1')
            for k in range(36, 40):
                P(main[k]); P(rd[k - 35])
            P('s_cmp_eq_u32 %s, 32' % s(sIt))
            P('s_cbranch_scc1 %s' % Lend) if u & 1 else None
        P('s_branch %s' % Ltop)
    P.label(Lend)
    if DIAG[0] in (1, 2):
        P('s_memtime s[92:93]'); P('s_waitcnt lgkmcnt(0)'); P('s_sub_u32 s89, s92, s90')
        P('s_lshl_b32 s80, s2, 2'); P('s_add_u32 s80, s80, %s' % s(sW)); P('s_lshl_b32 s80, s80, 9'); P('s_add_u32 s80, s80, 0x%x' % TL)
        for k in range(3):
            P('v_mov_b32 v108, s%d' % (87 + k)); P('buffer_store_dword v108, v105, %s, s80 offen offset:%d' % (ws, 4 * (8 + k)))
    for x in epi(acc + 16) + sts:
        P(x)
    P('s_waitcnt lgkmcnt(0)')
    signal_wg(P, sA, '32', 28)


def role_at(P):
    sSet, sH = sK0, S_IDX
    sKQ, sKMo, sPart, sRow = sA, sB, sC2, sD
    sFlagAT, sFlagZ = sE, sF
    W2 = lambda T, ks: a(32 * T + 4 * ks, 4)
    vTW, vTR, vGO, vOW, vSel, vRo, vR2 = 2, 3, 4, 5, 8, 6, 7
    Q, K, KMr, V, VMr = 20, 36, 68, 84, 100
    S_, O_, Bx, Bm, mx, tm = 108, 120, 136, 140, 142, 143
    U, acc, pkd = 144, 176, 208
    Dd, X, Rp, tt, Rq = 224, 108, 236, 128, 144
    GB = lambda n: a(160 + 4 * n, 4) if n < 24 else v(144 + 4 * (n - 24), 4)
    L_O, L_T = 0, 8192
    P('s_sub_u32 %s, %s, 2' % (s(sSet), s(S_CLS)))
    load_ptr(P, KA_WO, 4096 * 1280)
    P('s_mul_i32 %s, %s, %d' % (s(t4), s(sH), 128 * 1280))
    load_w2(P, W2, t4, True, 20)
    b5_setup(P, vTW, vTR, vGO, L_T, 32, 20)
    row_consts(P, vSel, vRo, vR2, 20)
    load_ptr(P, KA_X, S * D * 2, S_OUT)
    P('s_and_b32 %s, %s, 1' % (s(t0), s(sW)))
    P('s_lshr_b32 %s, %s, 1' % (s(t1), s(sW)))
    P('v_lshrrev_b32 v20, 5, %s' % v(vLane))
    P('v_bfe_u32 v21, %s, 4, 1' % v(vLane))
    P('v_and_b32 v22, 15, %s' % v(vLane))
    P('v_lshl_add_u32 v21, v21, 5, v22')
    P('v_lshlrev_b32 v21, 4, v21')
    P('v_lshl_add_u32 v21, v20, 10, v21')
    P('s_lshl_b32 %s, %s, 12' % (s(t2), s(t1)))
    P('s_lshl_b32 %s, %s, 8' % (s(t3), s(t0)))
    P('s_add_u32 %s, %s, %s' % (s(t2), s(t2), s(t3)))
    P('v_add_u32 %s, %s, v21' % (v(vOW), s(t2)))
    P('s_lshl_b32 %s, %s, 4' % (s(t2), s(t0)))
    P('v_add_u32 v22, %s, v22' % s(t2))
    P('v_lshrrev_b32 v20, 4, %s' % v(vLane))
    P('v_lshlrev_b32 v20, 2, v20')
    P('v_sub_u32 v22, v22, v20')
    for k in range(8):
        P('v_cmp_le_i32 %s, %d, v22' % (s(sMask + 2 * k, 2), 16 * (k >> 2) + (k & 3)))
    P('s_mov_b32 %s, 0x3e0293ee' % s(sPk))
    P('s_mov_b32 %s, 0x3e0293ee' % s(sPk + 1))
    P('s_lshl_b32 %s, %s, 10' % (s(sPk + 2), s(t0)))
    P('s_lshl_b32 %s, %s, 12' % (s(sPk + 3), s(t1)))
    P('s_lshl_b32 %s, %s, 11' % (s(sPk + 4), s(t1)))
    P('s_lshl_b32 %s, %s, 7' % (s(t2), s(sSet)))
    P('s_lshl_b32 %s, %s, 2' % (s(t3), s(sH)))
    P('s_add_u32 %s, %s, %s' % (s(t2), s(t2), s(t3)))
    P('s_add_u32 %s, %s, 0x%x' % (s(sFlagAT), s(t2), ATFLAG))
    P('s_add_u32 %s, %s, 0x%x' % (s(sFlagZ), s(t2), ZFLAG))
    sGD, sGDm = 46, 47
    P('s_add_u32 %s, %s, 0x%x' % (s(sGDm), s(t2), GDFLAG))
    P('s_lshl_b32 %s, %s, 7' % (s(sGD), s(sSet)))
    P('s_add_u32 %s, %s, 0x%x' % (s(sGD), s(sGD), GDFLAG))
    P('v_and_b32 v249, 31, %s' % v(vLane))
    P('v_lshlrev_b32 v249, 2, v249')
    P('s_mov_b32 %s, %s' % (s(sSeg), s(sSet)))
    P('s_mov_b32 %s, 0' % s(sIt))
    sPc, sKc = sPk + 5, sPk + 6
    P('s_mov_b32 %s, 0' % s(sPc))
    P('s_mov_b32 %s, 0' % s(sKc))
    tl(P, 6)

    def fetch_qkv(ahead):
        P('s_lshl_b32 %s, %s, 7' % (s(t0), s(sH)))
        P('s_add_u32 %s, %s, %d' % (s(sNeed), s(sSeg), 2 + 3 * ahead))
        P('s_lshr_b32 %s, %s, 1' % (s(sNeed), s(sNeed)))
        P('s_min_u32 %s, %s, 32' % (s(sNeed), s(sNeed)))
        poll_cached(P, t0, 6, sNeed, sPc, 246)
        P('s_add_u32 %s, %s, %d' % (s(t0), s(sSeg), 3 * ahead))
        P('s_lshl_b32 %s, %s, 5' % (s(t0), s(t0)))
        P('s_add_u32 %s, %s, %s' % (s(t0), s(t0), s(sH)))
        P('s_lshl_b32 %s, %s, 13' % (s(sKQ), s(t0)))
        P('s_add_u32 %s, %s, 0x%x' % (s(sKQ), s(sKQ), KX))
        q0, q1, k1, v0 = 96, 97, 98, 99
        P('s_add_u32 %s, %s, 4096' % (s(k1), s(sKQ)))
        P('s_add_u32 %s, %s, %s' % (s(q0), s(sKQ), s(sPk + 2)))
        P('s_add_u32 %s, %s, 0x%x' % (s(q0), s(q0), QX - KX))
        P('s_add_u32 %s, %s, 4096' % (s(q1), s(q0)))
        P('s_add_u32 %s, %s, %s' % (s(v0), s(sKQ), s(sPk + 3)))
        P('s_add_u32 %s, %s, 0x%x' % (s(v0), s(v0), VX - KX))
        ld = lambda d, so, off: 'buffer_load_dwordx4 %s, %s, %s, %s offen offset:%d sc1 nt' % (v(d, 4), v(vL16), ws, s(so), off)
        return ([ld(K + 8 * w_ + 4 * t, sKQ if w_ < 2 else k1, (w_ & 1) * 2048 + t * 1024) for w_ in range(4) for t in range(2)] +
                [ld(Q + 4 * w_, q0 if w_ < 2 else q1, (w_ & 1) * 2048) for w_ in range(4)] +
                [ld(V + 4 * i, v0, 1024 * i) for i in range(4)])
    for x in fetch_qkv(0):
        P(x)
    P('s_mul_i32 %s, %s, 0x%x' % (s(sPart), s(sSet), APART_S))
    P('s_add_u32 %s, %s, 0x%x' % (s(sPart), s(sPart), APART))
    P('s_mul_i32 %s, %s, %d' % (s(t0), s(sH), 32 * 1280))
    P('s_add_u32 %s, %s, %s' % (s(t0), s(t0), s(sPart)))
    P('s_mul_i32 %s, %s, 10240' % (s(t1), s(sW)))
    P('s_add_u32 %s, %s, %s' % (s(t0), s(t0), s(t1)))
    for i in range(10):
        P('buffer_load_dwordx4 %s, %s, %s, %s offen sc1' % (v(U, 4), v(vL16), ws, s(t0)))
        P('s_add_u32 %s, %s, 1024' % (s(t0), s(t0)))
    P('s_waitcnt vmcnt(0)')
    cy_init(P)
    Ltop = P.newlabel('AT_top')
    P.label(Ltop)
    P('s_lshl_b32 %s, %s, 5' % (s(t0), s(sSeg)))
    P('s_add_u32 %s, %s, %s' % (s(t0), s(t0), s(sH)))
    P('s_lshl_b32 %s, %s, 12' % (s(sKMo), s(t0)))
    P('s_add_u32 %s, %s, 0x%x' % (s(sKMo), s(sKMo), KM))
    mm = lambda d, a_, b_, c_: P('v_mfma_f32_16x16x32_bf16 %s, %s, %s, %s' % (v(d, 4), v(a_, 4), v(b_, 4), c_))
    for w_ in range(4):
        for t in range(2):
            mm(S_ + 4 + 4 * t, K + 8 * w_ + 4 * t, Q + 4 * w_, '0' if w_ == 0 else v(S_ + 4 + 4 * t, 4))
    P('s_lshl_b32 %s, %s, 7' % (s(t0), s(sH)))
    P('s_add_u32 %s, %s, 0x%x' % (s(t0), s(t0), KMFLAG))
    P('s_add_u32 %s, %s, 1' % (s(sNeed), s(sSeg)))
    poll_cached(P, t0, 2, sNeed, sKc, 246)
    cy(P, 0)
    P('buffer_load_dword v248, v249, %s, %s offen sc1' % (ws, s(sGD)))
    for w_ in range(4):
        P('buffer_load_dwordx4 %s, %s, %s, %s offen offset:%d sc1' % (v(KMr + 4 * w_, 4), v(vL16), ws, s(sKMo), 1024 * w_))
    P('s_add_u32 %s, %s, %s' % (s(t0), s(sKMo), s(sPk + 4)))
    P('s_add_u32 %s, %s, 0x%x' % (s(t0), s(t0), VM - KM))
    for i in range(2):
        P('buffer_load_dwordx4 %s, %s, %s, %s offen offset:%d sc1' % (v(VMr + 4 * i, 4), v(vL16), ws, s(t0), 1024 * i))
    P('v_mov_b32 %s, 0xff800000' % v(tm))
    for k in range(8):
        P('v_cndmask_b32 %s, %s, %s, %s' % (v(S_ + 4 + k), v(tm), v(S_ + 4 + k), s(sMask + 2 * k, 2)))
    P('v_max3_f32 %s, %s, %s, %s' % (v(mx), v(S_ + 4), v(S_ + 5), v(S_ + 6)))
    P('v_max3_f32 %s, %s, %s, %s' % (v(mx), v(mx), v(S_ + 7), v(S_ + 8)))
    P('v_max3_f32 %s, %s, %s, %s' % (v(mx), v(mx), v(S_ + 9), v(S_ + 10)))
    P('v_max_f32 %s, %s, %s' % (v(mx), v(mx), v(S_ + 11)))
    for w_ in range(4):
        P('s_waitcnt vmcnt(%d)' % (5 - w_))
        mm(S_, KMr + 4 * w_, Q + 4 * w_, '0' if w_ == 0 else v(S_, 4))
    cy(P, 1)
    P('v_max3_f32 %s, %s, %s, %s' % (v(mx), v(mx), v(S_), v(S_ + 1)))
    P('v_max3_f32 %s, %s, %s, %s' % (v(mx), v(mx), v(S_ + 2), v(S_ + 3)))
    for sw in ('16', '32'):
        P('v_mov_b32 %s, %s' % (v(tm), v(mx)))
        P('v_permlane%s_swap_b32 %s, %s' % (sw, v(mx), v(tm)))
        P('v_max_f32 %s, %s, %s' % (v(mx), v(mx), v(tm)))
    P('v_mul_f32 %s, %s, %s' % (v(mx), s(sPk), v(mx)))
    for r in range(0, 12, 2):
        P('v_pk_fma_f32 %s, %s, %s, %s op_sel_hi:[1,1,0] neg_lo:[0,0,1] neg_hi:[0,0,1]' % (v(S_ + r, 2), v(S_ + r, 2), s(sPk, 2), v(mx, 2)))
    for r in range(12):
        P('v_exp_f32 %s, %s' % (v(S_ + r), v(S_ + r)))
    for i in range(4):
        P(cvt(Bx + i, S_ + 4 + 2 * i))
    for i in range(2):
        P(cvt(Bm + i, S_ + 2 * i))
    P('s_waitcnt vmcnt(0)')
    for i in range(4):
        mm(O_ + 4 * i, V + 4 * i, Bx, '0')
    for i in range(4):
        P('v_mfma_f32_16x16x16_bf16 %s, %s, %s, %s' % (v(O_ + 4 * i, 4), v(VMr + 2 * i, 2), v(Bm, 2), v(O_ + 4 * i, 4)))
    P(pk('add', S_, S_, S_ + 2)); P(pk('add', S_ + 4, S_ + 4, S_ + 6)); P(pk('add', S_ + 8, S_ + 8, S_ + 10))
    P(pk('add', S_ + 4, S_ + 4, S_ + 8))
    P('v_add_f32 %s, %s, %s' % (v(S_), v(S_), v(S_ + 1)))
    P('v_add_f32 %s, %s, %s' % (v(S_ + 4), v(S_ + 4), v(S_ + 5)))
    P('v_fma_f32 %s, %s, 0.5, %s' % (v(mx), v(S_), v(S_ + 4)))
    for sw in ('16', '32'):
        P('v_mov_b32 %s, %s' % (v(tm), v(mx)))
        P('v_permlane%s_swap_b32 %s, %s' % (sw, v(mx), v(tm)))
        P('v_add_f32 %s, %s, %s' % (v(mx), v(mx), v(tm)))
    P('v_rcp_f32 %s, %s' % (v(mx), v(mx)))
    for r in range(0, 16, 2):
        P('v_pk_mul_f32 %s, %s, %s op_sel_hi:[1,0]' % (v(O_ + r, 2), v(O_ + r, 2), v(mx, 2)))
    for i in range(8):
        P(cvt(pkd + i, O_ + 2 * i))
    for i in range(2):
        P('ds_write_b128 %s, %s offset:%d' % (v(vOW), v(pkd + 4 * i, 4), L_O + 2048 * i))
    cy(P, 2)
    Lfree = P.newlabel('AT_free')
    P('v_cmp_gt_u32 vcc, %s, v248' % s(sIt))
    P('s_cbranch_vccz %s' % Lfree)
    poll_ge(P, sGD, 32, sIt, 246, sleep=1)
    P.label(Lfree)
    P('s_mul_i32 %s, %s, 1280' % (s(t0), s(sH)))
    P('s_mul_i32 %s, %s, 320' % (s(t1), s(sW)))
    P('s_add_u32 %s, %s, %s' % (s(t0), s(t0), s(t1)))
    P('s_add_u32 %s, %s, %s' % (s(t0), s(t0), s(sPart)))
    P('s_add_u32 %s, %s, %d' % (s(t1), s(t0), 16 * 32 * 1280))
    P('s_lshl_b32 %s, %s, 5' % (s(sRow), s(sSeg)))
    P('s_add_u32 %s, %s, %s' % (s(sRow), s(sRow), s(sH)))
    P('s_mul_i32 %s, %s, 1280' % (s(sRow), s(sRow)))
    row_load(P, Rp, vR2, s(S_OUT, 4), sRow, '')
    P('s_waitcnt lgkmcnt(0)')
    P('s_barrier')
    cy(P, 3)
    b5(P, W2, L_O, U, acc, pkd, vTW, vTR, vGO, t0, t1)
    cy(P, 4)
    P('s_add_u32 %s, %s, 1' % (s(sIt), s(sIt)))
    signal_wg(P, sFlagAT, sIt, 246, True)
    R.dbgtime(P, 0, 250)
    cy(P, 5)
    tl(P, (sIt, 63))
    def prefetch():
        Ls = P.newlabel('AT_nopf')
        P('s_cmp_ge_u32 %s, 61' % s(sSeg))
        P('s_cbranch_scc1 %s' % Ls)
        for x in fetch_qkv(1):
            P(x)
        P.label(Ls)
    Lnc, Lc = P.newlabel('AT_nc'), P.newlabel('AT_c')
    P('s_cmp_eq_u32 %s, 0' % s(sW))
    P('s_cbranch_scc1 %s' % Lc)
    prefetch()
    P('s_waitcnt vmcnt(0)')
    P('s_branch %s' % Lnc)
    P.label(Lc)
    P('s_lshl_b32 %s, %s, 7' % (s(t0), s(sSet)))
    P('s_add_u32 %s, %s, 0x%x' % (s(t0), s(t0), ATFLAG))
    poll_ge(P, t0, 32, sIt, 246, sleep=0)
    cy(P, 6)
    P('s_mul_i32 %s, %s, %d' % (s(t0), s(sH), 32 * 1280))
    P('s_add_u32 %s, %s, %s' % (s(t0), s(t0), s(sPart)))
    gather_sum(P, Dd, GB, vSel, vRo, vRo, t0, 8, t1)
    put_flag(P, sGDm, sIt, 246, True)
    prefetch()
    cy(P, 7)
    add_rounded(P, X, Dd, Rp, Rq)
    P('s_add_u32 %s, %s, 0x%x' % (s(t0), s(sRow), HB))
    row_store(P, Rp, vR2, ws, t0)
    unpack(P, X, Rp)
    layernorm(P, X, tt)
    pack(P, Rq, X)
    P('s_add_u32 %s, %s, 0x%x' % (s(t0), s(sRow), YB))
    row_store(P, Rq, vR2, ws, t0)
    unpack(P, X, Rq)
    layernorm_again(P, X, tt)
    pack(P, Rq + 6, X)
    P('s_add_u32 %s, %s, 0x%x' % (s(t0), s(sRow), ZB))
    row_store(P, Rq + 6, vR2, ws, t0)
    cy(P, 8)
    P('s_waitcnt vmcnt(0)')
    cy(P, 9)
    put_flag(P, sFlagZ, sIt, 246)
    P.label(Lnc)
    tl(P, (sIt, 15))
    P('s_add_u32 %s, %s, 3' % (s(sSeg), s(sSeg)))
    P('s_cmp_lt_u32 %s, 64' % s(sSeg))
    P('s_cbranch_scc1 %s' % Ltop)
    cy_dump(P, 246)


def role_df(P, sCl, sJ):
    W1 = lambda kk: a(4 * kk, 4)
    def W2(T, ks):
        n = 8 * T + ks
        return a(160 + 4 * n, 4) if n < 24 else v(192 + 4 * (n - 24), 4)
    vTW, vTR, vGO, vS, vF, vUW = 2, 3, 4, 5, 8, 6
    Bf, acc, pkd, U = 28, 60, 136, 100
    L_Z, L_U, L_T = 0, 46080, 54272
    sIsF, sSl, sSrc, sDst, sStr, sFlag = sK0, sK1, sA, sB, sC2, sD
    sNp, sDr = sE, sF
    Lf, Lj = P.newlabel('DF_f'), P.newlabel('DF_j')
    P('s_cmp_ge_u32 %s, 5' % s(sJ))
    P('s_cselect_b32 %s, 1, 0' % s(sIsF))
    P('s_cbranch_scc1 %s' % Lf)
    P('s_mov_b32 %s, %s' % (s(sSl), s(sJ)))
    load_ptr(P, KA_W1, 640 * 1280)
    P('s_lshl_b32 %s, %s, 8' % (s(t3), s(sSl)))
    load_w1(P, W1, 1280, t3, 28)
    load_ptr(P, KA_W2, 640 * 1280)
    P('s_mov_b32 %s, 5' % s(sNp))
    P('s_mov_b32 %s, 0x%x' % (s(sSrc), ZB - 2560))
    P('s_mul_i32 %s, %s, %d' % (s(sDst), s(sCl), 2 * DPART_S))
    P('s_add_u32 %s, %s, 0x%x' % (s(sDst), s(sDst), DPART))
    P('s_lshl_b32 %s, %s, 2' % (s(t0), s(sSl)))
    P('s_add_u32 %s, %s, %s' % (s(t0), s(t0), s(sW)))
    P('s_mul_i32 %s, %s, 52' % (s(t0), s(t0)))
    P('s_lshr_b32 %s, %s, 8' % (s(t0), s(t0)))
    P('s_lshl_b32 %s, %s, 2' % (s(t0), s(t0)))
    P('s_lshr_b32 %s, 0x4031, %s' % (s(sDr), s(t0)))
    P('s_and_b32 %s, %s, 15' % (s(sDr), s(sDr)))
    P('s_mov_b32 %s, %s' % (s(sFlag), s(sSl)))
    P('s_branch %s' % Lj)
    P.label(Lf)
    P('s_sub_u32 %s, %s, 5' % (s(sSl), s(sJ)))
    load_ptr(P, KA_W3, 640 * 3456)
    P('s_lshl_b32 %s, %s, 8' % (s(t3), s(sSl)))
    load_w1(P, W1, 3456, t3, 28)
    load_ptr(P, KA_W4, 1728 * 1280)
    P('s_mov_b32 %s, 14' % s(sNp))
    P('s_mul_i32 %s, %s, %d' % (s(sSrc), s(sCl), 2 * 40960))
    P('s_add_u32 %s, %s, 0x%x' % (s(sSrc), s(sSrc), Z2R - 2560))
    P('s_mul_i32 %s, %s, %d' % (s(sDst), s(sCl), 2 * FPART_S))
    P('s_add_u32 %s, %s, 0x%x' % (s(sDst), s(sDst), FPART))
    P('s_mov_b32 %s, 2' % s(sDr))
    P('s_add_u32 %s, %s, 8' % (s(sFlag), s(sSl)))
    P.label(Lj)
    P('s_mul_i32 %s, %s, %d' % (s(t4), s(sSl), 128 * 1280))
    load_w2(P, W2, t4, False, 28)
    b5_setup(P, vTW, vTR, vGO, L_T, s(sNp), 28)
    stage_setup(P, vS, vF, sDr, 28)
    P('s_lshl_b32 %s, %s, 11' % (s(t0), s(sW)))
    P('s_add_u32 %s, %s, %d' % (s(t0), s(t0), L_U))
    P('v_add_u32 %s, %s, %s' % (v(vUW), s(t0), v(vL16)))
    P('s_lshl_b32 %s, %s, 2' % (s(sFlag), s(sFlag)))
    P('s_lshl_b32 %s, %s, 7' % (s(t0), s(sCl)))
    P('s_add_u32 %s, %s, %s' % (s(sFlag), s(sFlag), s(t0)))
    P('s_add_u32 %s, %s, 0x%x' % (s(sFlag), s(sFlag), DFLAG))
    P('s_mul_i32 %s, %s, %d' % (s(sStr), s(sNp), 32 * 1280))
    P('s_mul_i32 %s, %s, 5120' % (s(t0), s(sW)))
    P('s_add_u32 %s, %s, %s' % (s(sSrc), s(sSrc), s(t0)))
    P('s_lshl_b32 %s, %s, 10' % (s(sLdsW), s(sW)))
    P('s_mul_i32 %s, %s, 1280' % (s(t0), s(sSl)))
    P('s_mul_i32 %s, %s, 320' % (s(t1), s(sW)))
    P('s_add_u32 %s, %s, %s' % (s(t0), s(t0), s(t1)))
    P('s_add_u32 %s, %s, %s' % (s(sDst), s(sDst), s(t0)))
    c0 = -2.0 * 1.4426950408889634 * 0.7978845608028654
    import struct
    fb = lambda x: struct.unpack('<I', struct.pack('<f', x))[0]
    for i in range(2):
        P('s_mov_b32 %s, 0x%08x' % (s(sPk + i), fb(c0 * 0.044715)))
    P('v_mov_b32 v132, 0x%08x' % fb(c0))
    P('v_mov_b32 v133, 0x%08x' % fb(c0))
    P('s_mov_b32 %s, %s' % (s(sSeg), s(sCl)))
    P('s_mov_b32 %s, 0' % s(sIt))
    tl(P, 6, 152)
    cy_init(P)
    Ltop, Lpf, Lgo, Ln9 = P.newlabel('DF_top'), P.newlabel('DF_pf'), P.newlabel('DF_go'), P.newlabel('DF_n9')
    P.label(Ltop)
    P('s_cmp_eq_u32 %s, 1' % s(sIsF))
    P('s_cbranch_scc1 %s' % Lpf)
    P('s_max_u32 %s, %s, 1' % (s(sNeed), s(sIt)))
    P('s_sub_u32 %s, %s, 1' % (s(sNeed), s(sNeed)))
    P('s_lshl_b32 %s, %s, 7' % (s(t0), s(sCl)))
    P('s_add_u32 %s, %s, 0x%x' % (s(t0), s(t0), EFLAG))
    poll_ge(P, t0, 32, sNeed, 28, sleep=0)
    P('s_mov_b32 %s, %s' % (s(t5), s(sSeg)))
    P('s_add_u32 %s, %s, 1' % (s(t1), s(sSeg)))
    P('s_min_u32 %s, %s, 63' % (s(t1), s(t1)))
    P('v_min_u32 v28, 47, %s' % v(vLane))
    P('v_lshrrev_b32 v29, 4, v28')
    P('v_sub_u32 v29, %s, v29' % s(t1))
    P('v_add_u32 v29, 3, v29')
    P('v_mul_u32_u24 v29, 43, v29')
    P('v_lshrrev_b32 v29, 7, v29')
    P('v_lshlrev_b32 v28, 3, v28')
    P('s_mov_b32 %s, 0x%x' % (s(t0), ZFLAG))
    Lp = P.newlabel('DF_pz')
    P.label(Lp)
    P('buffer_load_dwordx2 v[30:31], v28, %s, %s offen sc1' % (ws, s(t0)))
    P('s_waitcnt vmcnt(0)')
    P('v_min_u32 v30, v30, v31')
    P('v_cmp_gt_u32 vcc, v29, v30')
    P('s_cbranch_vccz %s' % Lgo)
    P('s_sleep 1')
    spin_retry(P, Lp, Lgo)
    P.label(Lpf)
    P('s_and_b32 %s, %s, 1' % (s(t5), s(sIt)))
    P('s_add_u32 %s, %s, 1' % (s(sNeed), s(sIt)))
    P('s_lshl_b32 %s, %s, 7' % (s(t0), s(sCl)))
    P('s_add_u32 %s, %s, 0x%x' % (s(t0), s(t0), EFLAG))
    poll_ge(P, t0, 32, sNeed, 28, sleep=0)
    P.label(Lgo)
    cy(P, 0)
    tl(P, (sIt, 64), 152)
    P('s_mul_i32 %s, %s, 40960' % (s(t5), s(t5)))
    P('s_add_u32 %s, %s, %s' % (s(t5), s(t5), s(sSrc)))
    Lst = P.newlabel('DF_st')
    P('s_cmp_lg_u32 %s, 0' % s(sW))
    P('s_cbranch_scc1 %s' % Ln9)
    for cg in range(5):
        for x in stage_one(vS, t5, sLdsW, cg, 2, 9216, t4):
            P(x)
    P.label(Ln9)
    pcs = [stage_one(vS, t5, sLdsW, cg, g_, 9216, t4) for cg in range(5) for g_ in range(2)]
    for x in sum(pcs[:6], []):
        P(x)
    P('s_and_b32 %s, %s, 1' % (s(t0), s(sIt)))
    P('s_mul_i32 %s, %s, %s' % (s(t0), s(t0), s(sStr)))
    P('s_add_u32 %s, %s, %s' % (s(t0), s(t0), s(sDst)))
    P('s_lshr_b32 %s, %s, 1' % (s(t1), s(sStr)))
    P('s_add_u32 %s, %s, %s' % (s(t1), s(t1), s(t0)))
    E = LgkmTrack(P)
    rd = ['ds_read_b128 %s, %s offset:%d' % (v(Bf + 4 * (kk % 8), 4), v(vF + (kk & 7)), (kk >> 3) * 9216) for kk in range(40)]
    cy(P, 1)
    P('s_waitcnt vmcnt(4)')
    P('s_barrier')
    cy(P, 2)
    for kk in range(5):
        E(rd[kk])
    main = ['v_mfma_f32_32x32x16_bf16 %s, %s, %s, %s' % (v(acc, 16), W1(kk), v(Bf + 4 * (kk % 8), 4), '0' if kk == 0 else v(acc, 16)) for kk in range(40)]
    fill = {0: pcs[6], 1: pcs[7], 4: pcs[8], 5: pcs[9]}
    for cg, n in ((1, 4), (2, 4), (3, 2), (4, 0)):
        fill[8 * cg - 5] = ['s_waitcnt vmcnt(%d)' % n, 's_barrier']
    addfill(fill, 0, rd[5:])
    E.weave(main, fill)
    cy(P, 3)
    g = acc + 16
    for r in range(0, 16, 2):
        P(pk('mul', g + r, acc + r, acc + r))
    for r in range(0, 16, 2):
        P('v_pk_fma_f32 %s, %s, %s, v[132:133]' % (v(g + r, 2), v(g + r, 2), s(sPk, 2)))
    for r in range(0, 16, 2):
        P(pk('mul', g + r, g + r, acc + r))
    for r in range(16):
        P('v_exp_f32 %s, %s' % (v(g + r), v(g + r)))
    for r in range(16):
        P('v_add_f32 %s, 1.0, %s' % (v(g + r), v(g + r)))
    for r in range(16):
        P('v_rcp_f32 %s, %s' % (v(g + r), v(g + r)))
    for r in range(0, 16, 2):
        P(pk('mul', g + r, g + r, acc + r))
    for i in range(8):
        P(cvt(pkd + i, g + 2 * i))
    for i in range(2):
        P('ds_write_b128 %s, %s offset:%d' % (v(vUW), v(pkd + 4 * i, 4), 1024 * i))
    P('s_waitcnt lgkmcnt(0)')
    P('s_barrier')
    cy(P, 4)
    b5(P, W2, L_U, U, acc, pkd, vTW, vTR, vGO, t0, t1)
    cy(P, 5)
    P('s_add_u32 %s, %s, 1' % (s(sIt), s(sIt)))
    signal_wg(P, sFlag, sIt, 28, True)
    cy(P, 6)
    tl(P, (sIt, 15), 152)
    P('s_add_u32 %s, %s, %d' % (s(sSeg), s(sSeg), NCL))
    P('s_cmp_lt_u32 %s, 64' % s(sSeg))
    P('s_cbranch_scc1 %s' % Ltop)
    cy_dump(P, 28)


def role_eg(P, sRowI, sCl):
    vSel, vRo, vRoE, vRoG, vR2 = 4, 2, 3, 13, 12
    Dd, X, Rp, Rh, Rq, Op, Oh, tt, GB = 16, 28, 40, 46, 52, 58, 64, 70, 76
    sRow, sPD, sPF, sFlag, sDF = sA, sB, sD, sC2, sE
    row_consts(P, vSel, vRo, vR2, 16)
    P('v_lshrrev_b32 v16, 4, %s' % v(vLane))
    P('v_mov_b32 v17, 0x7fff0000')
    for r_, n in ((vRoE, 1), (vRoG, 2)):
        P('v_cmp_gt_u32 vcc, %d, v16' % n)
        P('v_cndmask_b32 %s, v17, %s, vcc' % (v(r_), v(vRo)))
    load_ptr(P, KA_OUT, S * D * 2, S_OUT)
    P('s_lshl_b32 %s, %s, 5' % (s(t0), s(sCl)))
    P('s_add_u32 %s, %s, %s' % (s(t0), s(t0), s(sRowI)))
    P('s_lshl_b32 %s, %s, 2' % (s(sFlag), s(t0)))
    P('s_add_u32 %s, %s, 0x%x' % (s(sF), s(sFlag), ZFLAG))
    P('s_add_u32 %s, %s, 0x%x' % (s(sFlag), s(sFlag), EFLAG))
    P('s_mul_i32 %s, %s, 1280' % (s(sRow), s(t0)))
    sZ2 = sK0
    P('s_lshl_b32 %s, %s, 6' % (s(t0), s(sCl)))
    P('s_add_u32 %s, %s, %s' % (s(t0), s(t0), s(sRowI)))
    P('s_mul_i32 %s, %s, %d' % (s(sPD), s(t0), 5 * 1280))
    P('s_add_u32 %s, %s, 0x%x' % (s(sPD), s(sPD), DPART))
    P('s_mul_i32 %s, %s, %d' % (s(sPF), s(t0), 14 * 1280))
    P('s_add_u32 %s, %s, 0x%x' % (s(sPF), s(sPF), FPART))
    P('s_mul_i32 %s, %s, 1280' % (s(sZ2), s(t0)))
    P('s_add_u32 %s, %s, 0x%x' % (s(sZ2), s(sZ2), Z2R))
    for sb, str_, n in ((sPD, DPART_S, 7), (sPF, FPART_S, 18), (sZ2, 40960, 2)):
        for sl in range(2):
            for i in range(n):
                P('s_add_u32 %s, %s, %d' % (s(t1), s(sb), sl * str_ + 1024 * i))
                P('buffer_load_dwordx4 %s, %s, %s, %s offen sc1' % (v(GB, 4), v(vL16), ws, s(t1)))
    P('s_mov_b32 %s, %d' % (s(sK1), DPART_S))
    P('s_mov_b32 %s, %d' % (s(sK2), FPART_S))
    P('s_mov_b32 %s, 40960' % s(sPk))
    P('s_lshl_b32 %s, %s, 7' % (s(sDF), s(sCl)))
    P('s_add_u32 %s, %s, 0x%x' % (s(sDF), s(sDF), DFLAG))
    P('s_mov_b32 %s, %s' % (s(sSeg), s(sCl)))
    P('s_mov_b32 %s, 1' % s(sIt))
    cy_init(P)
    Ltop, LG, Lnog, Lend = P.newlabel('row_top'), P.newlabel('row_g'), P.newlabel('row_nog'), P.newlabel('row_end')
    P.label(Ltop)
    poll_ge(P, sF, 1, sIt, 16, sleep=4)
    P('s_add_u32 %s, %s, 0x%x' % (s(t0), s(sRow), YB))
    row_load(P, Rp, vR2, ws, t0)
    P('s_add_u32 %s, %s, 0x%x' % (s(t0), s(sRow), HB))
    row_load(P, Rh, vR2, ws, t0)
    poll_ge(P, sDF, 5, sIt, 16, sleep=0)
    cy(P, 0)
    gather_sum(P, Dd, GB, vSel, vRo, vRoE, sPD, 2, t1)
    cy(P, 1)
    add_rounded(P, X, Dd, Rp, GB)
    unpack(P, X, Rp)
    layernorm(P, X, tt)
    pack(P, Rq, X)
    row_store(P, Rq, vR2, ws, sZ2, 'local')
    if DIAG[0] == 1:
        P('s_add_u32 %s, %s, 0x%x' % (s(t0), s(sRow), Z2))
        row_store(P, Rq, vR2, ws, t0)
        P('s_add_u32 %s, %s, 0x%x' % (s(t0), s(sRow), X1))
        row_store(P, Rp, vR2, ws, t0)
    cy(P, 2)
    P('s_waitcnt vmcnt(0)')
    cy(P, 3)
    put_flag(P, sFlag, sIt, 16, True)
    tl(P, (sIt, 15))
    P('s_cmp_eq_u32 %s, 1' % s(sIt))
    P('s_cbranch_scc1 %s' % Lnog)
    P.label(LG)
    P('s_sub_u32 %s, %s, 1' % (s(sNeed), s(sIt)))
    P('s_add_u32 %s, %s, 32' % (s(t0), s(sDF)))
    poll_ge(P, t0, 14, sNeed, 16, sleep=0)
    cy(P, 4)
    gather_sum(P, Dd, GB, vSel, vRo, vRoG, sPF, 4, t1)
    cy(P, 5)
    add_rounded(P, X, Dd, Op, GB)
    unpack(P, X, Op)
    unpack(P, Dd, Oh)
    for i in range(0, 12, 2):
        P(pk('add', X + i, X + i, Dd + i))
    pack(P, Rq, X)
    P('s_sub_u32 %s, %s, %d' % (s(t0), s(sRow), 40960 * 3))
    row_store(P, Rq, vR2, s(S_OUT, 4), t0, '')
    cy(P, 6)
    tl(P, (sNeed, 63))
    P('s_add_u32 %s, %s, %s' % (s(sPF), s(sPF), s(sK2)))
    P('s_sub_u32 %s, 0, %s' % (s(sK2), s(sK2)))
    P('s_cmp_ge_u32 %s, 64' % s(sSeg))
    P('s_cbranch_scc1 %s' % Lend)
    P.label(Lnog)
    for i in range(12):
        P('v_mov_b32 %s, %s' % (v(Op + i), v(Rp + i)))
    P('s_add_u32 %s, %s, %d' % (s(sRow), s(sRow), 40960 * 3))
    P('s_add_u32 %s, %s, %s' % (s(sPD), s(sPD), s(sK1)))
    P('s_sub_u32 %s, 0, %s' % (s(sK1), s(sK1)))
    P('s_add_u32 %s, %s, %s' % (s(sZ2), s(sZ2), s(sPk)))
    P('s_sub_u32 %s, 0, %s' % (s(sPk), s(sPk)))
    P('s_add_u32 %s, %s, 1' % (s(sIt), s(sIt)))
    P('s_add_u32 %s, %s, 3' % (s(sSeg), s(sSeg)))
    P('s_cmp_lt_u32 %s, 64' % s(sSeg))
    P('s_cbranch_scc1 %s' % Ltop)
    P('s_branch %s' % LG)
    P.label(Lend)
    cy_dump(P, 16)


def role_post(P, Ldone):
    Lm, Lr = P.newlabel('post_m'), P.newlabel('post_r')
    read_mode(P, 4)
    P('s_cmp_ge_u32 %s, 5' % s(S_CLS))
    P('s_cbranch_scc1 %s' % Lm)
    role_at(P)
    P('s_branch %s' % Ldone)
    P.label(Lm)
    P('s_sub_u32 s46, %s, 5' % s(S_CLS))
    P('s_cmp_ge_u32 %s, 19' % s(S_IDX))
    P('s_cbranch_scc1 %s' % Lr)
    role_df(P, 46, S_IDX)
    P('s_branch %s' % Ldone)
    P.label(Lr)
    P('s_cmp_ge_u32 %s, 3' % s(sW))
    P('s_cbranch_scc1 %s' % Ldone)
    P('s_sub_u32 s47, %s, 19' % s(S_IDX))
    P('s_mul_i32 s47, s47, 3')
    P('s_add_u32 s47, s47, %s' % s(sW))
    P('s_cmp_ge_u32 s47, 32')
    P('s_cbranch_scc1 %s' % Ldone)
    role_eg(P, 47, 46)
    P('s_branch %s' % Ldone)


def role_worker(P, Ldone, stop=None):
    base_regs(P)
    tl(P, 0)
    flag_offsets(P)
    init_clear(P)
    ln0_fetch(P)
    role_p(P)
    R.dbgtime(P, 14, 110)
    tl(P, 5)
    if stop == 'p':
        P('s_branch %s' % Ldone)
        return
    role_post(P, Ldone)
```

```python
import sys
from asmlib import *
from layout import *
import role_r as R
import role_w as Wk

NAME = 'sequential_preLN__memory_aug_recurrent_mem_tr__mixer_s_mlp__prompt'

def common(P):
    P('s_cmp_ge_u32 s2, 256')
    P('s_cbranch_scc1 L_done')
    P('s_load_dwordx4 s[20:23], s[0:1], %d' % KA_DBG)
    P('s_add_u32 s%d, s2, %d' % (R.S_CLS, R.CFG.get('shift', 7)))
    P('s_and_b32 s%d, s%d, 7' % (R.S_CLS, R.S_CLS))
    P('s_lshr_b32 s%d, s2, 3' % R.S_IDX)
    P('v_lshrrev_b32 v1, 6, v0')
    P('s_mov_b32 s%d, 0' % R.S_SPIN)
    P('v_readfirstlane_b32 s%d, v1' % R.S_WAVE)
    P('s_waitcnt lgkmcnt(0)')
    R.srd(P, R.S_DBG, 20, 256)
    R.srd(P, R.S_WS, 22, WS_BYTES)
    R.dbgtime(P, 9, 2)

def finish(P):
    R.dbgtime(P, 15)
    P('s_cmp_lt_u32 s%d, %d' % (R.S_SPIN, R.SPIN_LIMIT))
    P('s_cbranch_scc1 L_done')
    P('v_mov_b32 v0, 1')
    P('v_mov_b32 v1, 0')
    P('buffer_atomic_add v0, v1, s[%d:%d], 0 offen offset:%d' % (R.S_DBG, R.S_DBG + 3, DBG_ERR))
    P.label('L_done')
    P('s_endpgm')

def wrap(body, kname, header):
    return header + '''.amdgcn_target "amdgcn-amd-amdhsa--gfx950"
.text
.globl %s
.p2align 8
.type %s,@function
%s:
%s.section .rodata,"a"
.p2align 6
.amdhsa_kernel %s
  .amdhsa_next_free_vgpr 512
  .amdhsa_next_free_sgpr 102
  .amdhsa_accum_offset 256
  .amdhsa_group_segment_fixed_size 0
  .amdhsa_kernarg_size 120
  .amdhsa_user_sgpr_count 2
  .amdhsa_user_sgpr_kernarg_segment_ptr 1
  .amdhsa_system_sgpr_workgroup_id_x 1
  .amdhsa_float_denorm_mode_32 3
.end_amdhsa_kernel
''' % (kname, kname, kname, body, kname)

def build_rtest(diag=True):
    P = Prog()
    common(P)
    P('s_cmp_lt_u32 s%d, 2' % R.S_CLS)
    P('s_cbranch_scc1 L_R')
    R.arrive(P)
    P('s_branch L_done')
    P.label('L_R')
    R.role_r(P, diag)
    finish(P)
    n = P.fix_hazards_timed(verbose='-v' in sys.argv)
    print('instructions', P.ninst(), 'nops inserted', n)
    return wrap(P.text(), NAME + '_kernel', '; @launch grid=(256,1,1) block=(256,1,1) lds=163840\n')

def build_full(diag=0, stop=None):
    Wk.DIAG[0] = diag
    P = Prog()
    common(P)
    P('s_cmp_lt_u32 s%d, 2' % R.S_CLS)
    P('s_cbranch_scc1 L_R')
    Wk.role_worker(P, 'L_fin', stop)
    P.label('L_R')
    R.role_r(P, (3 if R.CFG.get('rst') else 1) if diag else 0)
    P.label('L_fin')
    finish(P)
    n = P.fix_hazards_timed(verbose='-v' in sys.argv)
    if R.CFG.get('al8', 1):
        print('re-encoded', P.align8(lambda body: wrap(body, NAME + '_kernel', ''), *{1: (0.2, None), 2: (0.75, None), 3: (0.75, 4.0), 4: (0.75, 2.0)}[R.CFG.get('al8', 1)]))
    print('instructions', P.ninst(), 'nops inserted', n)
    hdr = open('cdna_kernels/%s.s.ref' % NAME).read().split('; Override launch')[0]
    return wrap(P.text(), NAME + '_kernel', hdr + '; @launch grid=(256,1,1) block=(256,1,1) lds=163840\n')

if __name__ == '__main__':
    args = [a for a in sys.argv[1:] if not a.startswith('-')]
    if not args:
        for name, dg in (('rtest', 1), ('rtest_a', 1 | 2 | 4 ), ('rtest_b', 1 | 4 | 8), ('rtest_c', 1 | 8 | 16), ('rtest_d', 1 | 16 | 32), ('rtest_e', 1 | 32 | 64)):
            open('gen/%s.s' % name, 'w').write(build_rtest(dg))
    for a in args:
        name, kv = a.split(':') if ':' in a else (a, '')
        dg = 1
        for x in kv.split(','):
            if not x: continue
            k, val = x.split('=')
            if k == 'diag': dg = int(val)
            elif k in Wk.PX: Wk.PX[k] = int(val)
            else: R.CFG[k] = int(val)
        if name.startswith('f'):
            open('gen/%s.s' % name, 'w').write(build_full(dg))
        else:
            open('gen/%s.s' % name, 'w').write(build_rtest(dg))
```

```python
from asmlib import *
from layout import *

def tt(f):
    return sum((f(a_, b_, c_) & 1) << ((a_ << 2) | (b_ << 1) | c_) for a_ in (0, 1) for b_ in (0, 1) for c_ in (0, 1))
TT_XX = tt(lambda a_, b_, c_: (a_ ^ c_) | (b_ ^ c_))
TT_OM = tt(lambda a_, b_, c_: (a_ | b_) & c_)
TT_XO = tt(lambda a_, b_, c_: (a_ ^ c_) | b_)

S_WS, S_DBG, S_TMP = 8, 12, 16
S_CLS, S_IDX, S_WAVE, S_SPIN = 3, 4, 5, 6
SPIN_LIMIT = 400000
EARLY = 58
sX, sH, sW = S_CLS, S_IDX, S_WAVE
sStep, sTagP, sTagR, sK1P, sK1R, sT16P, sT16R = 20, 21, 22, 23, 24, 25, 26
sPartSt0, sPartSt1, sPartLd, sMemLSt, sMemRSt, sMemLLd, sMemRLd = 27, 28, 29, 30, 31, 32, 33
sKV, sKM, sTch, sFlagOff, sKmFlagOff, sFast, sT0, sT1, sT2, sT3 = 34, 35, 36, 37, 38, 39, 40, 41, 42, 43
sC8 = 44
sEx8 = 46
sExSt = 48
sScale = 50
sVXoff = 51
sChk = 52
sScale2 = 54
sPartSt2 = 53
sSelM = 60
sOdd = 76
sProg = 79
sMemRNx = 56
sStamp = 86

vKx, vVx = 0, 8
vSig, vIdx, vL16, vW1K, vVW, vOWr, vPSt = 16, 18, 19, 20, 21, 22, 23
X_, AV, T_, Y_, Z_, SP = 24, 40, 48, 56, 76, 92
accQ, accK = X_, X_ + 8
vL4 = T_ + 5

L_MEM, L_SX, L_W = 0, 10240, 16384
L_O = 5 * 1024

LDS_PAIRS = [('q', 0), ('k', 1), ('q', 3), ('k', 4), ('v', 2), ('q', 8), ('k', 6), ('k', 9), ('v', 9)]

def weight_regs():
    free = [a(8 * i, 8) for i in range(32)] + [v(96 + 8 * i, 8) for i in range(20)]
    m = {}
    for mat in 'qkv':
        for p in range(10):
            if (mat, p) in LDS_PAIRS:
                continue
            for nt in range(2):
                m[(mat, p, nt)] = free.pop(0)
    for kt2 in range(2):
        for T in range(5):
            m[('o', kt2, T)] = free.pop(0)
    assert not free
    return m
WR = weight_regs()

def sub(reg, off, n):
    f, lo = reg[0], int(reg[2:reg.index(':')])
    return (a if f == 'a' else v)(lo + off, n)


def srd(P, dst, lo, nbytes):
    P('s_mov_b32 %s, %s' % (s(dst), s(lo)))
    P('s_and_b32 %s, %s, 0xffff' % (s(dst + 1), s(lo + 1)))
    P('s_mov_b32 %s, 0x%x' % (s(dst + 2), nbytes))
    P('s_mov_b32 %s, 0x20000' % s(dst + 3))


def r_prologue(P, diag):
    ws = s(S_WS, 4)
    P('; ===== R prologue =====')
    lane, t0, t1, t2, t3 = 92, 93, 94, 95, 91
    P('v_and_b32 %s, 63, v0' % v(lane))
    P('v_lshlrev_b32 %s, 4, %s' % (v(vL16), v(lane)))
    zz = 24
    for i in range(4):
        P('v_mov_b32 %s, 0' % v(zz + i))
    P('s_mul_i32 %s, %s, 0x%x' % (s(sT0), s(sX), PART_X))
    P('s_add_u32 %s, %s, 0x%x' % (s(sT0), s(sT0), PART))
    P('s_lshl_b32 %s, %s, 5' % (s(sT1), s(sW)))
    P('s_add_u32 %s, %s, %s' % (s(sT1), s(sT1), s(sH)))
    P('s_lshl_b32 %s, %s, 11' % (s(sT2), s(sT1)))
    P('s_add_u32 %s, %s, %s' % (s(sPartLd), s(sT0), s(sT2)))
    P('s_lshl_b32 %s, %s, 6' % (s(sT2), s(sH)))
    P('s_add_u32 %s, %s, %s' % (s(sPartSt0), s(sT0), s(sT2)))
    P('s_lshl_b32 %s, %s, 11' % (s(sT2), s(sW)))
    P('s_add_u32 %s, %s, %s' % (s(sPartSt1), s(sPartSt0), s(sT2)))
    P('s_add_u32 %s, %s, 0x%x' % (s(sPartSt1), s(sPartSt1), 64 * 2048))
    Lnoclr = P.newlabel('R_noclr')
    P('s_cmp_ge_u32 %s, 80' % s(sT1))
    P('s_cbranch_scc1 %s' % Lnoclr)
    for i in range(2):
        P('buffer_store_dwordx4 %s, %s, %s, %s offen offset:%d sc1' % (v(zz, 4), v(vL16), ws, s(sPartLd), 1024 * i))
    P.label(Lnoclr)
    P('s_lshr_b32 %s, %s, 4' % (s(sT2), s(sT1)))
    P('s_lshl_b32 %s, %s, 10' % (s(sT2), s(sT2)))
    P('s_bfe_u32 %s, %s, 0x20002' % (s(sT3), s(sT1)))
    P('s_lshl_b32 %s, %s, 5' % (s(sT3), s(sT3)))
    P('s_add_u32 %s, %s, %s' % (s(sT2), s(sT2), s(sT3)))
    P('s_and_b32 %s, %s, 3' % (s(sT3), s(sT1)))
    P('s_lshl_b32 %s, %s, 8' % (s(sT3), s(sT3)))
    P('s_add_u32 %s, %s, %s' % (s(sT2), s(sT2), s(sT3)))
    P('s_lshl_b32 %s, %s, 15' % (s(sT3), s(sX)))
    P('s_add_u32 %s, %s, 0x%x' % (s(sT3), s(sT3), MEML))
    P('s_add_u32 %s, %s, %s' % (s(sMemLSt), s(sT3), s(sT2)))
    P('s_xor_b32 %s, %s, 0x4000' % (s(sMemLLd), s(sT3)))
    P('s_lshl_b32 %s, %s, 15' % (s(sT1), s(sX)))
    P('s_add_u32 %s, %s, %s' % (s(sMemRSt), s(sT1), s(sT2)))
    P('s_add_u32 %s, %s, 0x%x' % (s(sMemRSt), s(sMemRSt), MEMR))
    P('s_xor_b32 %s, %s, 0x8000' % (s(sT1), s(sT1)))
    P('s_add_u32 %s, %s, 0x%x' % (s(sMemRLd), s(sT1), MEMR))
    Lw3 = P.newlabel('R_w3clr')
    P('s_cmp_lg_u32 %s, 3' % s(sW))
    P('s_cbranch_scc1 %s' % Lw3)
    P('s_lshl_b32 %s, %s, 7' % (s(sKmFlagOff), s(sH)))
    P('s_lshl_b32 %s, %s, 2' % (s(sT0), s(sX)))
    P('s_add_u32 %s, %s, %s' % (s(sKmFlagOff), s(sKmFlagOff), s(sT0)))
    P('s_add_u32 %s, %s, 0x%x' % (s(sKmFlagOff), s(sKmFlagOff), KMFLAG))
    P('buffer_store_dword %s, %s, %s, %s offen sc1' % (v(zz), v(zz), ws, s(sKmFlagOff)))
    P('s_cmp_ge_u32 %s, 6' % s(sH))
    P('s_cbranch_scc1 %s' % Lw3)
    P('s_lshl_b32 %s, %s, 15' % (s(sT0), s(sX)))
    P('s_lshl_b32 %s, %s, 13' % (s(sT1), s(sH)))
    P('s_add_u32 %s, %s, %s' % (s(sT0), s(sT0), s(sT1)))
    P('s_add_u32 %s, %s, 0x%x' % (s(sT0), s(sT0), MEMR - 0x2000))
    P('s_cmp_eq_u32 %s, 0' % s(sH))
    P('s_cselect_b32 %s, %s, %s' % (s(sT0), s(sT3), s(sT0)))
    P('s_cmp_eq_u32 %s, 5' % s(sH))
    P('s_cselect_b32 %s, %s, %s' % (s(sT0), s(sMemLLd), s(sT0)))
    P('s_add_u32 %s, %s, 0x1000' % (s(sT1), s(sT0)))
    for i in range(8):
        P('buffer_store_dwordx4 %s, %s, %s, %s offen offset:%d sc1' % (v(zz, 4), v(vL16), ws, s(sT0 if i < 4 else sT1), 1024 * (i & 3)))
    P.label(Lw3)

    P('s_load_dwordx4 s[60:63], s[0:1], %d' % KA_WQ)
    P('s_load_dwordx4 s[64:67], s[0:1], %d' % KA_WV)
    P('s_load_dwordx2 s[68:69], s[0:1], %d' % KA_MEM0)
    vD = 28
    P('v_lshrrev_b32 %s, 4, %s' % (v(t0), v(lane)))
    P('v_and_b32 %s, 15, %s' % (v(t1), v(lane)))
    P('v_and_b32 %s, 1, %s' % (v(t2), v(t0)))
    P('v_lshlrev_b32 %s, 1, %s' % (v(t2), v(t2)))
    P('v_xor_b32 %s, %s, %s' % (v(t1), v(t1), v(t2)))
    P('s_lshl_b32 %s, %s, 4' % (s(sT0), s(sW)))
    P('v_add_u32 %s, %s, %s' % (v(t0), s(sT0), v(t0)))
    for i in range(4):
        sig = ((i & 1) << 1 | ((i >> 1) & 1) << 2) << 1
        P('v_xor_b32 %s, %d, %s' % (v(t2), sig, v(t1)))
        P('v_lshlrev_b32 %s, 4, %s' % (v(t2), v(t2)))
        P('v_add_u32 %s, %d, %s' % (v(t3), 4 * i, v(t0)))
        P('v_lshl_add_u32 %s, %s, 13, %s' % (v(vD + i), v(t3), v(t2)))
    vD2 = 49
    P('v_lshrrev_b32 %s, 4, %s' % (v(t0), v(lane)))
    P('v_and_b32 %s, 15, %s' % (v(t1), v(lane)))
    P('s_and_b32 %s, %s, 1' % (s(sT1), s(sW)))
    P('s_lshl_b32 %s, %s, 2' % (s(sT1), s(sT1)))
    P('v_add_u32 %s, %s, %s' % (v(t2), s(sT1), v(t0)))
    P('v_lshlrev_b32 %s, 1, %s' % (v(t2), v(t2)))
    P('v_xor_b32 %s, %s, %s' % (v(t1), v(t1), v(t2)))
    P('v_lshlrev_b32 %s, 4, %s' % (v(t1), v(t1)))
    P('v_add_u32 %s, %s, %s' % (v(t0), s(sT0), v(t0)))
    for i in range(4):
        P('v_add_u32 %s, %d, %s' % (v(t3), 4 * i, v(t0)))
        P('v_lshl_add_u32 %s, %s, 13, %s' % (v(vD2 + i), v(t3), v(t1)))
    vTR = 32
    gb, r4, cq = 34, 35, 36
    P('v_lshrrev_b32 %s, 4, %s' % (v(gb), v(lane)))
    P('v_bfe_u32 %s, %s, 2, 2' % (v(r4), v(lane)))
    P('v_and_b32 %s, 3, %s' % (v(cq), v(lane)))
    P('v_lshrrev_b32 %s, 1, %s' % (v(t0), v(gb)))
    P('v_lshlrev_b32 %s, 4, %s' % (v(t0), v(t0)))
    P('v_and_b32 %s, 1, %s' % (v(t1), v(gb)))
    P('v_lshl_add_u32 %s, %s, 2, %s' % (v(t0), v(t1), v(t0)))
    P('v_and_b32 %s, 1, %s' % (v(t2), v(r4)))
    P('v_add_u32 %s, %s, %s' % (v(t0), v(t0), v(t2)))
    P('v_lshrrev_b32 %s, 1, %s' % (v(t3), v(r4)))
    P('v_lshl_add_u32 %s, %s, 3, %s' % (v(t0), v(t3), v(t0)))
    P('v_lshl_add_u32 %s, %s, 1, %s' % (v(t2), v(t1), v(t2)))
    P('v_lshl_add_u32 %s, %s, 2, %s' % (v(t2), v(t3), v(t2)))
    P('s_lshl_b32 %s, %s, 1' % (s(sT0), s(sW)))
    P('v_xor_b32 %s, %s, %s' % (v(t2), s(sT0), v(t2)))
    P('v_lshlrev_b32 %s, 5, %s' % (v(t2), v(t2)))
    P('v_lshl_add_u32 %s, %s, 8, %s' % (v(t2), v(t0), v(t2)))
    P('v_lshl_add_u32 %s, %s, 3, %s' % (v(vTR), v(cq), v(t2)))
    P('v_xor_b32 %s, 32, %s' % (v(vTR + 1), v(vTR)))
    vTR2 = 54
    P('v_and_b32 %s, 1, %s' % (v(t0), v(gb)))
    P('v_lshrrev_b32 %s, 1, %s' % (v(t1), v(r4)))
    P('v_lshl_add_u32 %s, %s, 1, %s' % (v(t0), v(t1), v(t0)))
    P('v_and_b32 %s, 1, %s' % (v(t1), v(r4)))
    P('v_lshl_add_u32 %s, %s, 2, %s' % (v(t2), v(t1), v(t0)))
    P('v_lshl_add_u32 %s, %s, 4, %s' % (v(t0), v(t1), v(t0)))
    P('v_lshrrev_b32 %s, 1, %s' % (v(t1), v(gb)))
    P('v_lshl_add_u32 %s, %s, 2, %s' % (v(t0), v(t1), v(t0)))
    P('v_xor_b32 %s, %s, %s' % (v(t2), s(sT0), v(t2)))
    P('v_lshlrev_b32 %s, 5, %s' % (v(t2), v(t2)))
    P('v_lshl_add_u32 %s, %s, 8, %s' % (v(t2), v(t0), v(t2)))
    P('v_lshl_add_u32 %s, %s, 3, %s' % (v(vTR2), v(cq), v(t2)))
    P('v_xor_b32 %s, 32, %s' % (v(vTR2 + 1), v(vTR2)))
    vOR, vOC = 37, 42
    P('s_mov_b32 %s, 0xcccd' % s(sT0))
    for i in range(5):
        P('v_add_u32 %s, %d, %s' % (v(t0), 64 * i, v(lane)))
        P('v_mul_lo_u32 %s, %s, %s' % (v(t1), v(t0), s(sT0)))
        P('v_lshrrev_b32 %s, 21, %s' % (v(t1), v(t1)))
        P('v_mul_u32_u24 %s, 40, %s' % (v(t2), v(t1)))
        P('v_sub_u32 %s, %s, %s' % (v(t2), v(t0), v(t2)))
        P('v_lshlrev_b32 %s, 4, %s' % (v(vOC + i), v(t2)))
        P('v_mul_u32_u24 %s, 1280, %s' % (v(vOR + i), v(t1)))
    P('s_waitcnt lgkmcnt(0)')
    reg_items = [(m_, p) for m_ in 'qkv' for p in range(10) if (m_, p) not in LDS_PAIRS]
    items = reg_items + LDS_PAIRS
    assert len(items) == 30 and len(reg_items) == 21
    slot_of = lambda j: j % 10
    tmp = s(S_TMP, 4)
    ptr = {'q': 60, 'k': 62, 'v': 64}
    sHB, sXK = 70, 71
    P('s_lshl_b32 %s, %s, 8' % (s(sHB), s(sH)))
    P('s_mul_i32 %s, %s, 5' % (s(sXK), s(sX)))
    P('s_lshl_b32 s72, %s, 12' % s(sW))
    vM0 = 76
    srd(P, S_TMP, 68, 8 * 640 * 2)
    P('v_and_b32 %s, 7, %s' % (v(t0), v(lane)))
    P('v_mul_u32_u24 %s, 1280, %s' % (v(t0), v(t0)))
    P('v_lshrrev_b32 %s, 3, %s' % (v(t1), v(lane)))
    P('v_lshl_add_u32 %s, %s, 2, %s' % (v(t0), v(t1), v(t0)))
    P('s_lshl_b32 %s, %s, 10' % (s(sT3), s(sW)))
    P('v_add_u32 %s, %s, %s' % (v(vW1K), s(sT3), v(vL16)))
    P('v_lshrrev_b32 %s, 2, %s' % (v(vL4), v(vW1K)))
    P('v_bfe_u32 %s, %s, 2, 3' % (v(t1), v(lane)))
    P('v_mul_u32_u24 %s, 1280, %s' % (v(t1), v(t1)))
    P('v_lshrrev_b32 %s, 5, %s' % (v(t2), v(lane)))
    P('v_lshl_add_u32 %s, %s, 4, %s' % (v(t1), v(t2), v(t1)))
    P('v_and_b32 %s, 3, %s' % (v(t2), v(lane)))
    P('v_lshl_add_u32 %s, %s, 2, %s' % (v(t1), v(t2), v(t1)))
    P('s_mul_i32 %s, %s, 640' % (s(sT0), s(sX)))
    P('s_sub_u32 %s, 640, %s' % (s(sT1), s(sT0)))
    P('s_mul_i32 %s, %s, 160' % (s(sT2), s(sW)))
    P('s_add_u32 %s, %s, %s' % (s(sT0), s(sT0), s(sT2)))
    P('s_add_u32 %s, %s, %s' % (s(sT1), s(sT1), s(sT2)))
    for d, so in ((0, sT0), (8, sT1)):
        for e in range(8):
            P('buffer_load_ushort %s, %s, %s, %s offen offset:%d' % (v(d + e), v(t0), tmp, s(so), 32 * (e & 3) + 2 * (e >> 2)))
    P('buffer_load_dword %s, %s, %s, %s offen offset:128' % (v(vM0 + 4), v(t1), tmp, s(sT0)))
    P('buffer_load_dword %s, %s, %s, %s offen offset:128' % (v(vM0 + 5), v(t1), tmp, s(sT1)))
    srd(P, S_TMP, 66, 32 * 128 * 640 * 2)
    P('s_mul_i32 %s, %s, %d' % (s(sT0), s(sH), 128 * 1280))
    P('s_mul_i32 %s, %s, %d' % (s(sT1), s(sW), 32 * 1280))
    P('s_add_u32 %s, %s, %s' % (s(sT0), s(sT0), s(sT1)))
    P('s_mul_i32 %s, %s, 640' % (s(sT1), s(sX)))
    P('s_add_u32 %s, %s, %s' % (s(sT0), s(sT0), s(sT1)))
    P('s_mul_i32 %s, %s, %d' % (s(sT1), s(sW), 32 * 640))
    P('s_add_u32 %s, %s, %d' % (s(sT1), s(sT1), 5 * 16384))
    for grp in range(4):
        P('s_lshl_b32 %s, %s, 1' % (s(sT2), s(sW)))
        P('s_add_u32 %s, %s, %d' % (s(sT2), s(sT2), grp >> 1))
        P('s_and_b32 %s, %s, 3' % (s(sT2), s(sT2)))
        P('s_lshl_b32 %s, %s, 5' % (s(sT2), s(sT2)))
        for i in range(5):
            P('v_xor_b32 %s, %s, %s' % (v(t0), s(sT2), v(vOC + i)))
            P('v_add_u32 %s, %s, %s' % (v(t0), v(t0), v(vOR + i)))
            P('s_mov_b32 m0, %s' % s(sT1))
            P('s_add_u32 %s, %s, 1024' % (s(sT1), s(sT1)))
            P('buffer_load_dwordx4 %s, %s, %s offen lds' % (v(t0), tmp, s(sT0)))
        P('s_add_u32 %s, %s, %d' % (s(sT0), s(sT0), 8 * 1280))
    cur = [None]

    def issue_item(j):
        mat, p = items[j]
        if cur[0] != mat:
            srd(P, S_TMP, ptr[mat], 640 * 8192)
            cur[0] = mat
        kt = p % 5
        P('s_add_u32 %s, %s, %d' % (s(sT0), s(73 if p < 5 else 74), (80 * kt if kt < 4 else 64) << 13))
        if kt == 4:
            P('s_lshl_b32 %s, %s, 19' % (s(sT1), s(sW)))
            P('s_add_u32 %s, %s, %s' % (s(sT0), s(sT0), s(sT1)))
        for i in range(4):
            P('s_add_u32 m0, s72, %d' % (slot_of(j) * 16384 + i * 1024))
            P('s_nop 0')
            P('buffer_load_dwordx4 %s, %s, %s offen lds' % (v((vD if kt == 4 else vD2) + i), tmp, s(sT0)))
    P('s_mul_i32 s73, %s, %d' % (s(sX), 320 << 13))
    P('s_sub_u32 s74, %d, s73' % (320 << 13))
    P('s_add_u32 s73, s73, %s' % s(sHB))
    P('s_add_u32 s74, s74, %s' % s(sHB))
    for j in range(5):
        issue_item(j)
    P('s_waitcnt vmcnt(40)')
    P('s_barrier')
    arrive(P)
    for d, src in ((vM0, 0), (vM0 + 8, 8)):
        for q in range(4):
            P('v_lshl_or_b32 %s, %s, 16, %s' % (v(d + q), v(src + 2 * q + 1), v(src + 2 * q)))
    P('v_add_u32 %s, 4, %s' % (v(vL4), v(vL4)))
    P('s_lshl_b32 s75, s2, 13')
    P('s_add_u32 s75, s75, 0x%x' % MEM0S)
    P('buffer_store_dwordx4 %s, %s, %s, s75 offen sc1' % (v(vM0 + 8, 4), v(vW1K), ws))
    P('buffer_store_dword %s, %s, %s, s75 offen offset:4092 sc1' % (v(vM0 + 5), v(vL4), ws))
    P('s_waitcnt vmcnt(20)')
    P('s_barrier')
    P('v_lshrrev_b32 %s, 1, %s' % (v(t0), v(r4)))
    P('v_and_b32 %s, 1, %s' % (v(t1), v(gb)))
    P('v_lshl_add_u32 %s, %s, 1, %s' % (v(t3), v(t0), v(t1)))
    P('v_lshlrev_b32 %s, 4, %s' % (v(t0), v(t3)))
    P('v_lshrrev_b32 %s, 1, %s' % (v(t1), v(gb)))
    P('v_lshl_add_u32 %s, %s, 2, %s' % (v(t0), v(t1), v(t0)))
    P('v_and_b32 %s, 1, %s' % (v(t1), v(r4)))
    P('v_add_u32 %s, %s, %s' % (v(t0), v(t0), v(t1)))
    P('v_mul_u32_u24 %s, 640, %s' % (v(t0), v(t0)))
    P('v_lshl_add_u32 %s, %s, 3, %s' % (v(t0), v(cq), v(t0)))
    P('v_add_u32 %s, %d, %s' % (v(t0), 5 * 16384, v(t0)))
    P('s_mul_i32 %s, %s, 5' % (s(sT0), s(sW)))
    for T in range(5):
        P('s_add_u32 %s, %s, %d' % (s(sT1), s(sT0), T))
        P('v_xor_b32 %s, %s, %s' % (v(t1), s(sT1), v(t3)))
        P('v_lshl_add_u32 %s, %s, 5, %s' % (v(t1), v(t1), v(t0)))
        for kt2 in range(2):
            for j in range(4):
                off = (64 * kt2 + 8 * (j >> 1) + 2 * (j & 1)) * 640
                P('ds_read_b64_tr_b16 %s, %s offset:%d' % (sub(WR[('o', kt2, T)], 2 * j, 2), v(t1), off))
        P('s_waitcnt lgkmcnt(0)')
    P('s_barrier')
    for j in range(5, 10):
        issue_item(j)
    P('s_lshl_b32 %s, %s, 2' % (s(sT0), s(sH)))
    P('s_add_u32 %s, %s, %s' % (s(sT0), s(sT0), s(sW)))
    P('s_lshl_b32 %s, %s, 11' % (s(sKV), s(sT0)))
    P('s_add_u32 %s, %s, 0x%x' % (s(sKV), s(sKV), KX))
    P('s_lshl_b32 %s, %s, 10' % (s(sKM), s(sT0)))
    P('s_mul_i32 %s, %s, 0x%x' % (s(sT1), s(sX), VM - KM))
    P('s_add_u32 %s, %s, %s' % (s(sKM), s(sKM), s(sT1)))
    P('s_add_u32 %s, %s, 0x%x' % (s(sKM), s(sKM), KM))
    P('s_lshl_b32 %s, %s, 13' % (s(sTch), s(sH)))
    P('s_add_u32 %s, %s, 0x%x' % (s(sTch), s(sTch), KX + 0x80000))
    P('s_lshl_b32 %s, %s, 7' % (s(sFlagOff), s(sH)))
    P('s_add_u32 %s, %s, 0x%x' % (s(sFlagOff), s(sFlagOff), PFLAG + 8))
    P('s_add_u32 %s, %s, 0x%x' % (s(sVXoff), s(sKV), VX - KX))

    def first_loads():
        P('v_lshlrev_b32 v6, 3, %s' % v(vL16))
        for back in (0x80000, 0x40000):
            P('s_sub_u32 %s, %s, 0x%x' % (s(sT0), s(sTch), back))
            P('s_add_u32 %s, %s, 0x%x' % (s(sT1), s(sT0), VX - KX))
            P('buffer_load_dword v5, v6, %s, %s offen sc1' % (ws, s(sT0)))
            P('buffer_load_dword v5, v6, %s, %s offen sc1' % (ws, s(sT1)))
        for t in range(2):
            P('buffer_load_dwordx4 %s, %s, %s, %s offen offset:%d sc1' % (v(vVx + 4 * t, 4), v(vL16), ws, s(sVXoff), 1024 * t))
    vA = 47
    for j in range(30):
        last_issued = min(29, 9 if j == 0 else j + 8)
        P('s_waitcnt vmcnt(%d)' % (4 * (last_issued - j) + (8 if j > 20 else 0)))
        P('s_barrier')
        if j >= 1 and j + 9 <= 29:
            issue_item(j + 9)
        if j == 20:
            P('v_lshrrev_b32 v7, 2, %s' % v(vL16))
            P('v_mov_b32 v6, 0')
            P('buffer_load_dword v4, v7, %s, 0 offen sc1' % s(S_DBG, 4))
            P('buffer_load_dwordx4 v[0:3], v6, %s, %s offen sc1' % (ws, s(sFlagOff)))
            first_loads()
        mat, p = items[j]
        for nt in range(2):
            P('v_add_u32 %s, %d, %s' % (v(vA + nt), slot_of(j) * 16384, v((vTR if p % 5 == 4 else vTR2) + nt)))
        for nt in range(2):
            dst = WR[(mat, p, nt)] if j < 21 else v(56 + 8 * nt, 8)
            for q in range(4):
                off = (q & 1) * 512 + (q >> 1) * 8192 if p % 5 == 4 else (q & 1) * 8192 + (q >> 1) * 2048
                P('ds_read_b64_tr_b16 %s, %s offset:%d' % (sub(dst, 2 * q, 2), v(vA + nt), off))
        P('s_waitcnt lgkmcnt(0)')
        if j >= 21:
            P('s_barrier')
            P('s_add_u32 %s, s72, %d' % (s(sT0), slot_of(j) * 16384))
            P('v_add_u32 %s, %s, %s' % (v(vA), s(sT0), v(vL16)))
            for q in range(4):
                P('ds_write_b128 %s, %s offset:%d' % (v(vA), v(56 + 4 * q, 4), 1024 * q))
            P('s_waitcnt lgkmcnt(0)')
    P('ds_write_b128 %s, %s' % (v(vW1K), v(vM0, 4)))
    P('ds_write_b32 %s, %s offset:4092' % (v(vL4), v(vM0 + 4)))
    P('v_and_b32 %s, 7, %s' % (v(t0), v(lane)))
    P('v_bfe_u32 %s, %s, 4, 1' % (v(t1), v(lane)))
    P('v_lshlrev_b32 %s, 2, %s' % (v(t1), v(t1)))
    P('v_sub_u32 %s, %s, %s' % (v(t0), v(t0), v(t1)))
    P('v_mov_b32 %s, 0x3f80' % v(t1))
    P('v_mov_b32 %s, 0x3f800000' % v(t2))
    for i in range(2):
        P('v_cmp_eq_u32 vcc, %d, %s' % (2 * i, v(t0)))
        P('v_cndmask_b32 %s, 0, %s, vcc' % (v(vSig + i), v(t1)))
        P('v_cmp_eq_u32 vcc, %d, %s' % (2 * i + 1, v(t0)))
        P('v_cndmask_b32 %s, %s, %s, vcc' % (v(vSig + i), v(vSig + i), v(t2)))
    P('s_mov_b32 %s, 0xff00ff00' % s(sC8))
    P('s_mov_b32 %s, 0xff00ff00' % s(sC8 + 1))
    P('s_mov_b32 %s, 0x00ff00ff' % s(sEx8))
    P('s_mov_b32 %s, 0x00ff00ff' % s(sEx8 + 1))
    P('s_mov_b32 %s, 0x00330033' % s(sExSt))
    P('s_mov_b32 %s, 0x00330033' % s(sExSt + 1))
    P('v_mov_b32 %s, 0x4444' % v(t0))
    P('v_mov_b32 %s, 0xeeee' % v(t1))
    P('v_cndmask_b32 %s, %s, %s, %s' % (v(vIdx), v(t0), v(t1), s(sC8, 2)))
    P('s_mov_b32 %s, 0xcccccccc' % s(sT0))
    P('s_mov_b32 %s, 0xcccccccc' % s(sT1))
    P('v_cndmask_b32 %s, %s, %s, %s' % (v(t0), v(t0), v(t1), s(sT0, 2)))
    P('v_lshl_add_u32 %s, %s, 16, %s' % (v(vIdx), v(t0), v(vIdx)))
    P('s_add_u32 %s, s72, %d' % (s(sT0), L_W))
    P('v_add_u32 %s, %s, %s' % (v(vVW), s(sT0), v(vL16)))
    P('s_lshr_b32 %s, %s, 1' % (s(sT0), s(sW)))
    P('s_lshl_b32 %s, %s, 10' % (s(sT0), s(sT0)))
    P('s_and_b32 %s, %s, 1' % (s(sT1), s(sW)))
    P('s_lshl_b32 %s, %s, 5' % (s(sT1), s(sT1)))
    P('s_add_u32 %s, %s, %s' % (s(sT0), s(sT0), s(sT1)))
    P('s_add_u32 %s, %s, %d' % (s(sT0), s(sT0), L_O))
    P('v_and_b32 %s, 0x60, %s' % (v(t0), v(vL16)))
    P('v_and_b32 %s, 0x310, %s' % (v(t1), v(vL16)))
    P('v_lshl_add_u32 %s, %s, 1, %s' % (v(t0), v(t0), v(t1)))
    P('v_add_u32 %s, %s, %s' % (v(vOWr), s(sT0), v(t0)))
    P('v_lshrrev_b32 %s, 2, %s' % (v(t0), v(lane)))
    P('s_lshl_b32 %s, %s, 4' % (s(sT0), s(sW)))
    P('v_add_u32 %s, %s, %s' % (v(t0), s(sT0), v(t0)))
    P('v_and_b32 %s, 0x30, %s' % (v(t1), v(vL16)))
    P('v_lshl_add_u32 %s, %s, 11, %s' % (v(vPSt), v(t0), v(t1)))
    for q in range(4):
        P('s_mov_b32 %s, 0x%08x' % (s(sSelM + 2 * q), 0x03030303 << (2 * q)))
        P('s_mov_b32 %s, 0x%08x' % (s(sSelM + 2 * q + 1), 0x03030303 << (2 * q)))
    P('s_mov_b32 %s, 0xaaaaaaaa' % s(sOdd))
    P('s_mov_b32 %s, 0xaaaaaaaa' % s(sOdd + 1))
    P('s_mov_b32 %s, 0x%08x' % (s(sScale), 0x3e0293ee))
    P('s_mov_b32 %s, 0' % s(sStep))
    P('s_mov_b32 %s, 0' % s(sTagP))
    P('s_mov_b32 m0, 14336')
    P('s_mov_b32 %s, 0' % s(sTagR))
    P('s_mov_b32 %s, 0' % s(sChk))
    P('s_mov_b32 %s, %s' % (s(sScale2), s(sScale)))
    P('s_mov_b32 %s, %s' % (s(sScale2 + 1), s(sScale)))
    dbg = s(S_DBG, 4)
    Lslow, Lgo = P.newlabel('R_slow'), P.newlabel('R_go')
    P('s_waitcnt vmcnt(0)')
    P('v_and_b32 v5, 63, v4')
    P('v_cmp_eq_u32 vcc, 32, v5')
    P('v_min_u32 v0, v0, v2')
    P('v_min3_u32 v0, v0, v1, v3')
    P('v_lshlrev_b32 v0, 1, v0')
    P('s_and_b32 %s, vcc_lo, 0x1fe' % s(sT0))
    P('v_readfirstlane_b32 %s, v0' % s(sProg))
    P('s_cmp_lg_u32 %s, 0x1fe' % s(sT0))
    P('s_cbranch_scc1 %s' % Lslow)
    P('s_cmp_gt_u32 %s, 2' % s(sProg))
    P('s_cbranch_scc1 %s' % Lgo)
    P.label(Lslow)
    wait_all(P)
    P('s_mov_b32 %s, 0' % s(sProg))
    flag_poll(P, 2, first=True)
    P('buffer_load_dword v4, v7, %s, 0 offen sc1' % dbg)
    first_loads()
    P('s_waitcnt vmcnt(0)')
    P.label(Lgo)
    P('s_add_u32 %s, %s, 1' % (s(sT0), s(sX)))
    P('v_readlane_b32 %s, v4, %s' % (s(sT0), s(sT0)))
    P('v_readlane_b32 %s, v4, %d' % (s(sT2), DBG_NEAR // 4))
    mode_from_word(P, sFast, sT0, sT1)
    P('v_readlane_b32 %s, v4, 1' % s(sT3))
    P('s_xor_b32 %s, %s, %s' % (s(sT2), s(sT2), s(sT3)))
    P('s_and_b32 %s, %s, 0x2000' % (s(sT2), s(sT2)))
    P('s_add_u32 %s, %s, %s' % (s(sMemRSt), s(sMemRSt), s(sT2)))
    P('s_add_u32 %s, %s, %s' % (s(sMemRNx), s(sMemRLd), s(sT2)))
    P('s_mov_b32 %s, s75' % s(sMemRLd))
    for i in range(4):
        P('v_mov_b32 %s, %s' % (v(T_ + i), v(vM0 + 8 + i)))
    P('v_mov_b32 %s, %s' % (v(T_ + 4), v(vM0 + 5)))
    P('v_lshrrev_b32 %s, 2, %s' % (v(vL4), v(vW1K)))
    P('v_add_u32 %s, 4, %s' % (v(vL4), v(vL4)))
    for i in range(24):
        P('v_mov_b32 %s, 0' % v(X_ + i))
    for i in range(4):
        P('v_mov_b32 %s, 0' % v(SP + i))
    for x in land(0):
        P(x)
    P('s_waitcnt vmcnt(0) lgkmcnt(0)')
    P('s_barrier')


def arrive(P):
    L = P.newlabel('arr')
    dbg = s(S_DBG, 4)
    P('s_cmp_lg_u32 %s, 3' % s(S_WAVE))
    P('s_cbranch_scc1 %s' % L)
    P('s_mov_b64 exec, 1')
    P('v_mov_b32 v89, 0')
    calibrate(P)
    P('s_getreg_b32 s7, hwreg(HW_REG_XCC_ID)')
    P('s_and_b32 s7, s7, 15')
    P('v_mov_b32 v88, s7')
    P('v_mul_u32_u24 v88, s7, v88')
    P('v_lshlrev_b32 v88, 15, v88')
    P('s_lshl_b32 s7, s7, 6')
    P('v_add3_u32 v88, v88, s7, 1')
    P('s_lshl_b32 s7, %s, 2' % s(S_CLS))
    P('buffer_atomic_add v88, v89, %s, s7 offen offset:%d' % (dbg, DBG_XCCMASK0))
    P('s_mov_b64 exec, -1')
    P.label(L)


def read_mode(P, vt, sfast, sa, sb):
    P('v_mov_b32 %s, 0' % v(vt))
    P('s_lshl_b32 %s, %s, 2' % (s(sa), s(S_CLS)))
    P('buffer_load_dword %s, %s, %s, %s offen offset:%d sc1' % (v(vt + 1), v(vt), s(S_DBG, 4), s(sa), DBG_XCCMASK0))
    P('s_waitcnt vmcnt(0)')
    P('v_readfirstlane_b32 %s, %s' % (s(sa), v(vt + 1)))
    mode_from_word(P, sfast, sa, sb)


def mode_from_word(P, sfast, sa, sb):
    P('s_bfe_u32 %s, %s, 0x90006' % (s(sb), s(sa)))
    P('s_mul_i32 %s, %s, %s' % (s(sb), s(sb), s(sb)))
    P('s_lshr_b32 %s, %s, 15' % (s(sa), s(sa)))
    P('s_lshl_b32 %s, %s, 5' % (s(sa), s(sa)))
    P('s_cmp_eq_u32 %s, %s' % (s(sa), s(sb)))
    P('s_cselect_b32 %s, 1, 0' % s(sfast))


def calibrate(P):
    L = P.newlabel('cal')
    ws = s(S_WS, 4)
    P('s_cmp_lg_u32 s2, 7')
    P('s_cbranch_scc1 %s' % L)
    P('s_waitcnt vmcnt(0)')
    P('s_mov_b32 s80, -1')
    P('s_mov_b32 s81, -1')
    P('s_mov_b32 s86, 0x%x' % (MEMR + 0x1c00))
    P('s_mov_b32 s87, 0x%x' % (MEMR + 0x3c00))
    for it in range(6):
        for hf in range(2):
            P('s_memtime s[82:83]')
            P('s_waitcnt lgkmcnt(0)')
            P('buffer_store_dword v89, v89, %s, s%d offen sc1' % (ws, 86 + hf))
            P('s_waitcnt vmcnt(0)')
            P('s_memtime s[84:85]')
            P('s_waitcnt lgkmcnt(0)')
            P('s_sub_u32 s84, s84, s82')
            P('s_min_u32 s%d, s%d, s84' % (80 + hf, 80 + hf))
    P('s_cmp_lt_u32 s81, s80')
    P('s_cselect_b32 s84, 0x2000, 0')
    P('s_getreg_b32 s85, hwreg(HW_REG_XCC_ID)')
    P('s_lshl_b32 s85, s85, 11')
    P('s_xor_b32 s84, s84, s85')
    P('v_mov_b32 v88, s84')
    P('buffer_store_dword v88, v89, %s, 0 offen offset:%d sc1' % (s(S_DBG, 4), DBG_NEAR))
    P('s_waitcnt vmcnt(0)')
    P.label(L)


def dbgtime(P, word, va=0):
    if not CFG.get('dbgt'):
        return
    P('s_memrealtime s[98:99]')
    P('s_waitcnt lgkmcnt(0)')
    if word == 9:
        P('s_not_b32 s98, s98')
    P('v_mov_b32 %s, s98' % v(va))
    P('v_mov_b32 %s, 0' % v(va + 1))
    P('s_mov_b64 exec, 1')
    P('buffer_atomic_umax %s, %s, %s, 0 offen offset:%d' % (v(va), v(va + 1), s(S_DBG, 4), 4 * word))
    P('s_mov_b64 exec, -1')


def spin_retry(P, Lpoll, Lok):
    P('s_add_u32 %s, %s, 1' % (s(S_SPIN), s(S_SPIN)))
    P('s_cmp_lt_u32 %s, %d' % (s(S_SPIN), SPIN_LIMIT))
    P('s_cbranch_scc1 %s' % Lpoll)
    P('s_branch %s' % Lok)


def wait_all(P):
    Lp, Lok = P.newlabel('wa'), P.newlabel('waok')
    P('v_mbcnt_lo_u32_b32 v89, -1, 0')
    P('v_and_b32 v89, 7, v89')
    P('v_lshlrev_b32 v89, 2, v89')
    P.label(Lp)
    P('buffer_load_dword v88, v89, %s, 0 offen offset:%d sc1' % (s(S_DBG, 4), DBG_XCCMASK0))
    P('s_waitcnt vmcnt(0)')
    P('v_and_b32 v88, 63, v88')
    P('v_cmp_ne_u32 vcc, 32, v88')
    P('s_cbranch_vccz %s' % Lok)
    P('s_sleep 2')
    spin_retry(P, Lp, Lok)
    P.label(Lok)


def flag_poll(P, ahead, first=False):
    Lp, Lok = P.newlabel('fp'), P.newlabel('fpok')
    f = T_
    P('s_add_u32 %s, %s, %d' % (s(sT0), s(sStep), ahead))
    P('s_min_u32 %s, %s, 63' % (s(sT0), s(sT0)))
    P.label(Lp)
    P('s_cmp_lt_u32 %s, %s' % (s(sT0), s(sProg)))
    P('s_cbranch_scc1 %s' % Lok)
    P('v_mov_b32 %s, 0' % v(f + 4))
    P('buffer_load_dwordx4 %s, %s, %s, %s offen sc1' % (v(f, 4), v(f + 4), s(S_WS, 4), s(sFlagOff)))
    P('s_waitcnt vmcnt(0)')
    P('v_min_u32 %s, %s, %s' % (v(f), v(f), v(f + 2)))
    P('v_min3_u32 %s, %s, %s, %s' % (v(f), v(f), v(f + 1), v(f + 3)))
    P('v_lshlrev_b32 %s, 1, %s' % (v(f), v(f)))
    P('v_readfirstlane_b32 %s, %s' % (s(sProg), v(f)))
    spin_retry(P, Lp, Lok)
    P.label(Lok)


def land(k):
    return ['ds_read_b128 %s, %s offset:%d' % (v(Z_ + 8 * nt + 4 * q, 4), v(vVW), (k & 3) * 16384 + nt * 2048 + q * 1024)
            for nt in range(2) for q in range(2)]


def W(mat, p, nt):
    return v(Z_ + 8 * nt, 8) if (mat, p) in LDS_PAIRS else WR[(mat, p, nt)]


def smf(acc, A, B):
    return 'v_smfmac_f32_16x16x64_bf16 %s, %s, %s, %s' % (v(acc, 4), v(A, 4), B, v(vIdx))


def cvt(d, a_):
    return 'v_cvt_pk_bf16_f32 %s, %s, %s' % (v(d), v(a_), v(a_ + 1))


def pk(op, d, a_, b_):
    return 'v_pk_%s_f32 %s, %s, %s' % (op, v(d, 2), v(a_, 2), v(b_, 2))


def chk5(t, stag, mask, d=T_):
    return ['v_bitop3_b32 %s, %s, %s, %s bitop3:0x%x' % (v(t), v(d), v(d + 1), s(stag), TT_XX),
            'v_bitop3_b32 %s, %s, %s, %s bitop3:0x%x' % (v(t + 1), v(d + 2), v(d + 3), s(stag), TT_XX),
            'v_bitop3_b32 %s, %s, %s, %s bitop3:0x%x' % (v(t), v(d + 4), v(t), s(stag), TT_XO),
            'v_bitop3_b32 %s, %s, %s, %s bitop3:0x%x' % (v(t), v(t), v(t + 1), mask, TT_OM),
            'v_cmp_ne_u32 vcc, 0, %s' % v(t)]


class LgkmTrack:
    def __init__(self, P):
        self.P, self.q = P, []
    def __call__(self, ins):
        I = Inst(ins)
        regs = I.rd | (I.wr if I.kind != 'ds' else set())
        last = -1
        for k, w in enumerate(self.q):
            if w & regs:
                last = k
        if last >= 0:
            self.P('s_waitcnt lgkmcnt(%d)' % (len(self.q) - 1 - last))
            self.q = self.q[last + 1:]
        self.P(ins)
        if I.kind == 'ds':
            self.q.append(set(I.wr))
    def drain(self):
        self.P('s_waitcnt lgkmcnt(0)')
        self.q = []
    def weave(self, main, fill):
        for k, m in enumerate(main):
            self(m)
            for f in fill.get(k, []):
                self(f)


def addfill(fill, start, ins, step=1):
    for k, x in enumerate(ins):
        fill.setdefault(start + k * step, []).append(x)


PTS = [[0, 1, 2, 3, 4, 5], [0, 'b1', 1, 4, 'ipoll', 5], [0, 'b1', 'b5', 'bend', 'cvm', 1], [1, 'b2', 'dq', 'dend', 'esx', 2], [2, 'b3', 'fsum', 'fexp', 'gw', 3], [3, 'b4', 'hm', 4, 'ipoll', 5]]
CFG = dict(stag=0, vg=4, vs=1, dR=-1, r2=1, lateb=0, nb0=5, trace=0, vpos=2, pts=0, dI=25, dA=60, dAn=0, preC=0, xs=0, km=1, touch=1, iso=0, lfirst=1, dA2=25, dI2=30, rg1=4, rg2=-1, kg=0, tg=5, tstr=64)


def delay(P, n):
    while n > 0:
        P('s_nop %d' % (min(n, 16) - 1))
        n -= 16


def r_loop(P, fast, X, reducer, w3, diag):
    ws = s(S_WS, 4)
    lc = '' if fast else ' sc1'
    tails = []
    Ltop, Lent, Lexit, Ldone = P.newlabel('R_top'), P.newlabel('R_ent'), P.newlabel('R_exit'), P.newlabel('R_done')
    E = LgkmTrack(P)

    def stamp(k):
        if diag > 1 and k in PTS[CFG['pts']]:
            P('%s %s' % ('s_memrealtime' if CFG['trace'] else 's_memtime', s(sStamp + 2 * PTS[CFG['pts']].index(k), 2)))
    A = lambda i: Y_ + 4 * (i % 5)
    gload = lambda base, d=T_: ['buffer_load_dwordx4 %s, %s, %s, %s offen sc1' % (v(d, 4), v(vW1K), ws, s(base)),
                                'buffer_load_dword %s, %s, %s, %s offen offset:4092 sc1' % (v(d + 4), v(vL4), ws, s(base))]
    P('s_branch %s' % Lent)
    P('.p2align 6')
    P.label(Ltop)
    early = CFG['dR'] >= 0
    T1, T2 = vKx, (vVx if early else T_)
    def a_try(base_reg):
        P('ds_write_b128 %s, %s' % (v(vW1K), v(base_reg, 4)))
        P('ds_write_b32 %s, %s offset:4092' % (v(vL4), v(base_reg + 4)))
        for x in chk5(Y_, sTagR, '1', base_reg):
            P(x)
    Lp, Lok, Lr = P.newlabel('R_pa'), P.newlabel('R_paok'), P.newlabel('R_par')
    for x in gload(sMemLLd, T1):
        P(x)
    delay(P, CFG['dA2'])
    for x in gload(sMemLLd, T2):
        P(x)
    if early:
        delay(P, CFG['dR'])
        for x in gload(sMemRLd):
            P(x)
        P('s_waitcnt vmcnt(4)')
    else:
        P.label(Lp)
        P('s_waitcnt vmcnt(2)')
    a_try(T1)
    P('s_cbranch_vccnz %s' % Lr)
    P.label(Lok)
    def a_tail(Lp=Lp, Lok=Lok):
        if early:
            P('s_waitcnt vmcnt(2)')
            a_try(T2)
            P('s_cbranch_vccz %s' % Lok)
            P.label(Lp)
            for x in gload(sMemLLd, T1) + gload(sMemRLd):
                P(x)
            P('s_waitcnt vmcnt(2)')
            a_try(T1)
            P('s_cbranch_vccz %s' % Lok)
            spin_retry(P, Lp, Lok)
            return
        for x in gload(sMemLLd, T1):
            P(x)
        P('s_waitcnt vmcnt(2)')
        a_try(T2)
        P('s_cbranch_vccz %s' % Lok)
        for x in gload(sMemLLd, T2):
            P(x)
        spin_retry(P, Lp, Lok)
    tails.append((Lr, a_tail))
    if not early:
        for x in gload(sMemRLd):
            P(x)
    stamp(0)
    P('s_waitcnt lgkmcnt(0)')
    P('s_barrier')
    P.label(Lent)
    stamp('b1')
    rdl = ['ds_read_b128 %s, %s offset:%d' % (v(A(i), 4), v(vL16), L_MEM + 1024 * i) for i in range(5)]
    nb0 = CFG['nb0']
    for x in rdl[:nb0]:
        E(x)
    main = []
    for i in range(5):
        main += [smf(accQ, A(i), W('q', i, 0)), smf(accQ + 4, A(i), W('q', i, 1)),
                 smf(accK, A(i), W('k', i, 0)), smf(accK + 4, A(i), W('k', i, 1))]
    fill = {}
    addfill(fill, 0, land(1)); addfill(fill, 6, land(2)); addfill(fill, 12, land(3))
    for k, x in enumerate(rdl[nb0:]):
        fill.setdefault((0, 4, 5, 10)[k + nb0 - 1], []).append(x)
    addfill(fill, 16, ['v_add_u32 %s, 0x10000, %s' % (v(vVW), v(vVW))])
    addfill(fill, 18, land(4)[:2])
    addfill(fill, 0, ['s_xor_b32 %s, %s, 1' % (s(sTagP), s(sTagP)),
                      's_min_u32 %s, %s, 1' % (s(sT0), s(sStep)), 's_lshl_b32 %s, %s, 17' % (s(sT1), s(sT0))])
    vo = CFG['stag'] * (2 if w3 else (1 if reducer == 'h16' else 0))
    addfill(fill, CFG['kg'] + vo, ['buffer_load_dwordx4 %s, %s, %s, %s offen offset:%d sc1' % (v(vKx + 4 * t, 4), v(vL16), ws, s(sKV), 1024 * t) for t in range(2)])
    for g in (CFG['rg1'], CFG['rg2']):
        if g >= 0:
            addfill(fill, g + vo, gload(sMemRLd, vVx if CFG['r2'] else T_))
    if CFG['km']:
        addfill(fill, 16 - vo, ['buffer_store_dwordx4 %s, %s, %s, %s offen sc1' % (v(SP, 4), v(vL16), ws, s(sKM))])
    addfill(fill, 17, ['s_add_u32 %s, %s, %s' % (s(sKM), s(sKM), s(sT1))])
    x = ['s_add_u32 %s, %s, 0x%x' % (s(sKV), s(sKV), 0 if CFG['iso'] else 0x40000), 's_add_u32 %s, %s, 0x%x' % (s(sVXoff), s(sKV), VX - KX)]
    addfill(fill, 17, x[::-1] if CFG['vpos'] == 2 else x)
    E.weave(main[:1], fill)
    stamp('b5')
    E.weave(main[1:], {k - 1: x for k, x in fill.items() if k > 0})
    stamp('bend')
    vm = [smf(AV + 4 * nt, A(i), W('v', i, nt)) for i in range(5) for nt in range(2)]
    l4 = land(4)[2:]
    E.weave(vm[:2], {0: l4[:1], 1: l4[1:]})
    Lp, Lok, Lr, Lp2 = P.newlabel('R_pc'), P.newlabel('R_pcok'), P.newlabel('R_pcr'), P.newlabel('R_pc2')
    P('s_waitcnt vmcnt(%d)' % ((1 if CFG['km'] else 0) + (2 if CFG['r2'] else 0)))
    stamp('cvm')
    E('ds_write_b128 %s, %s offset:5120' % (v(vW1K), v(T_, 4)))
    E('ds_write_b32 %s, %s offset:%d' % (v(vL4), v(T_ + 4), 5120 + 4092))
    c5 = chk5(T_ + 6, sTagR, s(sChk))
    E.weave(vm[2:6], {0: c5[0:2], 1: c5[2:4], 2: c5[4:5]})
    P('s_cbranch_vccnz %s' % Lr)
    P.label(Lok)
    def c_tail(Lr=Lr, Lp2=Lp2, Lok=Lok):
        if CFG['r2']:
            Lr = P.newlabel('R_pcr2')
            P('s_waitcnt vmcnt(%d)' % (1 if CFG['km'] else 0))
            P('ds_write_b128 %s, %s offset:5120' % (v(vW1K), v(vVx, 4)))
            P('ds_write_b32 %s, %s offset:%d' % (v(vL4), v(vVx + 4), 5120 + 4092))
            for x in chk5(T_ + 6, sTagR, s(sChk), vVx):
                P(x)
            P('s_cbranch_vccz %s' % Lok)
            P.label(Lr)
        spin_retry(P, Lp2, Lok)
        P.label(Lp2)
        P('s_waitcnt lgkmcnt(0)')
        for x in gload(sMemRLd):
            P(x)
        P('s_waitcnt vmcnt(0)')
        P('ds_write_b128 %s, %s offset:5120' % (v(vW1K), v(T_, 4)))
        P('ds_write_b32 %s, %s offset:%d' % (v(vL4), v(T_ + 4), 5120 + 4092))
        for x in chk5(T_ + 6, sTagR, s(sChk)):
            P(x)
        P('s_cbranch_vccnz %s' % Lr)
        P('s_branch %s' % Lok)
    tails.append((Lr, c_tail))
    if w3:
        P('v_lshlrev_b32 %s, 3, %s' % (v(T_ + 7), v(vL16)))
        P('s_add_u32 %s, %s, 0x%x' % (s(sT2), s(sTch), VX - KX))
    stamp(1)
    E.drain()
    P('s_barrier')
    stamp('b2')
    rd = ['ds_read_b128 %s, %s offset:%d' % (v(A(i), 4), v(vL16), L_MEM + 5120 + 1024 * i) for i in range(5)]
    E(rd[0]); E(rd[1])
    fill = {0: [rd[2]], 1: [rd[3]], 3: [rd[4]]}
    E.weave(vm[6:], fill)
    stamp('dq')
    main = [smf(accQ + 4 * nt, A(i), W('q', 5 + i, nt)) for i in range(5) for nt in range(2)]
    main += [smf(accK + 4 * nt, A(i), W('k', 5 + i, nt)) for i in range(5) for nt in range(2)]
    fill = {}
    addfill(fill, 0, land(5)); addfill(fill, 6, land(6)); addfill(fill, 12, land(7))
    addfill(fill, CFG['vg'] + (vo if not w3 else -CFG['stag']), ['buffer_load_dwordx4 %s, %s, %s, %s offen offset:%d sc1' % (v(vVx + 4 * t, 4), v(vL16), ws, s(sVXoff), 1024 * t) for t in range(2)], CFG['vs'])
    if w3 and CFG['touch']:
        addfill(fill, 10, ['buffer_load_dword %s, %s, %s offen sc1 lds' % (v(T_ + 7), ws, s(b_)) for b_ in (sTch, sT2)])
    addfill(fill, 17, ['v_add_u32 %s, 0x10000, %s' % (v(vVW), v(vVW))])
    addfill(fill, 18, land(8)[:2])
    addfill(fill, 5, ['s_mov_b32 %s, %s' % (s(sMemRLd), s(sMemRNx)), 's_xor_b32 %s, %s, 0x4000' % (s(sMemRNx), s(sMemRNx)),
                      's_xor_b32 %s, %s, 0x4000' % (s(sMemLLd), s(sMemLLd))])
    addfill(fill, 0, ['s_andn2_b32 %s, 1, %s' % (s(sT0), s(sStep)),
                      's_xor_b32 %s, %s, %s' % (s(sTagR), s(sTagR), s(sT0)), 's_mov_b32 %s, 1' % s(sChk),
                      's_min_u32 %s, %s, 1' % (s(sT0), s(sStep))])
    if w3:
        addfill(fill, 4, ['s_cmp_gt_u32 %s, %d' % (s(sStep), EARLY), 's_cselect_b32 %s, 0, %s' % (s(sT0), s(sT0))])
        addfill(fill, 6, ['s_sub_u32 %s, %s, %s' % (s(sT0), s(sStep), s(sT0)), 'v_mov_b32 %s, %s' % (v(T_ + 1), s(sT0)),
                          'v_mov_b32 %s, 0' % v(T_ + 6),
                          'buffer_store_dword %s, %s, %s, %s offen sc1' % (v(T_ + 1), v(T_ + 6), ws, s(sKmFlagOff))])
    addfill(fill, 13, [cvt(T_, accQ), cvt(T_ + 1, accQ + 2), cvt(T_ + 2, accQ + 4), cvt(T_ + 3, accQ + 6)])
    E.weave(main, fill)
    stamp('dend')
    Ak = SP if X == 0 else T_ + 4
    tr = lambda d, a_: 'v_mfma_f32_16x16x16_bf16 %s, %s, %s, 0' % (v(d, 4), v(a_, 2), v(vSig, 2))
    mm = lambda d, a_, b_: 'v_mfma_f32_16x16x32_bf16 %s, %s, %s, 0' % (v(d, 4), v(a_, 4), v(b_, 4))
    E(tr(accQ, T_)); E(land(8)[2]); E(tr(accQ + 4, T_ + 2)); E(land(8)[3])
    E(cvt(T_ + 4, accK)); E(cvt(T_ + 5, accK + 2)); E(cvt(T_ + 6, accK + 4)); E(cvt(T_ + 7, accK + 6))
    E(tr(accK, T_ + 4))
    E(cvt(T_, accQ))
    E(tr(accK + 4, T_ + 6))
    E(cvt(T_ + 1, accQ + 2)); E(cvt(T_ + 2, accQ + 4)); E(cvt(T_ + 3, accQ + 6))
    E(mm(accQ, vKx, T_)); E(mm(accQ + 4, vKx + 4, T_))
    for i in range(4):
        E(cvt(Ak + i, accK + 2 * i))
    E(mm(accK, Ak, T_))
    for r in range(4):
        E('v_cndmask_b32 %s, %s, %s, %s' % (v(accQ + r), v(accQ + r), v(accQ + 4 + r), s(sC8, 2)))
    E('ds_write_b128 %s, %s offset:%d' % (v(vW1K), v(accQ, 4), L_SX))
    for r in range(2):
        E('v_cndmask_b32 %s, %s, %s, %s' % (v(accK + r), v(accK + r), v(accK + 2 + r), s(sC8, 2)))
    E('ds_write_b64 %s, %s offset:%d' % (v(vW1K), v(accK, 2), L_MEM))
    stamp('esx')
    vr = [smf(AV + 4 * nt, A(i), W('v', 5 + i, nt)) for i in range(5) for nt in range(2)]
    adr = [T_ + 4, T_ + 6, X_ + 10]
    E.weave(vr[:5], {k: ['v_xor_b32 %s, 0x%x, %s' % (v(adr[k]), 1024 * (k + 1), v(vW1K))] for k in range(3)})
    P('s_cmp_eq_u32 %s, 63' % s(sStep))
    P('s_cbranch_scc1 %s' % Lexit)
    stamp(2)
    E.drain()
    P('s_barrier')
    stamp('b3')
    xd = [X_ + 4, X_ + 12, T_]
    rds = []
    for k in range(3):
        rds.append('ds_read_b128 %s, %s offset:%d' % (v(xd[k], 4), v(adr[k]), L_SX))
        rds.append('ds_read_b64 %s, %s offset:%d' % (v(adr[k], 2), v(adr[k]), L_MEM))
    E(rds[0]); E(rds[1])
    E.weave(vr[5:], {k: [rds[2 + k]] for k in range(4)})
    m_ = X_ + 8
    E(pk('add', X_, X_, X_ + 4)); E(pk('add', X_ + 2, X_ + 2, X_ + 6)); E(pk('add', m_, m_, T_ + 4))
    E(pk('add', X_ + 12, X_ + 12, T_)); E(pk('add', X_ + 14, X_ + 14, T_ + 2)); E(pk('add', T_ + 6, T_ + 6, X_ + 10))
    E(pk('add', X_, X_, X_ + 12)); E(pk('add', X_ + 2, X_ + 2, X_ + 14)); E(pk('add', m_, m_, T_ + 6))
    stamp('fsum')
    mx, tm = X_ + 10, X_ + 11
    Vm = SP if X == 1 else Z_
    vc = [cvt(Vm + i, AV + 2 * i) for i in range(4)]
    E('v_max3_f32 %s, %s, %s, %s' % (v(mx), v(X_), v(X_ + 1), v(X_ + 2)))
    E('v_max3_f32 %s, %s, %s, %s' % (v(mx), v(mx), v(X_ + 3), v(m_)))
    E('v_max_f32 %s, %s, %s' % (v(mx), v(mx), v(m_ + 1)))
    E(vc[0]); E(vc[1])
    E('v_max_f32_dpp %s, %s, %s row_ror:8 row_mask:0xf bank_mask:0xf' % (v(mx), v(mx), v(mx)))
    E('v_mov_b32 %s, %s' % (v(tm), v(mx)))
    E(vc[2]); E(vc[3])
    E('v_permlane16_swap_b32 %s, %s' % (v(mx), v(tm)))
    E('v_max_f32 %s, %s, %s' % (v(mx), v(mx), v(tm)))
    E('v_mov_b32 %s, %s' % (v(tm), v(mx)))
    E('v_mov_b32 %s, 0' % v(Y_)); E('v_mov_b32 %s, 0' % v(Y_ + 1))
    E('v_permlane32_swap_b32 %s, %s' % (v(mx), v(tm)))
    E('v_max_f32 %s, %s, %s' % (v(mx), v(mx), v(tm)))
    E('v_mul_f32 %s, %s, %s' % (v(mx), s(sScale), v(mx)))
    for r in (X_, X_ + 2, m_):
        E('v_pk_fma_f32 %s, %s, %s, %s op_sel_hi:[1,1,0] neg_lo:[0,0,1] neg_hi:[0,0,1]' % (v(r, 2), v(r, 2), s(sScale2, 2), v(mx, 2)))
    for r in (X_, X_ + 1, X_ + 2, X_ + 3, m_, m_ + 1):
        E('v_exp_f32 %s, %s' % (v(r), v(r)))
    stamp('fexp')
    Bx, Bm = T_, T_ + 4
    E(cvt(Bx, X_)); E(cvt(Bx + 1, X_ + 2)); E(cvt(Bm, m_))
    for d, a_ in ((Bx + 2, Bx), (Bx + 3, Bx + 1), (Bm + 1, Bm)):
        E('v_mov_b32_dpp %s, %s row_ror:8 row_mask:0xf bank_mask:0xf' % (v(d), v(a_)))
    O0, O1 = X_ + 4, X_ + 12
    ls, lt = X_ + 10, X_ + 11
    E(pk('add', X_, X_, X_ + 2))
    if CFG['vpos'] == 2:
        E('s_waitcnt vmcnt(%d)' % ((1 + 2 * CFG['touch']) if w3 else 0))
    E(mm(O0, vVx, Bx))
    E('v_add_f32 %s, %s, %s' % (v(m_), v(m_), v(m_ + 1)))
    E('v_add_f32 %s, %s, %s' % (v(X_), v(X_), v(X_ + 1)))
    E(mm(O1, vVx + 4, Bx))
    E('v_fma_f32 %s, %s, 0.5, %s' % (v(ls), v(m_), v(X_)))
    E('v_mfma_f32_16x16x16_bf16 %s, %s, %s, %s' % (v(O0, 4), v(Vm, 2), v(Bm, 2), v(O0, 4)))
    E('v_mov_b32 %s, 0' % v(Y_ + 2))
    E('v_add_f32_dpp %s, %s, %s row_ror:8 row_mask:0xf bank_mask:0xf' % (v(ls), v(ls), v(ls)))
    E('v_mfma_f32_16x16x16_bf16 %s, %s, %s, %s' % (v(O1, 4), v(Vm + 2, 2), v(Bm, 2), v(O1, 4)))
    E('v_mov_b32 %s, %s' % (v(lt), v(ls)))
    E('v_mov_b32 %s, 0' % v(Y_ + 3)); E('v_mov_b32 %s, 0' % v(Y_ + 4))
    E('v_permlane16_swap_b32 %s, %s' % (v(ls), v(lt)))
    E('v_add_f32 %s, %s, %s' % (v(ls), v(ls), v(lt)))
    E('v_mov_b32 %s, %s' % (v(lt), v(ls)))
    E('v_mov_b32 %s, 0' % v(Y_ + 5)); E('v_mov_b32 %s, 0' % v(Y_ + 6))
    E('v_permlane32_swap_b32 %s, %s' % (v(ls), v(lt)))
    E('v_add_f32 %s, %s, %s' % (v(ls), v(ls), v(lt)))
    E('v_rcp_f32 %s, %s' % (v(ls), v(ls)))
    E('s_mov_b64 exec, %s' % s(sEx8, 2))
    for r in (O0, O0 + 2, O1, O1 + 2):
        E('v_pk_mul_f32 %s, %s, %s op_sel_hi:[1,0]' % (v(r, 2), v(r, 2), v(ls, 2)))
    E(cvt(X_, O0)); E(cvt(X_ + 1, O0 + 2)); E(cvt(X_ + 2, O1)); E(cvt(X_ + 3, O1 + 2))
    E('ds_write_b128 %s, %s' % (v(vOWr), v(X_, 4)))
    stamp('gw')
    E('s_mov_b64 exec, -1')
    for i in range(7, 20):
        E('v_mov_b32 %s, 0' % v(Y_ + i))
    stamp(3)
    E.drain()
    P('s_barrier')
    stamp('b4')
    for k in range(2):
        E('ds_read_b128 %s, %s offset:%d' % (v(T_ + 4 * k, 4), v(vL16), L_O + 1024 * k))
    p1, Pk = X_, X_ + 4
    E('v_subrev_u32 %s, 0x20000, %s' % (v(vVW), v(vVW)))
    E('v_lshrrev_b32 %s, 8, %s' % (v(p1), v(vL16)))
    E('v_bfe_u32 %s, %s, 2, 6' % (v(p1 + 1), v(vL16)))
    E('v_lshl_add_u32 %s, %s, 13, %s' % (v(p1), v(p1), v(p1 + 1)))
    D = lambda T: Y_ + 4 * T
    main = [smf(D(T), T_ + 4 * k, WR[('o', k, T)]) + ' abid:1' for T in range(5) for k in range(2)]
    sw = lambda a_, b_: 'v_permlane32_swap_b32 %s, %s' % (v(a_), v(b_))
    bfi = lambda r: 'v_bfi_b32 %s, 1, %s, %s' % (v(r), s(sTagP), v(r))
    ha = lambda T, r: 'v_add_f32 %s, %s, %s' % (v(D(T) + r), v(D(T) + r), v(D(T) + 2 + r))
    hs = lambda T: pk('add', D(T), D(T), D(T) + 2)
    E.weave(main, {3: [ha(0, 0)], 4: [ha(0, 1)], 5: [cvt(Pk, D(0)), ha(1, 0)], 6: [ha(1, 1), bfi(Pk)], 7: [cvt(Pk + 1, D(1)), ha(2, 0)],
                   8: [ha(2, 1)], 9: [ha(3, 0), ha(3, 1), cvt(Pk + 2, D(2)), cvt(Pk + 3, D(3))]})
    E('buffer_store_dwordx4 %s, %s, %s, %s offen%s' % (v(Pk, 4), v(vPSt), ws, s(sPartSt0), lc))
    stamp('hm')
    E(hs(4)); E(cvt(D(4), D(4))); E(bfi(D(4)))
    E('buffer_store_dword %s, %s, %s, %s offen%s' % (v(D(4)), v(p1), ws, s(sPartSt1), lc))
    stamp(4)
    vl = ['buffer_load_dwordx4 %s, %s, %s, %s offen offset:%d sc1' % (v(vVx + 4 * t, 4), v(vL16), ws, s(sVXoff), 1024 * t) for t in range(2)]
    if CFG['vpos'] == 0:
        P(vl[0]); P(vl[1])
    Lne = P.newlabel('R_noearly')
    P('s_cmp_lt_u32 %s, %d' % (s(sStep), EARLY))
    P('s_cbranch_scc1 %s' % Lne)
    P('buffer_store_dwordx4 %s, %s, %s, %s offen sc1' % (v(SP, 4), v(vL16), ws, s(sKM)))
    P.label(Lne)
    def idle_list():
        return (['v_mov_b32 %s, 0' % v(X_ + i) for i in range(24)] + land(0) +
                ['v_lshrrev_b32 %s, 2, %s' % (v(vL4), v(vW1K)), 'v_add_u32 %s, 4, %s' % (v(vL4), v(vL4)),
                 's_add_u32 %s, %s, 1' % (s(sStep), s(sStep))])
    def idle_work():
        for x in idle_list():
            P(x)
    Lnored, Ljoin = P.newlabel('R_nored'), P.newlabel('R_join')
    if reducer == 'h16':
        P('s_cmp_ge_u32 %s, 16' % s(sH))
        P('s_cbranch_scc1 %s' % Lnored)
    pl = lambda R_: ['buffer_load_dwordx4 %s, %s, %s, %s offen offset:%d sc1' % (v(R_ + 4 * i, 4), v(vL16), ws, s(sPartLd), 1024 * i) for i in range(2)]
    if reducer:
        Lp, Lok, Lr = P.newlabel('R_pi'), P.newlabel('R_piok'), P.newlabel('R_pir')
        msk, mst, sel, Dr = T_ + 6, T_ + 7, Y_ + 8, Y_ + 12
        pre = ['v_mov_b32 %s, 0xfffe0000' % v(msk),
               'v_lshrrev_b32 %s, 2, %s' % (v(T_), v(vL16)),
               'v_and_b32 %s, 0x80, %s' % (v(T_), v(T_)),
               'v_and_or_b32 %s, %s, 16, %s' % (v(mst), v(vL16), v(T_)),
               'v_lshrrev_b32 %s, 5, %s' % (v(T_), v(vL16)),
               'v_and_or_b32 %s, %s, 8, %s' % (v(mst), v(T_), v(mst)),
               'v_lshrrev_b32 %s, 4, %s' % (v(T_), v(vL16)),
               'v_and_or_b32 %s, %s, 4, %s' % (v(mst), v(T_), v(mst)),
               'v_mov_b32 %s, 0x3f80' % v(T_),
               'v_cndmask_b32 %s, %s, 1.0, %s' % (v(T_), v(T_), s(sOdd, 2))]
        pre += ['v_cndmask_b32 %s, 0, %s, %s' % (v(sel + q), v(T_), s(sSelM + 2 * q, 2)) for q in range(4)]
        pre += ['s_lshl_b32 %s, %s, 16' % (s(sT16R), s(sTagR)), 's_sub_u32 %s, 0x10000, %s' % (s(sK1R), s(sT16R))]
        work = idle_list() + pre
        n1 = min(len(work), CFG['dI'])
        for x in work[:n1]:
            P(x)
        delay(P, CFG['dI'] - n1)
        for x in pl(Y_):
            P(x)
        n2 = min(len(work), n1 + CFG['dI2'])
        for x in work[n1:n2]:
            P(x)
        delay(P, CFG['dI2'] - (n2 - n1))
        for x in pl(vKx):
            P(x)
        for x in work[n2:]:
            P(x)
        def i_try(R_):
            xx = lambda d, i: 'v_bitop3_b32 %s, %s, %s, %s bitop3:0x%x' % (v(d), v(R_ + 2 * i), v(R_ + 2 * i + 1), s(sTagP), TT_XX)
            P('s_waitcnt vmcnt(3)')
            P('v_mfma_f32_16x16x32_bf16 %s, %s, %s, 0' % (v(Dr, 4), v(R_, 4), v(sel, 4)))
            if reducer == 'h16':
                P(xx(T_, 0)); P(xx(T_ + 1, 1))
            P('s_waitcnt vmcnt(2)')
            stamp('ipoll')
            P('v_mfma_f32_16x16x32_bf16 %s, %s, %s, %s' % (v(Dr, 4), v(R_ + 4, 4), v(sel, 4), v(Dr, 4)))
            if reducer == 'h16':
                P(xx(T_ + 2, 2)); P(xx(T_ + 3, 3))
                P('v_or3_b32 %s, %s, %s, %s' % (v(T_), v(T_), v(T_ + 2), v(T_ + 3)))
                P('v_bitop3_b32 %s, %s, %s, 1 bitop3:0x%x' % (v(T_), v(T_), v(T_ + 1), TT_OM))
            else:
                P('v_bitop3_b32 %s, %s, %s, %s bitop3:0x%x' % (v(T_), v(R_), v(R_ + 4), s(sTagP), TT_XX))
                P('v_and_b32 %s, 1, %s' % (v(T_), v(T_)))
            P('v_cmp_ne_u32 vcc, 0, %s' % v(T_))
        def i_fin():
            P(sw(Dr, Dr + 2)); P(sw(Dr + 1, Dr + 3))
            P(pk('add', Dr, Dr, Dr + 2))
            P('v_permlane16_swap_b32 %s, %s' % (v(Dr), v(Dr + 1)))
            P('v_add_f32 %s, %s, %s' % (v(Dr), v(Dr), v(Dr + 1)))
            P('v_add_u32 %s, %s, %s' % (v(Dr + 2), s(sK1R), v(Dr)))
            P('v_bfi_b32 %s, %s, %s, %s' % (v(Dr + 2), v(msk), v(Dr + 2), s(sT16R)))
            P('v_mov_b32_dpp %s, %s row_shl:2 row_mask:0xf bank_mask:0xf' % (v(Dr + 1), v(Dr)))
        Lok2 = P.newlabel('R_piok2')
        P.label(Lp)
        i_try(Y_)
        if CFG['lateb']:
            i_fin()
        P('s_cbranch_vccnz %s' % Lr)
        P.label(Lok)
        if not CFG['lateb']:
            i_fin()
        def i_tail(Lp=Lp, Lok=Lok):
            for x in pl(Y_):
                P(x)
            i_try(vKx)
            if CFG['lateb']:
                i_fin()
            P('s_cbranch_vccz %s' % Lok)
            for x in pl(vKx):
                P(x)
            spin_retry(P, Lp, Lok)
        tails.append((Lr, i_tail))
        P('s_mov_b64 exec, %s' % s(sExSt, 2))
        P('v_cvt_pk_bf16_f32 %s, %s, %s' % (v(Dr + 2), v(Dr + 2), v(Dr + 1)))
        P('buffer_store_dword %s, %s, %s, %s offen%s' % (v(Dr + 2), v(mst), ws, s(sMemLSt), lc))
        P('buffer_store_dword %s, %s, %s, %s offen sc1' % (v(Dr + 2), v(mst), ws, s(sMemRSt)))
        P('s_mov_b64 exec, -1')
        stamp(5)
        P('s_xor_b32 %s, %s, 0x4000' % (s(sMemRSt), s(sMemRSt)))
        P('s_xor_b32 %s, %s, 0x4000' % (s(sMemLSt), s(sMemLSt)))
        if reducer == 'h16':
            P('s_branch %s' % Ljoin)
    if reducer in (False, 'h16'):
        P.label(Lnored)
        if w3 and not CFG['iso']:
            flag_poll(P, 3)
            P('s_add_u32 %s, %s, 0x40000' % (s(sTch), s(sTch)))
        idle_work()
        stamp(5)
        P.label(Ljoin)
    P('s_barrier')
    if CFG['vpos'] == 1:
        P(vl[0]); P(vl[1])
    delay(P, CFG['dA'])
    if diag > 1 and CFG['trace']:
        Ld = P.newlabel('R_tr')
        P('s_waitcnt lgkmcnt(0)')
        P('s_sub_u32 s75, %s, 30' % s(sStep))
        P('s_cmp_ge_u32 s75, 16')
        P('s_cbranch_scc1 %s' % Ld)
        P('s_mul_i32 s75, s75, 24')
        P('s_mul_i32 s74, %s, 384' % s(sW))
        P('s_add_u32 s75, s75, s74')
        P('s_add_u32 s75, s75, 14592')
        P('v_mov_b32 %s, s75' % v(Y_))
        for k in range(6):
            P('v_mov_b32 %s, %s' % (v(Y_ + 1), s(sStamp + 2 * k)))
            P('ds_write_b32 %s, %s offset:%d' % (v(Y_), v(Y_ + 1), 4 * k))
        P.label(Ld)
    elif diag > 1:
        Ld = P.newlabel('R_dg')
        P('s_waitcnt lgkmcnt(0)')
        P('s_cmp_lt_u32 %s, 4' % s(sStep))
        P('s_cbranch_scc1 %s' % Ld)
        for k in range(6):
            P('s_sub_u32 s75, %s, %s' % (s(sStamp + 2 * k), 's74' if k == 0 else s(sStamp + 2 * k - 2)))
            P('s_add_u32 %s, %s, s75' % (s(80 + k), s(80 + k)))
            P('s_max_u32 %s, %s, s75' % (s(68 + k), s(68 + k)))
        P.label(Ld)
        P('s_mov_b32 s74, %s' % s(sStamp + 10))
    P('s_branch %s' % Ltop)
    for k, t in enumerate(tails):
        P.label(t[0])
        if diag:
            P('s_add_u32 s78, s78, 0x%x' % (1 << (10 * k)))
        t[1]()
    P.label(Lexit)
    P('s_waitcnt lgkmcnt(0)')
    if X == 1:
        for x in vr[5:]:
            P(x)
        for x in vc:
            P(x)
    P('buffer_store_dwordx4 %s, %s, %s, %s offen sc1' % (v(SP, 4), v(vL16), ws, s(sKM)))


def role_r(P, diag=False):
    r_prologue(P, diag)
    dbgtime(P, 12, Y_)
    Lend = P.newlabel('R_end')
    if diag:
        P('s_memtime s[98:99]')
        P('s_memrealtime s[100:101]')
        P('s_waitcnt lgkmcnt(0)')
        for k in list(range(80, 86)) + list(range(68, 75)) + [78]:
            P('s_mov_b32 s%d, 0' % k)
    names = (('r', True, False), ('h', 'h16', False), ('w3', False, True))
    lab = {(f, X, nm): P.newlabel('R_v%d%d%s' % (f, X, nm)) for f in (1, 0) for X in (0, 1) for nm, _, _ in names}
    sel = {(f, X): P.newlabel('R_s%d%d' % (f, X)) for f in (1, 0) for X in (0, 1)}
    Lsafe = P.newlabel('R_safe')
    P('s_cmp_lg_u32 %s, 1' % s(sFast))
    P('s_cbranch_scc1 %s' % Lsafe)
    for f in (1, 0):
        if not f:
            P.label(Lsafe)
        P('s_cmp_eq_u32 %s, 1' % s(sX))
        P('s_cbranch_scc1 %s' % sel[(f, 1)])
        for X in (0, 1):
            P.label(sel[(f, X)])
            P('s_cmp_eq_u32 %s, 2' % s(sW))
            P('s_cbranch_scc1 %s' % lab[(f, X, 'h')])
            P('s_cmp_eq_u32 %s, 3' % s(sW))
            P('s_cbranch_scc1 %s' % lab[(f, X, 'w3')])
            P('s_branch %s' % lab[(f, X, 'r')])
    for f in (1, 0):
        for X in (0, 1):
            for nm, red, w3 in names:
                P.label(lab[(f, X, nm)])
                r_loop(P, f, X, red, w3, diag)
                P('s_branch %s' % Lend)
    P.label(Lend)
    P('s_waitcnt vmcnt(0) lgkmcnt(0)')
    P('s_barrier')
    dbgtime(P, 13)
    L = P.newlabel('R_fin')
    P('s_cmp_lg_u32 %s, 3' % s(sW))
    P('s_cbranch_scc1 %s' % L)
    P('v_mov_b32 v0, 64')
    P('v_mov_b32 v1, 0')
    P('s_mov_b64 exec, 1')
    P('buffer_store_dword v0, v1, %s, %s offen sc1' % (s(S_WS, 4), s(sKmFlagOff)))
    P('s_mov_b64 exec, -1')
    P.label(L)
    if diag > 1 and CFG['trace']:
        P('v_mbcnt_lo_u32_b32 v0, -1, 0'); P('v_mbcnt_hi_u32_b32 v0, -1, v0')
        P('v_lshlrev_b32 v0, 3, v0')
        P('s_mul_i32 s74, %s, 384' % s(sW))
        P('v_add_u32 v1, s74, v0')
        P('ds_read_b64 v[2:3], v1 offset:14592')
        P('s_lshl_b32 s7, s2, 2'); P('s_add_u32 s7, s7, %s' % s(sW)); P('s_lshl_b32 s7, s7, 9'); P('s_add_u32 s7, s7, 0x%x' % (END0 + 0x120000))
        P('s_waitcnt lgkmcnt(0)')
        P('buffer_store_dwordx2 v[2:3], v0, %s, s7 offen' % s(S_WS, 4))
    if diag:
        P('s_memtime s[92:93]')
        P('s_memrealtime s[96:97]')
        P('s_waitcnt lgkmcnt(0)')
        P('s_sub_u32 s86, s92, s98')
        P('s_sub_u32 s87, s96, s100')
        if diag == 1:
            P('s_mov_b32 s80, s100')
            P('s_mov_b32 s81, s96')
        P('s_mov_b32 s88, s78')
        P('s_mov_b32 s89, %s' % s(sFast))
        P('s_lshl_b32 s7, s2, 2')
        P('s_add_u32 s7, s7, %s' % s(sW))
        P('s_lshl_b32 s7, s7, 6')
        P('s_add_u32 s7, s7, 0x%x' % END0)
        P('v_mov_b32 v1, 0')
        for k in range(16):
            P('v_mov_b32 v0, s%d' % (80 + k if k < 10 else 58 + k))
            P('buffer_store_dword v0, v1, %s, s7 offen offset:%d' % (s(S_WS, 4), 4 * k))
```

```python
from asmlib import *
from layout import *

def tt(f):
    return sum((f(a_, b_, c_) & 1) << ((a_ << 2) | (b_ << 1) | c_) for a_ in (0, 1) for b_ in (0, 1) for c_ in (0, 1))
TT_XX = tt(lambda a_, b_, c_: (a_ ^ c_) | (b_ ^ c_))
TT_OM = tt(lambda a_, b_, c_: (a_ | b_) & c_)
TT_XO = tt(lambda a_, b_, c_: (a_ ^ c_) | b_)

S_WS, S_DBG, S_TMP = 8, 12, 16
S_CLS, S_IDX, S_WAVE, S_SPIN = 3, 4, 5, 6
SPIN_LIMIT = 400000
EARLY = 58
sX, sH, sW = S_CLS, S_IDX, S_WAVE
sStep, sTagP, sTagR, sK1P, sK1R, sT16P, sT16R = 20, 21, 22, 23, 24, 25, 26
sPartSt0, sPartSt1, sPartLd, sMemLSt, sMemRSt, sMemLLd, sMemRLd = 27, 28, 29, 30, 31, 32, 33
sKV, sKM, sTch, sFlagOff, sKmFlagOff, sFast, sT0, sT1, sT2, sT3 = 34, 35, 36, 37, 38, 39, 40, 41, 42, 43
sC8 = 44
sEx8 = 46
sExSt = 48
sScale = 50
sVXoff = 51
sChk = 52
sScale2 = 54
sPartSt2 = 53
sSelM = 60
sOdd = 76
sProg = 79
sMemRNx = 56
sStamp = 86

vKx, vVx = 0, 8
vSig, vIdx, vL16, vW1K, vVW, vOWr, vPSt = 16, 18, 19, 20, 21, 22, 23
X_, AV, T_, Y_, Z_, SP = 24, 40, 48, 56, 76, 92
accQ, accK = X_, X_ + 8
vL4 = T_ + 5

L_MEM, L_SX, L_W = 0, 10240, 16384
L_O = 5 * 1024

LDS_PAIRS = [('q', 0), ('k', 1), ('q', 3), ('k', 4), ('v', 2), ('q', 8), ('k', 6), ('k', 9), ('v', 9)]

def weight_regs():
    free = [a(8 * i, 8) for i in range(32)] + [v(96 + 8 * i, 8) for i in range(20)]
    m = {}
    for mat in 'qkv':
        for p in range(10):
            if (mat, p) in LDS_PAIRS:
                continue
            for nt in range(2):
                m[(mat, p, nt)] = free.pop(0)
    for kt2 in range(2):
        for T in range(5):
            m[('o', kt2, T)] = free.pop(0)
    assert not free
    return m
WR = weight_regs()

def sub(reg, off, n):
    f, lo = reg[0], int(reg[2:reg.index(':')])
    return (a if f == 'a' else v)(lo + off, n)


def srd(P, dst, lo, nbytes):
    P('s_mov_b32 %s, %s' % (s(dst), s(lo)))
    P('s_and_b32 %s, %s, 0xffff' % (s(dst + 1), s(lo + 1)))
    P('s_mov_b32 %s, 0x%x' % (s(dst + 2), nbytes))
    P('s_mov_b32 %s, 0x20000' % s(dst + 3))


def r_prologue(P, diag):
    ws = s(S_WS, 4)
    P('; ===== R prologue =====')
    lane, t0, t1, t2, t3 = 92, 93, 94, 95, 91
    P('v_and_b32 %s, 63, v0' % v(lane))
    P('v_lshlrev_b32 %s, 4, %s' % (v(vL16), v(lane)))
    zz = 24
    for i in range(4):
        P('v_mov_b32 %s, 0' % v(zz + i))
    P('s_mul_i32 %s, %s, 0x%x' % (s(sT0), s(sX), PART_X))
    P('s_add_u32 %s, %s, 0x%x' % (s(sT0), s(sT0), PART))
    P('s_lshl_b32 %s, %s, 5' % (s(sT1), s(sW)))
    P('s_add_u32 %s, %s, %s' % (s(sT1), s(sT1), s(sH)))
    P('s_lshl_b32 %s, %s, 11' % (s(sT2), s(sT1)))
    P('s_add_u32 %s, %s, %s' % (s(sPartLd), s(sT0), s(sT2)))
    P('s_lshl_b32 %s, %s, 6' % (s(sT2), s(sH)))
    P('s_add_u32 %s, %s, %s' % (s(sPartSt0), s(sT0), s(sT2)))
    P('s_lshl_b32 %s, %s, 11' % (s(sT2), s(sW)))
    P('s_add_u32 %s, %s, %s' % (s(sPartSt1), s(sPartSt0), s(sT2)))
    P('s_add_u32 %s, %s, 0x%x' % (s(sPartSt1), s(sPartSt1), 64 * 2048))
    Lnoclr = P.newlabel('R_noclr')
    P('s_cmp_ge_u32 %s, 80' % s(sT1))
    P('s_cbranch_scc1 %s' % Lnoclr)
    for i in range(2):
        P('buffer_store_dwordx4 %s, %s, %s, %s offen offset:%d sc1' % (v(zz, 4), v(vL16), ws, s(sPartLd), 1024 * i))
    P.label(Lnoclr)
    P('s_lshr_b32 %s, %s, 4' % (s(sT2), s(sT1)))
    P('s_lshl_b32 %s, %s, 10' % (s(sT2), s(sT2)))
    P('s_bfe_u32 %s, %s, 0x20002' % (s(sT3), s(sT1)))
    P('s_lshl_b32 %s, %s, 5' % (s(sT3), s(sT3)))
    P('s_add_u32 %s, %s, %s' % (s(sT2), s(sT2), s(sT3)))
    P('s_and_b32 %s, %s, 3' % (s(sT3), s(sT1)))
    P('s_lshl_b32 %s, %s, 8' % (s(sT3), s(sT3)))
    P('s_add_u32 %s, %s, %s' % (s(sT2), s(sT2), s(sT3)))
    P('s_lshl_b32 %s, %s, 15' % (s(sT3), s(sX)))
    P('s_add_u32 %s, %s, 0x%x' % (s(sT3), s(sT3), MEML))
    P('s_add_u32 %s, %s, %s' % (s(sMemLSt), s(sT3), s(sT2)))
    P('s_xor_b32 %s, %s, 0x4000' % (s(sMemLLd), s(sT3)))
    P('s_lshl_b32 %s, %s, 15' % (s(sT1), s(sX)))
    P('s_add_u32 %s, %s, %s' % (s(sMemRSt), s(sT1), s(sT2)))
    P('s_add_u32 %s, %s, 0x%x' % (s(sMemRSt), s(sMemRSt), MEMR))
    P('s_xor_b32 %s, %s, 0x8000' % (s(sT1), s(sT1)))
    P('s_add_u32 %s, %s, 0x%x' % (s(sMemRLd), s(sT1), MEMR))
    Lw3 = P.newlabel('R_w3clr')
    P('s_cmp_lg_u32 %s, 3' % s(sW))
    P('s_cbranch_scc1 %s' % Lw3)
    P('s_lshl_b32 %s, %s, 7' % (s(sKmFlagOff), s(sH)))
    P('s_lshl_b32 %s, %s, 2' % (s(sT0), s(sX)))
    P('s_add_u32 %s, %s, %s' % (s(sKmFlagOff), s(sKmFlagOff), s(sT0)))
    P('s_add_u32 %s, %s, 0x%x' % (s(sKmFlagOff), s(sKmFlagOff), KMFLAG))
    P('buffer_store_dword %s, %s, %s, %s offen sc1' % (v(zz), v(zz), ws, s(sKmFlagOff)))
    P('s_cmp_ge_u32 %s, 6' % s(sH))
    P('s_cbranch_scc1 %s' % Lw3)
    P('s_lshl_b32 %s, %s, 15' % (s(sT0), s(sX)))
    P('s_lshl_b32 %s, %s, 13' % (s(sT1), s(sH)))
    P('s_add_u32 %s, %s, %s' % (s(sT0), s(sT0), s(sT1)))
    P('s_add_u32 %s, %s, 0x%x' % (s(sT0), s(sT0), MEMR - 0x2000))
    P('s_cmp_eq_u32 %s, 0' % s(sH))
    P('s_cselect_b32 %s, %s, %s' % (s(sT0), s(sT3), s(sT0)))
    P('s_cmp_eq_u32 %s, 5' % s(sH))
    P('s_cselect_b32 %s, %s, %s' % (s(sT0), s(sMemLLd), s(sT0)))
    P('s_add_u32 %s, %s, 0x1000' % (s(sT1), s(sT0)))
    for i in range(8):
        P('buffer_store_dwordx4 %s, %s, %s, %s offen offset:%d sc1' % (v(zz, 4), v(vL16), ws, s(sT0 if i < 4 else sT1), 1024 * (i & 3)))
    P.label(Lw3)

    P('s_load_dwordx4 s[60:63], s[0:1], %d' % KA_WQ)
    P('s_load_dwordx4 s[64:67], s[0:1], %d' % KA_WV)
    P('s_load_dwordx2 s[68:69], s[0:1], %d' % KA_MEM0)
    vD = 28
    P('v_lshrrev_b32 %s, 4, %s' % (v(t0), v(lane)))
    P('v_and_b32 %s, 15, %s' % (v(t1), v(lane)))
    P('v_and_b32 %s, 1, %s' % (v(t2), v(t0)))
    P('v_lshlrev_b32 %s, 1, %s' % (v(t2), v(t2)))
    P('v_xor_b32 %s, %s, %s' % (v(t1), v(t1), v(t2)))
    P('s_lshl_b32 %s, %s, 4' % (s(sT0), s(sW)))
    P('v_add_u32 %s, %s, %s' % (v(t0), s(sT0), v(t0)))
    for i in range(4):
        sig = ((i & 1) << 1 | ((i >> 1) & 1) << 2) << 1
        P('v_xor_b32 %s, %d, %s' % (v(t2), sig, v(t1)))
        P('v_lshlrev_b32 %s, 4, %s' % (v(t2), v(t2)))
        P('v_add_u32 %s, %d, %s' % (v(t3), 4 * i, v(t0)))
        P('v_lshl_add_u32 %s, %s, 13, %s' % (v(vD + i), v(t3), v(t2)))
    vD2 = 49
    P('v_lshrrev_b32 %s, 4, %s' % (v(t0), v(lane)))
    P('v_and_b32 %s, 15, %s' % (v(t1), v(lane)))
    P('s_and_b32 %s, %s, 1' % (s(sT1), s(sW)))
    P('s_lshl_b32 %s, %s, 2' % (s(sT1), s(sT1)))
    P('v_add_u32 %s, %s, %s' % (v(t2), s(sT1), v(t0)))
    P('v_lshlrev_b32 %s, 1, %s' % (v(t2), v(t2)))
    P('v_xor_b32 %s, %s, %s' % (v(t1), v(t1), v(t2)))
    P('v_lshlrev_b32 %s, 4, %s' % (v(t1), v(t1)))
    P('v_add_u32 %s, %s, %s' % (v(t0), s(sT0), v(t0)))
    for i in range(4):
        P('v_add_u32 %s, %d, %s' % (v(t3), 4 * i, v(t0)))
        P('v_lshl_add_u32 %s, %s, 13, %s' % (v(vD2 + i), v(t3), v(t1)))
    vTR = 32
    gb, r4, cq = 34, 35, 36
    P('v_lshrrev_b32 %s, 4, %s' % (v(gb), v(lane)))
    P('v_bfe_u32 %s, %s, 2, 2' % (v(r4), v(lane)))
    P('v_and_b32 %s, 3, %s' % (v(cq), v(lane)))
    P('v_lshrrev_b32 %s, 1, %s' % (v(t0), v(gb)))
    P('v_lshlrev_b32 %s, 4, %s' % (v(t0), v(t0)))
    P('v_and_b32 %s, 1, %s' % (v(t1), v(gb)))
    P('v_lshl_add_u32 %s, %s, 2, %s' % (v(t0), v(t1), v(t0)))
    P('v_and_b32 %s, 1, %s' % (v(t2), v(r4)))
    P('v_add_u32 %s, %s, %s' % (v(t0), v(t0), v(t2)))
    P('v_lshrrev_b32 %s, 1, %s' % (v(t3), v(r4)))
    P('v_lshl_add_u32 %s, %s, 3, %s' % (v(t0), v(t3), v(t0)))
    P('v_lshl_add_u32 %s, %s, 1, %s' % (v(t2), v(t1), v(t2)))
    P('v_lshl_add_u32 %s, %s, 2, %s' % (v(t2), v(t3), v(t2)))
    P('s_lshl_b32 %s, %s, 1' % (s(sT0), s(sW)))
    P('v_xor_b32 %s, %s, %s' % (v(t2), s(sT0), v(t2)))
    P('v_lshlrev_b32 %s, 5, %s' % (v(t2), v(t2)))
    P('v_lshl_add_u32 %s, %s, 8, %s' % (v(t2), v(t0), v(t2)))
    P('v_lshl_add_u32 %s, %s, 3, %s' % (v(vTR), v(cq), v(t2)))
    P('v_xor_b32 %s, 32, %s' % (v(vTR + 1), v(vTR)))
    vTR2 = 54
    P('v_and_b32 %s, 1, %s' % (v(t0), v(gb)))
    P('v_lshrrev_b32 %s, 1, %s' % (v(t1), v(r4)))
    P('v_lshl_add_u32 %s, %s, 1, %s' % (v(t0), v(t1), v(t0)))
    P('v_and_b32 %s, 1, %s' % (v(t1), v(r4)))
    P('v_lshl_add_u32 %s, %s, 2, %s' % (v(t2), v(t1), v(t0)))
    P('v_lshl_add_u32 %s, %s, 4, %s' % (v(t0), v(t1), v(t0)))
    P('v_lshrrev_b32 %s, 1, %s' % (v(t1), v(gb)))
    P('v_lshl_add_u32 %s, %s, 2, %s' % (v(t0), v(t1), v(t0)))
    P('v_xor_b32 %s, %s, %s' % (v(t2), s(sT0), v(t2)))
    P('v_lshlrev_b32 %s, 5, %s' % (v(t2), v(t2)))
    P('v_lshl_add_u32 %s, %s, 8, %s' % (v(t2), v(t0), v(t2)))
    P('v_lshl_add_u32 %s, %s, 3, %s' % (v(vTR2), v(cq), v(t2)))
    P('v_xor_b32 %s, 32, %s' % (v(vTR2 + 1), v(vTR2)))
    vOR, vOC = 37, 42
    P('s_mov_b32 %s, 0xcccd' % s(sT0))
    for i in range(5):
        P('v_add_u32 %s, %d, %s' % (v(t0), 64 * i, v(lane)))
        P('v_mul_lo_u32 %s, %s, %s' % (v(t1), v(t0), s(sT0)))
        P('v_lshrrev_b32 %s, 21, %s' % (v(t1), v(t1)))
        P('v_mul_u32_u24 %s, 40, %s' % (v(t2), v(t1)))
        P('v_sub_u32 %s, %s, %s' % (v(t2), v(t0), v(t2)))
        P('v_lshlrev_b32 %s, 4, %s' % (v(vOC + i), v(t2)))
        P('v_mul_u32_u24 %s, 1280, %s' % (v(vOR + i), v(t1)))
    P('s_waitcnt lgkmcnt(0)')
    reg_items = [(m_, p) for m_ in 'qkv' for p in range(10) if (m_, p) not in LDS_PAIRS]
    items = reg_items + LDS_PAIRS
    assert len(items) == 30 and len(reg_items) == 21
    slot_of = lambda j: j % 10
    tmp = s(S_TMP, 4)
    ptr = {'q': 60, 'k': 62, 'v': 64}
    sHB, sXK = 70, 71
    P('s_lshl_b32 %s, %s, 8' % (s(sHB), s(sH)))
    P('s_mul_i32 %s, %s, 5' % (s(sXK), s(sX)))
    P('s_lshl_b32 s72, %s, 12' % s(sW))
    vM0 = 76
    srd(P, S_TMP, 68, 8 * 640 * 2)
    P('v_and_b32 %s, 7, %s' % (v(t0), v(lane)))
    P('v_mul_u32_u24 %s, 1280, %s' % (v(t0), v(t0)))
    P('v_lshrrev_b32 %s, 3, %s' % (v(t1), v(lane)))
    P('v_lshl_add_u32 %s, %s, 2, %s' % (v(t0), v(t1), v(t0)))
    P('s_lshl_b32 %s, %s, 10' % (s(sT3), s(sW)))
    P('v_add_u32 %s, %s, %s' % (v(vW1K), s(sT3), v(vL16)))
    P('v_lshrrev_b32 %s, 2, %s' % (v(vL4), v(vW1K)))
    P('v_bfe_u32 %s, %s, 2, 3' % (v(t1), v(lane)))
    P('v_mul_u32_u24 %s, 1280, %s' % (v(t1), v(t1)))
    P('v_lshrrev_b32 %s, 5, %s' % (v(t2), v(lane)))
    P('v_lshl_add_u32 %s, %s, 4, %s' % (v(t1), v(t2), v(t1)))
    P('v_and_b32 %s, 3, %s' % (v(t2), v(lane)))
    P('v_lshl_add_u32 %s, %s, 2, %s' % (v(t1), v(t2), v(t1)))
    P('s_mul_i32 %s, %s, 640' % (s(sT0), s(sX)))
    P('s_sub_u32 %s, 640, %s' % (s(sT1), s(sT0)))
    P('s_mul_i32 %s, %s, 160' % (s(sT2), s(sW)))
    P('s_add_u32 %s, %s, %s' % (s(sT0), s(sT0), s(sT2)))
    P('s_add_u32 %s, %s, %s' % (s(sT1), s(sT1), s(sT2)))
    for d, so in ((0, sT0), (8, sT1)):
        for e in range(8):
            P('buffer_load_ushort %s, %s, %s, %s offen offset:%d' % (v(d + e), v(t0), tmp, s(so), 32 * (e & 3) + 2 * (e >> 2)))
    P('buffer_load_dword %s, %s, %s, %s offen offset:128' % (v(vM0 + 4), v(t1), tmp, s(sT0)))
    P('buffer_load_dword %s, %s, %s, %s offen offset:128' % (v(vM0 + 5), v(t1), tmp, s(sT1)))
    srd(P, S_TMP, 66, 32 * 128 * 640 * 2)
    P('s_mul_i32 %s, %s, %d' % (s(sT0), s(sH), 128 * 1280))
    P('s_mul_i32 %s, %s, %d' % (s(sT1), s(sW), 32 * 1280))
    P('s_add_u32 %s, %s, %s' % (s(sT0), s(sT0), s(sT1)))
    P('s_mul_i32 %s, %s, 640' % (s(sT1), s(sX)))
    P('s_add_u32 %s, %s, %s' % (s(sT0), s(sT0), s(sT1)))
    P('s_mul_i32 %s, %s, %d' % (s(sT1), s(sW), 32 * 640))
    P('s_add_u32 %s, %s, %d' % (s(sT1), s(sT1), 5 * 16384))
    for grp in range(4):
        P('s_lshl_b32 %s, %s, 1' % (s(sT2), s(sW)))
        P('s_add_u32 %s, %s, %d' % (s(sT2), s(sT2), grp >> 1))
        P('s_and_b32 %s, %s, 3' % (s(sT2), s(sT2)))
        P('s_lshl_b32 %s, %s, 5' % (s(sT2), s(sT2)))
        for i in range(5):
            P('v_xor_b32 %s, %s, %s' % (v(t0), s(sT2), v(vOC + i)))
            P('v_add_u32 %s, %s, %s' % (v(t0), v(t0), v(vOR + i)))
            P('s_mov_b32 m0, %s' % s(sT1))
            P('s_add_u32 %s, %s, 1024' % (s(sT1), s(sT1)))
            P('buffer_load_dwordx4 %s, %s, %s offen lds' % (v(t0), tmp, s(sT0)))
        P('s_add_u32 %s, %s, %d' % (s(sT0), s(sT0), 8 * 1280))
    cur = [None]

    def issue_item(j):
        mat, p = items[j]
        if cur[0] != mat:
            srd(P, S_TMP, ptr[mat], 640 * 8192)
            cur[0] = mat
        kt = p % 5
        P('s_add_u32 %s, %s, %d' % (s(sT0), s(73 if p < 5 else 74), (80 * kt if kt < 4 else 64) << 13))
        if kt == 4:
            P('s_lshl_b32 %s, %s, 19' % (s(sT1), s(sW)))
            P('s_add_u32 %s, %s, %s' % (s(sT0), s(sT0), s(sT1)))
        for i in range(4):
            P('s_add_u32 m0, s72, %d' % (slot_of(j) * 16384 + i * 1024))
            P('s_nop 0')
            P('buffer_load_dwordx4 %s, %s, %s offen lds' % (v((vD if kt == 4 else vD2) + i), tmp, s(sT0)))
    P('s_mul_i32 s73, %s, %d' % (s(sX), 320 << 13))
    P('s_sub_u32 s74, %d, s73' % (320 << 13))
    P('s_add_u32 s73, s73, %s' % s(sHB))
    P('s_add_u32 s74, s74, %s' % s(sHB))
    for j in range(5):
        issue_item(j)
    P('s_waitcnt vmcnt(40)')
    P('s_barrier')
    arrive(P)
    for d, src in ((vM0, 0), (vM0 + 8, 8)):
        for q in range(4):
            P('v_lshl_or_b32 %s, %s, 16, %s' % (v(d + q), v(src + 2 * q + 1), v(src + 2 * q)))
    P('v_add_u32 %s, 4, %s' % (v(vL4), v(vL4)))
    P('s_lshl_b32 s75, s2, 13')
    P('s_add_u32 s75, s75, 0x%x' % MEM0S)
    P('buffer_store_dwordx4 %s, %s, %s, s75 offen sc1' % (v(vM0 + 8, 4), v(vW1K), ws))
    P('buffer_store_dword %s, %s, %s, s75 offen offset:4092 sc1' % (v(vM0 + 5), v(vL4), ws))
    P('s_waitcnt vmcnt(20)')
    P('s_barrier')
    P('v_lshrrev_b32 %s, 1, %s' % (v(t0), v(r4)))
    P('v_and_b32 %s, 1, %s' % (v(t1), v(gb)))
    P('v_lshl_add_u32 %s, %s, 1, %s' % (v(t3), v(t0), v(t1)))
    P('v_lshlrev_b32 %s, 4, %s' % (v(t0), v(t3)))
    P('v_lshrrev_b32 %s, 1, %s' % (v(t1), v(gb)))
    P('v_lshl_add_u32 %s, %s, 2, %s' % (v(t0), v(t1), v(t0)))
    P('v_and_b32 %s, 1, %s' % (v(t1), v(r4)))
    P('v_add_u32 %s, %s, %s' % (v(t0), v(t0), v(t1)))
    P('v_mul_u32_u24 %s, 640, %s' % (v(t0), v(t0)))
    P('v_lshl_add_u32 %s, %s, 3, %s' % (v(t0), v(cq), v(t0)))
    P('v_add_u32 %s, %d, %s' % (v(t0), 5 * 16384, v(t0)))
    P('s_mul_i32 %s, %s, 5' % (s(sT0), s(sW)))
    for T in range(5):
        P('s_add_u32 %s, %s, %d' % (s(sT1), s(sT0), T))
        P('v_xor_b32 %s, %s, %s' % (v(t1), s(sT1), v(t3)))
        P('v_lshl_add_u32 %s, %s, 5, %s' % (v(t1), v(t1), v(t0)))
        for kt2 in range(2):
            for j in range(4):
                off = (64 * kt2 + 8 * (j >> 1) + 2 * (j & 1)) * 640
                P('ds_read_b64_tr_b16 %s, %s offset:%d' % (sub(WR[('o', kt2, T)], 2 * j, 2), v(t1), off))
        P('s_waitcnt lgkmcnt(0)')
    P('s_barrier')
    for j in range(5, 10):
        issue_item(j)
    P('s_lshl_b32 %s, %s, 2' % (s(sT0), s(sH)))
    P('s_add_u32 %s, %s, %s' % (s(sT0), s(sT0), s(sW)))
    P('s_lshl_b32 %s, %s, 11' % (s(sKV), s(sT0)))
    P('s_add_u32 %s, %s, 0x%x' % (s(sKV), s(sKV), KX))
    P('s_lshl_b32 %s, %s, 10' % (s(sKM), s(sT0)))
    P('s_mul_i32 %s, %s, 0x%x' % (s(sT1), s(sX), VM - KM))
    P('s_add_u32 %s, %s, %s' % (s(sKM), s(sKM), s(sT1)))
    P('s_add_u32 %s, %s, 0x%x' % (s(sKM), s(sKM), KM))
    P('s_lshl_b32 %s, %s, 13' % (s(sTch), s(sH)))
    P('s_add_u32 %s, %s, 0x%x' % (s(sTch), s(sTch), KX + 0x80000))
    P('s_lshl_b32 %s, %s, 7' % (s(sFlagOff), s(sH)))
    P('s_add_u32 %s, %s, 0x%x' % (s(sFlagOff), s(sFlagOff), PFLAG + 8))
    P('s_add_u32 %s, %s, 0x%x' % (s(sVXoff), s(sKV), VX - KX))

    def first_loads():
        P('v_lshlrev_b32 v6, 3, %s' % v(vL16))
        for back in (0x80000, 0x40000):
            P('s_sub_u32 %s, %s, 0x%x' % (s(sT0), s(sTch), back))
            P('s_add_u32 %s, %s, 0x%x' % (s(sT1), s(sT0), VX - KX))
            P('buffer_load_dword v5, v6, %s, %s offen sc1' % (ws, s(sT0)))
            P('buffer_load_dword v5, v6, %s, %s offen sc1' % (ws, s(sT1)))
        for t in range(2):
            P('buffer_load_dwordx4 %s, %s, %s, %s offen offset:%d sc1' % (v(vVx + 4 * t, 4), v(vL16), ws, s(sVXoff), 1024 * t))
    vA = 47
    for j in range(30):
        last_issued = min(29, 9 if j == 0 else j + 8)
        P('s_waitcnt vmcnt(%d)' % (4 * (last_issued - j) + (8 if j > 20 else 0)))
        P('s_barrier')
        if j >= 1 and j + 9 <= 29:
            issue_item(j + 9)
        if j == 20:
            P('v_lshrrev_b32 v7, 2, %s' % v(vL16))
            P('v_mov_b32 v6, 0')
            P('buffer_load_dword v4, v7, %s, 0 offen sc1' % s(S_DBG, 4))
            P('buffer_load_dwordx4 v[0:3], v6, %s, %s offen sc1' % (ws, s(sFlagOff)))
            first_loads()
        mat, p = items[j]
        for nt in range(2):
            P('v_add_u32 %s, %d, %s' % (v(vA + nt), slot_of(j) * 16384, v((vTR if p % 5 == 4 else vTR2) + nt)))
        for nt in range(2):
            dst = WR[(mat, p, nt)] if j < 21 else v(56 + 8 * nt, 8)
            for q in range(4):
                off = (q & 1) * 512 + (q >> 1) * 8192 if p % 5 == 4 else (q & 1) * 8192 + (q >> 1) * 2048
                P('ds_read_b64_tr_b16 %s, %s offset:%d' % (sub(dst, 2 * q, 2), v(vA + nt), off))
        P('s_waitcnt lgkmcnt(0)')
        if j >= 21:
            P('s_barrier')
            P('s_add_u32 %s, s72, %d' % (s(sT0), slot_of(j) * 16384))
            P('v_add_u32 %s, %s, %s' % (v(vA), s(sT0), v(vL16)))
            for q in range(4):
                P('ds_write_b128 %s, %s offset:%d' % (v(vA), v(56 + 4 * q, 4), 1024 * q))
            P('s_waitcnt lgkmcnt(0)')
    P('ds_write_b128 %s, %s' % (v(vW1K), v(vM0, 4)))
    P('ds_write_b32 %s, %s offset:4092' % (v(vL4), v(vM0 + 4)))
    P('v_and_b32 %s, 7, %s' % (v(t0), v(lane)))
    P('v_bfe_u32 %s, %s, 4, 1' % (v(t1), v(lane)))
    P('v_lshlrev_b32 %s, 2, %s' % (v(t1), v(t1)))
    P('v_sub_u32 %s, %s, %s' % (v(t0), v(t0), v(t1)))
    P('v_mov_b32 %s, 0x3f80' % v(t1))
    P('v_mov_b32 %s, 0x3f800000' % v(t2))
    for i in range(2):
        P('v_cmp_eq_u32 vcc, %d, %s' % (2 * i, v(t0)))
        P('v_cndmask_b32 %s, 0, %s, vcc' % (v(vSig + i), v(t1)))
        P('v_cmp_eq_u32 vcc, %d, %s' % (2 * i + 1, v(t0)))
        P('v_cndmask_b32 %s, %s, %s, vcc' % (v(vSig + i), v(vSig + i), v(t2)))
    P('s_mov_b32 %s, 0xff00ff00' % s(sC8))
    P('s_mov_b32 %s, 0xff00ff00' % s(sC8 + 1))
    P('s_mov_b32 %s, 0x00ff00ff' % s(sEx8))
    P('s_mov_b32 %s, 0x00ff00ff' % s(sEx8 + 1))
    P('s_mov_b32 %s, 0x00330033' % s(sExSt))
    P('s_mov_b32 %s, 0x00330033' % s(sExSt + 1))
    P('v_mov_b32 %s, 0x4444' % v(t0))
    P('v_mov_b32 %s, 0xeeee' % v(t1))
    P('v_cndmask_b32 %s, %s, %s, %s' % (v(vIdx), v(t0), v(t1), s(sC8, 2)))
    P('s_mov_b32 %s, 0xcccccccc' % s(sT0))
    P('s_mov_b32 %s, 0xcccccccc' % s(sT1))
    P('v_cndmask_b32 %s, %s, %s, %s' % (v(t0), v(t0), v(t1), s(sT0, 2)))
    P('v_lshl_add_u32 %s, %s, 16, %s' % (v(vIdx), v(t0), v(vIdx)))
    P('s_add_u32 %s, s72, %d' % (s(sT0), L_W))
    P('v_add_u32 %s, %s, %s' % (v(vVW), s(sT0), v(vL16)))
    P('s_lshr_b32 %s, %s, 1' % (s(sT0), s(sW)))
    P('s_lshl_b32 %s, %s, 10' % (s(sT0), s(sT0)))
    P('s_and_b32 %s, %s, 1' % (s(sT1), s(sW)))
    P('s_lshl_b32 %s, %s, 5' % (s(sT1), s(sT1)))
    P('s_add_u32 %s, %s, %s' % (s(sT0), s(sT0), s(sT1)))
    P('s_add_u32 %s, %s, %d' % (s(sT0), s(sT0), L_O))
    P('v_and_b32 %s, 0x60, %s' % (v(t0), v(vL16)))
    P('v_and_b32 %s, 0x310, %s' % (v(t1), v(vL16)))
    P('v_lshl_add_u32 %s, %s, 1, %s' % (v(t0), v(t0), v(t1)))
    P('v_add_u32 %s, %s, %s' % (v(vOWr), s(sT0), v(t0)))
    P('v_lshrrev_b32 %s, 2, %s' % (v(t0), v(lane)))
    P('s_lshl_b32 %s, %s, 4' % (s(sT0), s(sW)))
    P('v_add_u32 %s, %s, %s' % (v(t0), s(sT0), v(t0)))
    P('v_and_b32 %s, 0x30, %s' % (v(t1), v(vL16)))
    P('v_lshl_add_u32 %s, %s, 11, %s' % (v(vPSt), v(t0), v(t1)))
    for q in range(4):
        P('s_mov_b32 %s, 0x%08x' % (s(sSelM + 2 * q), 0x03030303 << (2 * q)))
        P('s_mov_b32 %s, 0x%08x' % (s(sSelM + 2 * q + 1), 0x03030303 << (2 * q)))
    P('s_mov_b32 %s, 0xaaaaaaaa' % s(sOdd))
    P('s_mov_b32 %s, 0xaaaaaaaa' % s(sOdd + 1))
    P('s_mov_b32 %s, 0x%08x' % (s(sScale), 0x3e0293ee))
    P('s_mov_b32 %s, 0' % s(sStep))
    P('s_mov_b32 %s, 0' % s(sTagP))
    P('s_mov_b32 m0, 14336')
    P('s_mov_b32 %s, 0' % s(sTagR))
    P('s_mov_b32 %s, 0' % s(sChk))
    P('s_mov_b32 %s, %s' % (s(sScale2), s(sScale)))
    P('s_mov_b32 %s, %s' % (s(sScale2 + 1), s(sScale)))
    dbg = s(S_DBG, 4)
    Lslow, Lgo = P.newlabel('R_slow'), P.newlabel('R_go')
    P('s_waitcnt vmcnt(0)')
    P('v_and_b32 v5, 63, v4')
    P('v_cmp_eq_u32 vcc, 32, v5')
    P('v_min_u32 v0, v0, v2')
    P('v_min3_u32 v0, v0, v1, v3')
    P('s_and_b32 %s, vcc_lo, 0x1fe' % s(sT0))
    P('v_readfirstlane_b32 %s, v0' % s(sProg))
    P('s_cmp_lg_u32 %s, 0x1fe' % s(sT0))
    P('s_cbranch_scc1 %s' % Lslow)
    P('s_cmp_gt_u32 %s, 2' % s(sProg))
    P('s_cbranch_scc1 %s' % Lgo)
    P.label(Lslow)
    wait_all(P)
    P('s_mov_b32 %s, 0' % s(sProg))
    flag_poll(P, 2, first=True)
    P('buffer_load_dword v4, v7, %s, 0 offen sc1' % dbg)
    first_loads()
    P('s_waitcnt vmcnt(0)')
    P.label(Lgo)
    P('s_add_u32 %s, %s, 1' % (s(sT0), s(sX)))
    P('v_readlane_b32 %s, v4, %s' % (s(sT0), s(sT0)))
    P('v_readlane_b32 %s, v4, %d' % (s(sT2), DBG_NEAR // 4))
    mode_from_word(P, sFast, sT0, sT1)
    P('v_readlane_b32 %s, v4, 1' % s(sT3))
    P('s_xor_b32 %s, %s, %s' % (s(sT2), s(sT2), s(sT3)))
    P('s_and_b32 %s, %s, 0x2000' % (s(sT2), s(sT2)))
    P('s_add_u32 %s, %s, %s' % (s(sMemRSt), s(sMemRSt), s(sT2)))
    P('s_add_u32 %s, %s, %s' % (s(sMemRNx), s(sMemRLd), s(sT2)))
    P('s_mov_b32 %s, s75' % s(sMemRLd))
    for i in range(4):
        P('v_mov_b32 %s, %s' % (v(T_ + i), v(vM0 + 8 + i)))
    P('v_mov_b32 %s, %s' % (v(T_ + 4), v(vM0 + 5)))
    P('v_lshrrev_b32 %s, 2, %s' % (v(vL4), v(vW1K)))
    P('v_add_u32 %s, 4, %s' % (v(vL4), v(vL4)))
    for i in range(24):
        P('v_mov_b32 %s, 0' % v(X_ + i))
    for i in range(4):
        P('v_mov_b32 %s, 0' % v(SP + i))
    for x in land(0):
        P(x)
    P('s_waitcnt vmcnt(0) lgkmcnt(0)')
    P('s_barrier')


def arrive(P):
    L = P.newlabel('arr')
    dbg = s(S_DBG, 4)
    P('s_cmp_lg_u32 %s, 3' % s(S_WAVE))
    P('s_cbranch_scc1 %s' % L)
    P('s_mov_b64 exec, 1')
    P('v_mov_b32 v89, 0')
    calibrate(P)
    P('s_getreg_b32 s7, hwreg(HW_REG_XCC_ID)')
    P('s_and_b32 s7, s7, 15')
    P('v_mov_b32 v88, s7')
    P('v_mul_u32_u24 v88, s7, v88')
    P('v_lshlrev_b32 v88, 15, v88')
    P('s_lshl_b32 s7, s7, 6')
    P('v_add3_u32 v88, v88, s7, 1')
    P('s_lshl_b32 s7, %s, 2' % s(S_CLS))
    P('buffer_atomic_add v88, v89, %s, s7 offen offset:%d' % (dbg, DBG_XCCMASK0))
    P('s_mov_b64 exec, -1')
    P.label(L)


def read_mode(P, vt, sfast, sa, sb):
    P('v_mov_b32 %s, 0' % v(vt))
    P('s_lshl_b32 %s, %s, 2' % (s(sa), s(S_CLS)))
    P('buffer_load_dword %s, %s, %s, %s offen offset:%d sc1' % (v(vt + 1), v(vt), s(S_DBG, 4), s(sa), DBG_XCCMASK0))
    P('s_waitcnt vmcnt(0)')
    P('v_readfirstlane_b32 %s, %s' % (s(sa), v(vt + 1)))
    mode_from_word(P, sfast, sa, sb)


def mode_from_word(P, sfast, sa, sb):
    P('s_bfe_u32 %s, %s, 0x90006' % (s(sb), s(sa)))
    P('s_mul_i32 %s, %s, %s' % (s(sb), s(sb), s(sb)))
    P('s_lshr_b32 %s, %s, 15' % (s(sa), s(sa)))
    P('s_lshl_b32 %s, %s, 5' % (s(sa), s(sa)))
    P('s_cmp_eq_u32 %s, %s' % (s(sa), s(sb)))
    P('s_cselect_b32 %s, 1, 0' % s(sfast))


def calibrate(P):
    L = P.newlabel('cal')
    ws = s(S_WS, 4)
    P('s_cmp_lg_u32 s2, 5')
    P('s_cbranch_scc1 %s' % L)
    P('s_waitcnt vmcnt(0)')
    P('s_mov_b32 s80, -1')
    P('s_mov_b32 s81, -1')
    P('s_mov_b32 s86, 0x%x' % (MEMR + 0x1c00))
    P('s_mov_b32 s87, 0x%x' % (MEMR + 0x3c00))
    for it in range(6):
        for hf in range(2):
            P('s_memtime s[82:83]')
            P('s_waitcnt lgkmcnt(0)')
            P('buffer_store_dword v89, v89, %s, s%d offen sc1' % (ws, 86 + hf))
            P('s_waitcnt vmcnt(0)')
            P('s_memtime s[84:85]')
            P('s_waitcnt lgkmcnt(0)')
            P('s_sub_u32 s84, s84, s82')
            P('s_min_u32 s%d, s%d, s84' % (80 + hf, 80 + hf))
    P('s_cmp_lt_u32 s81, s80')
    P('s_cselect_b32 s84, 0x2000, 0')
    P('s_getreg_b32 s85, hwreg(HW_REG_XCC_ID)')
    P('s_lshl_b32 s85, s85, 11')
    P('s_xor_b32 s84, s84, s85')
    P('v_mov_b32 v88, s84')
    P('buffer_store_dword v88, v89, %s, 0 offen offset:%d sc1' % (s(S_DBG, 4), DBG_NEAR))
    P('s_waitcnt vmcnt(0)')
    P.label(L)


def dbgtime(P, word, va=0):
    if not CFG.get('dbgt'):
        return
    L = P.newlabel('dt')
    P('s_cmp_lg_u32 %s, 0' % s(S_WAVE))
    P('s_cbranch_scc1 %s' % L)
    P('s_cmp_gt_u32 %s, %d' % (s(S_IDX), 0) if word != 15 else 's_cmp_lt_u32 %s, 28' % s(S_IDX))
    P('s_cbranch_scc1 %s' % L)
    P('s_memrealtime s[98:99]')
    P('s_waitcnt lgkmcnt(0)')
    P('v_mov_b32 %s, s98' % v(va))
    P('v_mov_b32 %s, 0' % v(va + 1))
    P('s_mov_b64 exec, 1')
    P('buffer_atomic_umax %s, %s, %s, 0 offen offset:%d' % (v(va), v(va + 1), s(S_DBG, 4), 4 * word))
    P('s_mov_b64 exec, -1')
    P.label(L)


def spin_retry(P, Lpoll, Lok):
    P('s_add_u32 %s, %s, 1' % (s(S_SPIN), s(S_SPIN)))
    P('s_cmp_lt_u32 %s, %d' % (s(S_SPIN), SPIN_LIMIT))
    P('s_cbranch_scc1 %s' % Lpoll)
    P('s_branch %s' % Lok)


def wait_all(P):
    Lp, Lok = P.newlabel('wa'), P.newlabel('waok')
    P('v_mbcnt_lo_u32_b32 v89, -1, 0')
    P('v_and_b32 v89, 7, v89')
    P('v_lshlrev_b32 v89, 2, v89')
    P.label(Lp)
    P('buffer_load_dword v88, v89, %s, 0 offen offset:%d sc1' % (s(S_DBG, 4), DBG_XCCMASK0))
    P('s_waitcnt vmcnt(0)')
    P('v_and_b32 v88, 63, v88')
    P('v_cmp_ne_u32 vcc, 32, v88')
    P('s_cbranch_vccz %s' % Lok)
    P('s_sleep 2')
    spin_retry(P, Lp, Lok)
    P.label(Lok)


def flag_poll(P, ahead, first=False):
    Lp, Lok = P.newlabel('fp'), P.newlabel('fpok')
    f = T_
    P('s_add_u32 %s, %s, %d' % (s(sT0), s(sStep), ahead))
    P('s_min_u32 %s, %s, 63' % (s(sT0), s(sT0)))
    P.label(Lp)
    P('s_cmp_lt_u32 %s, %s' % (s(sT0), s(sProg)))
    P('s_cbranch_scc1 %s' % Lok)
    P('v_mov_b32 %s, 0' % v(f + 4))
    P('buffer_load_dwordx4 %s, %s, %s, %s offen sc1' % (v(f, 4), v(f + 4), s(S_WS, 4), s(sFlagOff)))
    P('s_waitcnt vmcnt(0)')
    P('v_min_u32 %s, %s, %s' % (v(f), v(f), v(f + 2)))
    P('v_min3_u32 %s, %s, %s, %s' % (v(f), v(f), v(f + 1), v(f + 3)))
    P('v_readfirstlane_b32 %s, %s' % (s(sProg), v(f)))
    spin_retry(P, Lp, Lok)
    P.label(Lok)


def land(k):
    return ['ds_read_b128 %s, %s offset:%d' % (v(Z_ + 8 * nt + 4 * q, 4), v(vVW), (k & 3) * 16384 + nt * 2048 + q * 1024)
            for nt in range(2) for q in range(2)]


def W(mat, p, nt):
    return v(Z_ + 8 * nt, 8) if (mat, p) in LDS_PAIRS else WR[(mat, p, nt)]


def smf(acc, A, B):
    return 'v_smfmac_f32_16x16x64_bf16 %s, %s, %s, %s' % (v(acc, 4), v(A, 4), B, v(vIdx))


def cvt(d, a_):
    return 'v_cvt_pk_bf16_f32 %s, %s, %s' % (v(d), v(a_), v(a_ + 1))


def pk(op, d, a_, b_):
    return 'v_pk_%s_f32 %s, %s, %s' % (op, v(d, 2), v(a_, 2), v(b_, 2))


def chk5(t, stag, mask, d=T_):
    return ['v_bitop3_b32 %s, %s, %s, %s bitop3:0x%x' % (v(t), v(d), v(d + 1), s(stag), TT_XX),
            'v_bitop3_b32 %s, %s, %s, %s bitop3:0x%x' % (v(t + 1), v(d + 2), v(d + 3), s(stag), TT_XX),
            'v_bitop3_b32 %s, %s, %s, %s bitop3:0x%x' % (v(t), v(d + 4), v(t), s(stag), TT_XO),
            'v_bitop3_b32 %s, %s, %s, %s bitop3:0x%x' % (v(t), v(t), v(t + 1), mask, TT_OM),
            'v_cmp_ne_u32 vcc, 0, %s' % v(t)]


class LgkmTrack:
    def __init__(self, P):
        self.P, self.q = P, []
    def __call__(self, ins):
        I = Inst(ins)
        regs = I.rd | (I.wr if I.kind != 'ds' else set())
        last = -1
        for k, w in enumerate(self.q):
            if w & regs:
                last = k
        if last >= 0:
            self.P('s_waitcnt lgkmcnt(%d)' % (len(self.q) - 1 - last))
            self.q = self.q[last + 1:]
        self.P(ins)
        if I.kind == 'ds':
            self.q.append(set(I.wr))
    def drain(self):
        self.P('s_waitcnt lgkmcnt(0)')
        self.q = []
    def weave(self, main, fill):
        for k, m in enumerate(main):
            self(m)
            for f in fill.get(k, []):
                self(f)


def addfill(fill, start, ins, step=1):
    for k, x in enumerate(ins):
        fill.setdefault(start + k * step, []).append(x)


PTS = [[0, 1, 2, 3, 4, 5], [0, 'b1', 1, 4, 'ipoll', 5], [0, 'b1', 'b5', 'bend', 'cvm', 1], [1, 'b2', 'dq', 'dend', 'esx', 2], [2, 'b3', 'fsum', 'fexp', 'gw', 3], [3, 'b4', 'hm', 4, 'ipoll', 5]]
CFG = dict(stag=0, vg=4, vs=1, dR=-1, r2=1, lateb=0, nb0=5, trace=0, vpos=2, pts=0, dI=25, dA=60, dAn=0, preC=0, xs=0, km=1, touch=1, iso=0, lfirst=1, dA2=25, dI2=30, rg1=4, rg2=-1, kg=0, tg=5, tstr=64)


def delay(P, n):
    while n > 0:
        P('s_nop %d' % (min(n, 16) - 1))
        n -= 16


def r_loop(P, fast, X, reducer, w3, diag):
    ws = s(S_WS, 4)
    lc = '' if fast else ' sc1'
    tails = []
    Ltop, Lent, Lexit, Ldone = P.newlabel('R_top'), P.newlabel('R_ent'), P.newlabel('R_exit'), P.newlabel('R_done')
    E = LgkmTrack(P)

    def stamp(k):
        if diag > 1 and k in PTS[CFG['pts']]:
            P('%s %s' % ('s_memrealtime' if CFG['trace'] else 's_memtime', s(sStamp + 2 * PTS[CFG['pts']].index(k), 2)))
    A = lambda i: Y_ + 4 * (i % 5)
    gload = lambda base, d=T_: ['buffer_load_dwordx4 %s, %s, %s, %s offen sc1' % (v(d, 4), v(vW1K), ws, s(base)),
                                'buffer_load_dword %s, %s, %s, %s offen offset:4092 sc1' % (v(d + 4), v(vL4), ws, s(base))]
    P('s_branch %s' % Lent)
    P('.p2align 6')
    P.label(Ltop)
    early = CFG['dR'] >= 0
    T1, T2 = vKx, (vVx if early else T_)
    def a_try(base_reg):
        P('ds_write_b128 %s, %s' % (v(vW1K), v(base_reg, 4)))
        P('ds_write_b32 %s, %s offset:4092' % (v(vL4), v(base_reg + 4)))
        for x in chk5(Y_, sTagR, '1', base_reg):
            P(x)
    Lp, Lok, Lr = P.newlabel('R_pa'), P.newlabel('R_paok'), P.newlabel('R_par')
    for x in gload(sMemLLd, T1):
        P(x)
    delay(P, CFG['dA2'])
    for x in gload(sMemLLd, T2):
        P(x)
    if early:
        delay(P, CFG['dR'])
        for x in gload(sMemRLd):
            P(x)
        P('s_waitcnt vmcnt(4)')
    else:
        P.label(Lp)
        P('s_waitcnt vmcnt(2)')
    a_try(T1)
    P('s_cbranch_vccnz %s' % Lr)
    P.label(Lok)
    def a_tail(Lp=Lp, Lok=Lok):
        if early:
            P('s_waitcnt vmcnt(2)')
            a_try(T2)
            P('s_cbranch_vccz %s' % Lok)
            P.label(Lp)
            for x in gload(sMemLLd, T1) + gload(sMemRLd):
                P(x)
            P('s_waitcnt vmcnt(2)')
            a_try(T1)
            P('s_cbranch_vccz %s' % Lok)
            spin_retry(P, Lp, Lok)
            return
        for x in gload(sMemLLd, T1):
            P(x)
        P('s_waitcnt vmcnt(2)')
        a_try(T2)
        P('s_cbranch_vccz %s' % Lok)
        for x in gload(sMemLLd, T2):
            P(x)
        spin_retry(P, Lp, Lok)
    tails.append((Lr, a_tail))
    if not early:
        for x in gload(sMemRLd):
            P(x)
    stamp(0)
    P('s_waitcnt lgkmcnt(0)')
    P('s_barrier')
    P.label(Lent)
    stamp('b1')
    rdl = ['ds_read_b128 %s, %s offset:%d' % (v(A(i), 4), v(vL16), L_MEM + 1024 * i) for i in range(5)]
    nb0 = CFG['nb0']
    for x in rdl[:nb0]:
        E(x)
    main = []
    for i in range(5):
        main += [smf(accQ, A(i), W('q', i, 0)), smf(accQ + 4, A(i), W('q', i, 1)),
                 smf(accK, A(i), W('k', i, 0)), smf(accK + 4, A(i), W('k', i, 1))]
    fill = {}
    addfill(fill, 0, land(1)); addfill(fill, 6, land(2)); addfill(fill, 12, land(3))
    for k, x in enumerate(rdl[nb0:]):
        fill.setdefault((0, 4, 5, 10)[k + nb0 - 1], []).append(x)
    addfill(fill, 16, ['v_add_u32 %s, 0x10000, %s' % (v(vVW), v(vVW))])
    addfill(fill, 18, land(4)[:2])
    addfill(fill, 0, ['s_xor_b32 %s, %s, 1' % (s(sTagP), s(sTagP)),
                      's_min_u32 %s, %s, 1' % (s(sT0), s(sStep)), 's_lshl_b32 %s, %s, 17' % (s(sT1), s(sT0))])
    vo = CFG['stag'] * (2 if w3 else (1 if reducer == 'h16' else 0))
    addfill(fill, CFG['kg'] + vo, ['buffer_load_dwordx4 %s, %s, %s, %s offen offset:%d sc1' % (v(vKx + 4 * t, 4), v(vL16), ws, s(sKV), 1024 * t) for t in range(2)])
    for g in (CFG['rg1'], CFG['rg2']):
        if g >= 0:
            addfill(fill, g + vo, gload(sMemRLd, vVx if CFG['r2'] else T_))
    if CFG['km']:
        addfill(fill, 16 - vo, ['buffer_store_dwordx4 %s, %s, %s, %s offen sc1' % (v(SP, 4), v(vL16), ws, s(sKM))])
    addfill(fill, 17, ['s_add_u32 %s, %s, %s' % (s(sKM), s(sKM), s(sT1))])
    x = ['s_add_u32 %s, %s, 0x%x' % (s(sKV), s(sKV), 0 if CFG['iso'] else 0x40000), 's_add_u32 %s, %s, 0x%x' % (s(sVXoff), s(sKV), VX - KX)]
    addfill(fill, 17, x[::-1] if CFG['vpos'] == 2 else x)
    E.weave(main[:1], fill)
    stamp('b5')
    E.weave(main[1:], {k - 1: x for k, x in fill.items() if k > 0})
    stamp('bend')
    vm = [smf(AV + 4 * nt, A(i), W('v', i, nt)) for i in range(5) for nt in range(2)]
    l4 = land(4)[2:]
    E.weave(vm[:2], {0: l4[:1], 1: l4[1:]})
    Lp, Lok, Lr, Lp2 = P.newlabel('R_pc'), P.newlabel('R_pcok'), P.newlabel('R_pcr'), P.newlabel('R_pc2')
    P('s_waitcnt vmcnt(%d)' % ((1 if CFG['km'] else 0) + (2 if CFG['r2'] else 0)))
    stamp('cvm')
    E('ds_write_b128 %s, %s offset:5120' % (v(vW1K), v(T_, 4)))
    E('ds_write_b32 %s, %s offset:%d' % (v(vL4), v(T_ + 4), 5120 + 4092))
    c5 = chk5(T_ + 6, sTagR, s(sChk))
    E.weave(vm[2:6], {0: c5[0:2], 1: c5[2:4], 2: c5[4:5]})
    P('s_cbranch_vccnz %s' % Lr)
    P.label(Lok)
    def c_tail(Lr=Lr, Lp2=Lp2, Lok=Lok):
        if CFG['r2']:
            Lr = P.newlabel('R_pcr2')
            P('s_waitcnt vmcnt(%d)' % (1 if CFG['km'] else 0))
            P('ds_write_b128 %s, %s offset:5120' % (v(vW1K), v(vVx, 4)))
            P('ds_write_b32 %s, %s offset:%d' % (v(vL4), v(vVx + 4), 5120 + 4092))
            for x in chk5(T_ + 6, sTagR, s(sChk), vVx):
                P(x)
            P('s_cbranch_vccz %s' % Lok)
            P.label(Lr)
        spin_retry(P, Lp2, Lok)
        P.label(Lp2)
        P('s_waitcnt lgkmcnt(0)')
        for x in gload(sMemRLd):
            P(x)
        P('s_waitcnt vmcnt(0)')
        P('ds_write_b128 %s, %s offset:5120' % (v(vW1K), v(T_, 4)))
        P('ds_write_b32 %s, %s offset:%d' % (v(vL4), v(T_ + 4), 5120 + 4092))
        for x in chk5(T_ + 6, sTagR, s(sChk)):
            P(x)
        P('s_cbranch_vccnz %s' % Lr)
        P('s_branch %s' % Lok)
    tails.append((Lr, c_tail))
    if w3:
        P('v_lshlrev_b32 %s, 3, %s' % (v(T_ + 7), v(vL16)))
        P('s_add_u32 %s, %s, 0x%x' % (s(sT2), s(sTch), VX - KX))
    stamp(1)
    E.drain()
    P('s_barrier')
    stamp('b2')
    rd = ['ds_read_b128 %s, %s offset:%d' % (v(A(i), 4), v(vL16), L_MEM + 5120 + 1024 * i) for i in range(5)]
    E(rd[0]); E(rd[1])
    fill = {0: [rd[2]], 1: [rd[3]], 3: [rd[4]]}
    E.weave(vm[6:], fill)
    stamp('dq')
    main = [smf(accQ + 4 * nt, A(i), W('q', 5 + i, nt)) for i in range(5) for nt in range(2)]
    main += [smf(accK + 4 * nt, A(i), W('k', 5 + i, nt)) for i in range(5) for nt in range(2)]
    fill = {}
    addfill(fill, 0, land(5)); addfill(fill, 6, land(6)); addfill(fill, 12, land(7))
    addfill(fill, CFG['vg'] + (vo if not w3 else -CFG['stag']), ['buffer_load_dwordx4 %s, %s, %s, %s offen offset:%d sc1' % (v(vVx + 4 * t, 4), v(vL16), ws, s(sVXoff), 1024 * t) for t in range(2)], CFG['vs'])
    if w3 and CFG['touch']:
        addfill(fill, 10, ['buffer_load_dword %s, %s, %s offen sc1 lds' % (v(T_ + 7), ws, s(b_)) for b_ in (sTch, sT2)])
    addfill(fill, 17, ['v_add_u32 %s, 0x10000, %s' % (v(vVW), v(vVW))])
    addfill(fill, 18, land(8)[:2])
    addfill(fill, 5, ['s_mov_b32 %s, %s' % (s(sMemRLd), s(sMemRNx)), 's_xor_b32 %s, %s, 0x4000' % (s(sMemRNx), s(sMemRNx)),
                      's_xor_b32 %s, %s, 0x4000' % (s(sMemLLd), s(sMemLLd))])
    addfill(fill, 0, ['s_andn2_b32 %s, 1, %s' % (s(sT0), s(sStep)),
                      's_xor_b32 %s, %s, %s' % (s(sTagR), s(sTagR), s(sT0)), 's_mov_b32 %s, 1' % s(sChk),
                      's_min_u32 %s, %s, 1' % (s(sT0), s(sStep))])
    if w3:
        addfill(fill, 4, ['s_cmp_gt_u32 %s, %d' % (s(sStep), EARLY), 's_cselect_b32 %s, 0, %s' % (s(sT0), s(sT0))])
        addfill(fill, 6, ['s_sub_u32 %s, %s, %s' % (s(sT0), s(sStep), s(sT0)), 'v_mov_b32 %s, %s' % (v(T_ + 1), s(sT0)),
                          'v_mov_b32 %s, 0' % v(T_ + 6),
                          'buffer_store_dword %s, %s, %s, %s offen sc1' % (v(T_ + 1), v(T_ + 6), ws, s(sKmFlagOff))])
    addfill(fill, 13, [cvt(T_, accQ), cvt(T_ + 1, accQ + 2), cvt(T_ + 2, accQ + 4), cvt(T_ + 3, accQ + 6)])
    E.weave(main, fill)
    stamp('dend')
    Ak = SP if X == 0 else T_ + 4
    tr = lambda d, a_: 'v_mfma_f32_16x16x16_bf16 %s, %s, %s, 0' % (v(d, 4), v(a_, 2), v(vSig, 2))
    mm = lambda d, a_, b_: 'v_mfma_f32_16x16x32_bf16 %s, %s, %s, 0' % (v(d, 4), v(a_, 4), v(b_, 4))
    E(tr(accQ, T_)); E(land(8)[2]); E(tr(accQ + 4, T_ + 2)); E(land(8)[3])
    E(cvt(T_ + 4, accK)); E(cvt(T_ + 5, accK + 2)); E(cvt(T_ + 6, accK + 4)); E(cvt(T_ + 7, accK + 6))
    E(tr(accK, T_ + 4))
    E(cvt(T_, accQ))
    E(tr(accK + 4, T_ + 6))
    E(cvt(T_ + 1, accQ + 2)); E(cvt(T_ + 2, accQ + 4)); E(cvt(T_ + 3, accQ + 6))
    E(mm(accQ, vKx, T_)); E(mm(accQ + 4, vKx + 4, T_))
    for i in range(4):
        E(cvt(Ak + i, accK + 2 * i))
    E(mm(accK, Ak, T_))
    for r in range(4):
        E('v_cndmask_b32 %s, %s, %s, %s' % (v(accQ + r), v(accQ + r), v(accQ + 4 + r), s(sC8, 2)))
    E('ds_write_b128 %s, %s offset:%d' % (v(vW1K), v(accQ, 4), L_SX))
    for r in range(2):
        E('v_cndmask_b32 %s, %s, %s, %s' % (v(accK + r), v(accK + r), v(accK + 2 + r), s(sC8, 2)))
    E('ds_write_b64 %s, %s offset:%d' % (v(vW1K), v(accK, 2), L_MEM))
    stamp('esx')
    vr = [smf(AV + 4 * nt, A(i), W('v', 5 + i, nt)) for i in range(5) for nt in range(2)]
    adr = [T_ + 4, T_ + 6, X_ + 10]
    E.weave(vr[:5], {k: ['v_xor_b32 %s, 0x%x, %s' % (v(adr[k]), 1024 * (k + 1), v(vW1K))] for k in range(3)})
    P('s_cmp_eq_u32 %s, 63' % s(sStep))
    P('s_cbranch_scc1 %s' % Lexit)
    stamp(2)
    E.drain()
    P('s_barrier')
    stamp('b3')
    xd = [X_ + 4, X_ + 12, T_]
    rds = []
    for k in range(3):
        rds.append('ds_read_b128 %s, %s offset:%d' % (v(xd[k], 4), v(adr[k]), L_SX))
        rds.append('ds_read_b64 %s, %s offset:%d' % (v(adr[k], 2), v(adr[k]), L_MEM))
    E(rds[0]); E(rds[1])
    E.weave(vr[5:], {k: [rds[2 + k]] for k in range(4)})
    m_ = X_ + 8
    E(pk('add', X_, X_, X_ + 4)); E(pk('add', X_ + 2, X_ + 2, X_ + 6)); E(pk('add', m_, m_, T_ + 4))
    E(pk('add', X_ + 12, X_ + 12, T_)); E(pk('add', X_ + 14, X_ + 14, T_ + 2)); E(pk('add', T_ + 6, T_ + 6, X_ + 10))
    E(pk('add', X_, X_, X_ + 12)); E(pk('add', X_ + 2, X_ + 2, X_ + 14)); E(pk('add', m_, m_, T_ + 6))
    stamp('fsum')
    mx, tm = X_ + 10, X_ + 11
    Vm = SP if X == 1 else Z_
    vc = [cvt(Vm + i, AV + 2 * i) for i in range(4)]
    E('v_max3_f32 %s, %s, %s, %s' % (v(mx), v(X_), v(X_ + 1), v(X_ + 2)))
    E('v_max3_f32 %s, %s, %s, %s' % (v(mx), v(mx), v(X_ + 3), v(m_)))
    E('v_max_f32 %s, %s, %s' % (v(mx), v(mx), v(m_ + 1)))
    E(vc[0]); E(vc[1])
    E('v_max_f32_dpp %s, %s, %s row_ror:8 row_mask:0xf bank_mask:0xf' % (v(mx), v(mx), v(mx)))
    E('v_mov_b32 %s, %s' % (v(tm), v(mx)))
    E(vc[2]); E(vc[3])
    E('v_permlane16_swap_b32 %s, %s' % (v(mx), v(tm)))
    E('v_max_f32 %s, %s, %s' % (v(mx), v(mx), v(tm)))
    E('v_mov_b32 %s, %s' % (v(tm), v(mx)))
    E('v_mov_b32 %s, 0' % v(Y_)); E('v_mov_b32 %s, 0' % v(Y_ + 1))
    E('v_permlane32_swap_b32 %s, %s' % (v(mx), v(tm)))
    E('v_max_f32 %s, %s, %s' % (v(mx), v(mx), v(tm)))
    E('v_mul_f32 %s, %s, %s' % (v(mx), s(sScale), v(mx)))
    for r in (X_, X_ + 2, m_):
        E('v_pk_fma_f32 %s, %s, %s, %s op_sel_hi:[1,1,0] neg_lo:[0,0,1] neg_hi:[0,0,1]' % (v(r, 2), v(r, 2), s(sScale2, 2), v(mx, 2)))
    for r in (X_, X_ + 1, X_ + 2, X_ + 3, m_, m_ + 1):
        E('v_exp_f32 %s, %s' % (v(r), v(r)))
    stamp('fexp')
    Bx, Bm = T_, T_ + 4
    E(cvt(Bx, X_)); E(cvt(Bx + 1, X_ + 2)); E(cvt(Bm, m_))
    for d, a_ in ((Bx + 2, Bx), (Bx + 3, Bx + 1), (Bm + 1, Bm)):
        E('v_mov_b32_dpp %s, %s row_ror:8 row_mask:0xf bank_mask:0xf' % (v(d), v(a_)))
    O0, O1 = X_ + 4, X_ + 12
    ls, lt = X_ + 10, X_ + 11
    E(pk('add', X_, X_, X_ + 2))
    if CFG['vpos'] == 2:
        E('s_waitcnt vmcnt(%d)' % ((1 + 2 * CFG['touch']) if w3 else 0))
    E(mm(O0, vVx, Bx))
    E('v_add_f32 %s, %s, %s' % (v(m_), v(m_), v(m_ + 1)))
    E('v_add_f32 %s, %s, %s' % (v(X_), v(X_), v(X_ + 1)))
    E(mm(O1, vVx + 4, Bx))
    E('v_fma_f32 %s, %s, 0.5, %s' % (v(ls), v(m_), v(X_)))
    E('v_mfma_f32_16x16x16_bf16 %s, %s, %s, %s' % (v(O0, 4), v(Vm, 2), v(Bm, 2), v(O0, 4)))
    E('v_mov_b32 %s, 0' % v(Y_ + 2))
    E('v_add_f32_dpp %s, %s, %s row_ror:8 row_mask:0xf bank_mask:0xf' % (v(ls), v(ls), v(ls)))
    E('v_mfma_f32_16x16x16_bf16 %s, %s, %s, %s' % (v(O1, 4), v(Vm + 2, 2), v(Bm, 2), v(O1, 4)))
    E('v_mov_b32 %s, %s' % (v(lt), v(ls)))
    E('v_mov_b32 %s, 0' % v(Y_ + 3)); E('v_mov_b32 %s, 0' % v(Y_ + 4))
    E('v_permlane16_swap_b32 %s, %s' % (v(ls), v(lt)))
    E('v_add_f32 %s, %s, %s' % (v(ls), v(ls), v(lt)))
    E('v_mov_b32 %s, %s' % (v(lt), v(ls)))
    E('v_mov_b32 %s, 0' % v(Y_ + 5)); E('v_mov_b32 %s, 0' % v(Y_ + 6))
    E('v_permlane32_swap_b32 %s, %s' % (v(ls), v(lt)))
    E('v_add_f32 %s, %s, %s' % (v(ls), v(ls), v(lt)))
    E('v_rcp_f32 %s, %s' % (v(ls), v(ls)))
    E('s_mov_b64 exec, %s' % s(sEx8, 2))
    for r in (O0, O0 + 2, O1, O1 + 2):
        E('v_pk_mul_f32 %s, %s, %s op_sel_hi:[1,0]' % (v(r, 2), v(r, 2), v(ls, 2)))
    E(cvt(X_, O0)); E(cvt(X_ + 1, O0 + 2)); E(cvt(X_ + 2, O1)); E(cvt(X_ + 3, O1 + 2))
    E('ds_write_b128 %s, %s' % (v(vOWr), v(X_, 4)))
    stamp('gw')
    E('s_mov_b64 exec, -1')
    for i in range(7, 20):
        E('v_mov_b32 %s, 0' % v(Y_ + i))
    stamp(3)
    E.drain()
    P('s_barrier')
    stamp('b4')
    for k in range(2):
        E('ds_read_b128 %s, %s offset:%d' % (v(T_ + 4 * k, 4), v(vL16), L_O + 1024 * k))
    p1, Pk = X_, X_ + 4
    E('v_subrev_u32 %s, 0x20000, %s' % (v(vVW), v(vVW)))
    E('v_lshrrev_b32 %s, 8, %s' % (v(p1), v(vL16)))
    E('v_bfe_u32 %s, %s, 2, 6' % (v(p1 + 1), v(vL16)))
    E('v_lshl_add_u32 %s, %s, 13, %s' % (v(p1), v(p1), v(p1 + 1)))
    D = lambda T: Y_ + 4 * T
    main = [smf(D(T), T_ + 4 * k, WR[('o', k, T)]) + ' abid:1' for T in range(5) for k in range(2)]
    sw = lambda a_, b_: 'v_permlane32_swap_b32 %s, %s' % (v(a_), v(b_))
    bfi = lambda r: 'v_bfi_b32 %s, 1, %s, %s' % (v(r), s(sTagP), v(r))
    ha = lambda T, r: 'v_add_f32 %s, %s, %s' % (v(D(T) + r), v(D(T) + r), v(D(T) + 2 + r))
    hs = lambda T: pk('add', D(T), D(T), D(T) + 2)
    E.weave(main, {3: [ha(0, 0)], 4: [ha(0, 1)], 5: [cvt(Pk, D(0)), ha(1, 0)], 6: [ha(1, 1), bfi(Pk)], 7: [cvt(Pk + 1, D(1)), ha(2, 0)],
                   8: [ha(2, 1)], 9: [ha(3, 0), ha(3, 1), cvt(Pk + 2, D(2)), cvt(Pk + 3, D(3))]})
    E('buffer_store_dwordx4 %s, %s, %s, %s offen%s' % (v(Pk, 4), v(vPSt), ws, s(sPartSt0), lc))
    stamp('hm')
    E(hs(4)); E(cvt(D(4), D(4))); E(bfi(D(4)))
    E('buffer_store_dword %s, %s, %s, %s offen%s' % (v(D(4)), v(p1), ws, s(sPartSt1), lc))
    stamp(4)
    vl = ['buffer_load_dwordx4 %s, %s, %s, %s offen offset:%d sc1' % (v(vVx + 4 * t, 4), v(vL16), ws, s(sVXoff), 1024 * t) for t in range(2)]
    if CFG['vpos'] == 0:
        P(vl[0]); P(vl[1])
    Lne = P.newlabel('R_noearly')
    P('s_cmp_lt_u32 %s, %d' % (s(sStep), EARLY))
    P('s_cbranch_scc1 %s' % Lne)
    P('buffer_store_dwordx4 %s, %s, %s, %s offen sc1' % (v(SP, 4), v(vL16), ws, s(sKM)))
    P.label(Lne)
    def idle_list():
        return (['v_mov_b32 %s, 0' % v(X_ + i) for i in range(24)] + land(0) +
                ['v_lshrrev_b32 %s, 2, %s' % (v(vL4), v(vW1K)), 'v_add_u32 %s, 4, %s' % (v(vL4), v(vL4)),
                 's_add_u32 %s, %s, 1' % (s(sStep), s(sStep))])
    def idle_work():
        for x in idle_list():
            P(x)
    Lnored, Ljoin = P.newlabel('R_nored'), P.newlabel('R_join')
    if reducer == 'h16':
        P('s_cmp_ge_u32 %s, 16' % s(sH))
        P('s_cbranch_scc1 %s' % Lnored)
    pl = lambda R_: ['buffer_load_dwordx4 %s, %s, %s, %s offen offset:%d sc1' % (v(R_ + 4 * i, 4), v(vL16), ws, s(sPartLd), 1024 * i) for i in range(2)]
    if reducer:
        Lp, Lok, Lr = P.newlabel('R_pi'), P.newlabel('R_piok'), P.newlabel('R_pir')
        msk, mst, sel, Dr = T_ + 6, T_ + 7, Y_ + 8, Y_ + 12
        pre = ['v_mov_b32 %s, 0xfffe0000' % v(msk),
               'v_lshrrev_b32 %s, 2, %s' % (v(T_), v(vL16)),
               'v_and_b32 %s, 0x80, %s' % (v(T_), v(T_)),
               'v_and_or_b32 %s, %s, 16, %s' % (v(mst), v(vL16), v(T_)),
               'v_lshrrev_b32 %s, 5, %s' % (v(T_), v(vL16)),
               'v_and_or_b32 %s, %s, 8, %s' % (v(mst), v(T_), v(mst)),
               'v_lshrrev_b32 %s, 4, %s' % (v(T_), v(vL16)),
               'v_and_or_b32 %s, %s, 4, %s' % (v(mst), v(T_), v(mst)),
               'v_mov_b32 %s, 0x3f80' % v(T_),
               'v_cndmask_b32 %s, %s, 1.0, %s' % (v(T_), v(T_), s(sOdd, 2))]
        pre += ['v_cndmask_b32 %s, 0, %s, %s' % (v(sel + q), v(T_), s(sSelM + 2 * q, 2)) for q in range(4)]
        pre += ['s_lshl_b32 %s, %s, 16' % (s(sT16R), s(sTagR)), 's_sub_u32 %s, 0x10000, %s' % (s(sK1R), s(sT16R))]
        work = idle_list() + pre
        n1 = min(len(work), CFG['dI'])
        for x in work[:n1]:
            P(x)
        delay(P, CFG['dI'] - n1)
        for x in pl(Y_):
            P(x)
        n2 = min(len(work), n1 + CFG['dI2'])
        for x in work[n1:n2]:
            P(x)
        delay(P, CFG['dI2'] - (n2 - n1))
        for x in pl(vKx):
            P(x)
        for x in work[n2:]:
            P(x)
        def i_try(R_):
            xx = lambda d, i: 'v_bitop3_b32 %s, %s, %s, %s bitop3:0x%x' % (v(d), v(R_ + 2 * i), v(R_ + 2 * i + 1), s(sTagP), TT_XX)
            P('s_waitcnt vmcnt(3)')
            P('v_mfma_f32_16x16x32_bf16 %s, %s, %s, 0' % (v(Dr, 4), v(R_, 4), v(sel, 4)))
            if reducer == 'h16':
                P(xx(T_, 0)); P(xx(T_ + 1, 1))
            P('s_waitcnt vmcnt(2)')
            stamp('ipoll')
            P('v_mfma_f32_16x16x32_bf16 %s, %s, %s, %s' % (v(Dr, 4), v(R_ + 4, 4), v(sel, 4), v(Dr, 4)))
            if reducer == 'h16':
                P(xx(T_ + 2, 2)); P(xx(T_ + 3, 3))
                P('v_or3_b32 %s, %s, %s, %s' % (v(T_), v(T_), v(T_ + 2), v(T_ + 3)))
                P('v_bitop3_b32 %s, %s, %s, 1 bitop3:0x%x' % (v(T_), v(T_), v(T_ + 1), TT_OM))
            else:
                P('v_bitop3_b32 %s, %s, %s, %s bitop3:0x%x' % (v(T_), v(R_), v(R_ + 4), s(sTagP), TT_XX))
                P('v_and_b32 %s, 1, %s' % (v(T_), v(T_)))
            P('v_cmp_ne_u32 vcc, 0, %s' % v(T_))
        def i_fin():
            P(sw(Dr, Dr + 2)); P(sw(Dr + 1, Dr + 3))
            P(pk('add', Dr, Dr, Dr + 2))
            P('v_permlane16_swap_b32 %s, %s' % (v(Dr), v(Dr + 1)))
            P('v_add_f32 %s, %s, %s' % (v(Dr), v(Dr), v(Dr + 1)))
            P('v_add_u32 %s, %s, %s' % (v(Dr + 2), s(sK1R), v(Dr)))
            P('v_bfi_b32 %s, %s, %s, %s' % (v(Dr + 2), v(msk), v(Dr + 2), s(sT16R)))
            P('v_mov_b32_dpp %s, %s row_shl:2 row_mask:0xf bank_mask:0xf' % (v(Dr + 1), v(Dr)))
        Lok2 = P.newlabel('R_piok2')
        P.label(Lp)
        i_try(Y_)
        if CFG['lateb']:
            i_fin()
        P('s_cbranch_vccnz %s' % Lr)
        P.label(Lok)
        if not CFG['lateb']:
            i_fin()
        def i_tail(Lp=Lp, Lok=Lok):
            for x in pl(Y_):
                P(x)
            i_try(vKx)
            if CFG['lateb']:
                i_fin()
            P('s_cbranch_vccz %s' % Lok)
            for x in pl(vKx):
                P(x)
            spin_retry(P, Lp, Lok)
        tails.append((Lr, i_tail))
        P('s_mov_b64 exec, %s' % s(sExSt, 2))
        P('v_cvt_pk_bf16_f32 %s, %s, %s' % (v(Dr + 2), v(Dr + 2), v(Dr + 1)))
        P('buffer_store_dword %s, %s, %s, %s offen%s' % (v(Dr + 2), v(mst), ws, s(sMemLSt), lc))
        P('buffer_store_dword %s, %s, %s, %s offen sc1' % (v(Dr + 2), v(mst), ws, s(sMemRSt)))
        P('s_mov_b64 exec, -1')
        stamp(5)
        P('s_xor_b32 %s, %s, 0x4000' % (s(sMemRSt), s(sMemRSt)))
        P('s_xor_b32 %s, %s, 0x4000' % (s(sMemLSt), s(sMemLSt)))
        if reducer == 'h16':
            P('s_branch %s' % Ljoin)
    if reducer in (False, 'h16'):
        P.label(Lnored)
        if w3 and not CFG['iso']:
            flag_poll(P, 3)
            P('s_add_u32 %s, %s, 0x40000' % (s(sTch), s(sTch)))
        idle_work()
        stamp(5)
        P.label(Ljoin)
    P('s_barrier')
    if CFG['vpos'] == 1:
        P(vl[0]); P(vl[1])
    delay(P, CFG['dA'])
    if diag > 1 and CFG['trace']:
        Ld = P.newlabel('R_tr')
        P('s_waitcnt lgkmcnt(0)')
        P('s_sub_u32 s75, %s, 30' % s(sStep))
        P('s_cmp_ge_u32 s75, 16')
        P('s_cbranch_scc1 %s' % Ld)
        P('s_mul_i32 s75, s75, 24')
        P('s_mul_i32 s74, %s, 384' % s(sW))
        P('s_add_u32 s75, s75, s74')
        P('s_add_u32 s75, s75, 14592')
        P('v_mov_b32 %s, s75' % v(Y_))
        for k in range(6):
            P('v_mov_b32 %s, %s' % (v(Y_ + 1), s(sStamp + 2 * k)))
            P('ds_write_b32 %s, %s offset:%d' % (v(Y_), v(Y_ + 1), 4 * k))
        P.label(Ld)
    elif diag > 1:
        Ld = P.newlabel('R_dg')
        P('s_waitcnt lgkmcnt(0)')
        P('s_cmp_lt_u32 %s, 4' % s(sStep))
        P('s_cbranch_scc1 %s' % Ld)
        for k in range(6):
            P('s_sub_u32 s75, %s, %s' % (s(sStamp + 2 * k), 's74' if k == 0 else s(sStamp + 2 * k - 2)))
            P('s_add_u32 %s, %s, s75' % (s(80 + k), s(80 + k)))
            P('s_max_u32 %s, %s, s75' % (s(68 + k), s(68 + k)))
        P.label(Ld)
        P('s_mov_b32 s74, %s' % s(sStamp + 10))
    P('s_branch %s' % Ltop)
    for k, t in enumerate(tails):
        P.label(t[0])
        if diag:
            P('s_add_u32 s78, s78, 0x%x' % (1 << (10 * k)))
        t[1]()
    P.label(Lexit)
    P('s_waitcnt lgkmcnt(0)')
    if X == 1:
        for x in vr[5:]:
            P(x)
        for x in vc:
            P(x)
    P('buffer_store_dwordx4 %s, %s, %s, %s offen sc1' % (v(SP, 4), v(vL16), ws, s(sKM)))


def role_r(P, diag=False):
    r_prologue(P, diag)
    dbgtime(P, 12, Y_)
    Lend = P.newlabel('R_end')
    if diag:
        P('s_memtime s[98:99]')
        P('s_memrealtime s[100:101]')
        P('s_waitcnt lgkmcnt(0)')
        for k in list(range(80, 86)) + list(range(68, 75)) + [78]:
            P('s_mov_b32 s%d, 0' % k)
    names = (('r', True, False), ('h', 'h16', False), ('w3', False, True))
    lab = {(f, X, nm): P.newlabel('R_v%d%d%s' % (f, X, nm)) for f in (1, 0) for X in (0, 1) for nm, _, _ in names}
    sel = {(f, X): P.newlabel('R_s%d%d' % (f, X)) for f in (1, 0) for X in (0, 1)}
    Lsafe = P.newlabel('R_safe')
    P('s_cmp_lg_u32 %s, 1' % s(sFast))
    P('s_cbranch_scc1 %s' % Lsafe)
    for f in (1, 0):
        if not f:
            P.label(Lsafe)
        P('s_cmp_eq_u32 %s, 1' % s(sX))
        P('s_cbranch_scc1 %s' % sel[(f, 1)])
        for X in (0, 1):
            P.label(sel[(f, X)])
            P('s_cmp_eq_u32 %s, 2' % s(sW))
            P('s_cbranch_scc1 %s' % lab[(f, X, 'h')])
            P('s_cmp_eq_u32 %s, 3' % s(sW))
            P('s_cbranch_scc1 %s' % lab[(f, X, 'w3')])
            P('s_branch %s' % lab[(f, X, 'r')])
    for f in (1, 0):
        for X in (0, 1):
            for nm, red, w3 in names:
                P.label(lab[(f, X, nm)])
                r_loop(P, f, X, red, w3, diag)
                P('s_branch %s' % Lend)
    P.label(Lend)
    P('s_waitcnt vmcnt(0) lgkmcnt(0)')
    P('s_barrier')
    dbgtime(P, 13)
    L = P.newlabel('R_fin')
    P('s_cmp_lg_u32 %s, 3' % s(sW))
    P('s_cbranch_scc1 %s' % L)
    P('v_mov_b32 v0, 64')
    P('v_mov_b32 v1, 0')
    P('s_mov_b64 exec, 1')
    P('buffer_store_dword v0, v1, %s, %s offen sc1' % (s(S_WS, 4), s(sKmFlagOff)))
    P('s_mov_b64 exec, -1')
    P.label(L)
    if diag > 1 and CFG['trace']:
        P('v_mbcnt_lo_u32_b32 v0, -1, 0'); P('v_mbcnt_hi_u32_b32 v0, -1, v0')
        P('v_lshlrev_b32 v0, 3, v0')
        P('s_mul_i32 s74, %s, 384' % s(sW))
        P('v_add_u32 v1, s74, v0')
        P('ds_read_b64 v[2:3], v1 offset:14592')
        P('s_lshl_b32 s7, s2, 2'); P('s_add_u32 s7, s7, %s' % s(sW)); P('s_lshl_b32 s7, s7, 9'); P('s_add_u32 s7, s7, 0x%x' % (END0 + 0x120000))
        P('s_waitcnt lgkmcnt(0)')
        P('buffer_store_dwordx2 v[2:3], v0, %s, s7 offen' % s(S_WS, 4))
    if diag:
        P('s_memtime s[92:93]')
        P('s_memrealtime s[96:97]')
        P('s_waitcnt lgkmcnt(0)')
        P('s_sub_u32 s86, s92, s98')
        P('s_sub_u32 s87, s96, s100')
        if diag == 1:
            P('s_mov_b32 s80, s100')
            P('s_mov_b32 s81, s96')
        P('s_mov_b32 s88, s78')
        P('s_mov_b32 s89, %s' % s(sFast))
        P('s_lshl_b32 s7, s2, 2')
        P('s_add_u32 s7, s7, %s' % s(sW))
        P('s_lshl_b32 s7, s7, 6')
        P('s_add_u32 s7, s7, 0x%x' % END0)
        P('v_mov_b32 v1, 0')
        for k in range(16):
            P('v_mov_b32 v0, s%d' % (80 + k if k < 10 else 58 + k))
            P('buffer_store_dword v0, v1, %s, s7 offen offset:%d' % (s(S_WS, 4), 4 * k))
```

```python
from asmlib import *
from layout import *
import role_r as R
from role_r import srd, S_WS, S_DBG, S_TMP, S_CLS, S_IDX, S_WAVE, S_SPIN, spin_retry, cvt, pk, LgkmTrack, addfill

ws = s(S_WS, 4)
tmp = s(S_TMP, 4)
sW = S_WAVE
t0, t1, t2, t3, t4, t5 = 20, 21, 22, 23, 24, 25
sC = 26
sSeg, sIt, sNeed = 27, 28, 29
sLdsW = 30
S_OUT = 32
sA, sB, sC2, sD, sE, sF = 36, 37, 38, 39, 40, 41
sLo32 = 42
sEps = 44
sMask = 48
sK0, sK1, sK2 = 64, 65, 66
sFast = 45
sPk = 68

vLane, vL16 = 0, 1
DIAG = [0]
PX = dict(n1=20, nodma=0, nost=0, b5cy=0)
TL = END0 + 0x10000


def tl(P, slot, vt=254):
    if DIAG[0] not in (1, 2):
        return
    P('s_memrealtime s[78:79]')
    P('s_memtime s[94:95]')
    P('s_lshl_b32 s80, s2, 2')
    P('s_add_u32 s80, s80, %s' % s(sW))
    P('s_lshl_b32 s80, s80, 9')
    P('s_add_u32 s80, s80, 0x%x' % TL)
    if isinstance(slot, tuple):
        P('s_lshl_b32 s81, %s, 2' % s(slot[0]))
        P('s_add_u32 s80, s80, s81')
        slot = slot[1]
    P('s_waitcnt lgkmcnt(0)')
    P('v_mov_b32 %s, s78' % v(vt))
    P('v_mov_b32 %s, 0' % v(vt + 1))
    P('buffer_store_dword %s, %s, %s, s80 offen offset:%d' % (v(vt), v(vt + 1), ws, 4 * slot))
    P('s_add_u32 s80, s80, 0x80000')
    P('v_mov_b32 %s, s94' % v(vt))
    P('buffer_store_dword %s, %s, %s, s80 offen offset:%d' % (v(vt), v(vt + 1), ws, 4 * slot))


def cy(P, k):
    if DIAG[0] != 3:
        return
    P('s_memtime s[82:83]')
    P('s_waitcnt lgkmcnt(0)')
    if k >= 0:
        P('s_sub_u32 s84, s82, s85')
        P('s_add_u32 s%d, s%d, s84' % (86 + k, 86 + k))
    P('s_mov_b32 s85, s82')


def cy_init(P):
    if DIAG[0] == 3:
        for k in range(12):
            P('s_mov_b32 s%d, 0' % (86 + k))
        cy(P, -1)


def cy_dump(P, vt):
    if DIAG[0] != 3:
        return
    P('s_lshl_b32 s80, s2, 2'); P('s_add_u32 s80, s80, %s' % s(sW)); P('s_lshl_b32 s80, s80, 9'); P('s_add_u32 s80, s80, 0x%x' % TL)
    P('v_mov_b32 %s, 0' % v(vt + 1))
    for k in range(12):
        P('v_mov_b32 %s, s%d' % (v(vt), 86 + k))
        P('buffer_store_dword %s, %s, %s, s80 offen offset:%d' % (v(vt), v(vt + 1), ws, 4 * (100 + k)))


def base_regs(P):
    P('v_and_b32 %s, 63, v0' % v(vLane))
    P('v_lshlrev_b32 %s, 4, %s' % (v(vL16), v(vLane)))
    P('s_sub_u32 %s, %s, 2' % (s(sC), s(S_CLS)))
    P('s_lshl_b32 %s, %s, 5' % (s(sC), s(sC)))
    P('s_add_u32 %s, %s, %s' % (s(sC), s(sC), s(S_IDX)))
    P('s_mov_b32 %s, -1' % s(sLo32))
    P('s_mov_b32 %s, 0' % s(sLo32 + 1))


def load_ptr(P, ka, nbytes, dst=S_TMP):
    P('s_load_dwordx2 s[76:77], s[0:1], %d' % ka)
    P('s_waitcnt lgkmcnt(0)')
    srd(P, dst, 76, nbytes)


def div_rows80(P, vr, vc, k, tt):
    P('v_add_u32 %s, %d, %s' % (v(tt), 64 * k, v(vLane)))
    P('v_mul_u32_u24 %s, 205, %s' % (v(vr), v(tt)))
    P('v_lshrrev_b32 %s, 14, %s' % (v(vr), v(vr)))
    P('v_mul_u32_u24 %s, 80, %s' % (v(vc), v(vr)))
    P('v_sub_u32 %s, %s, %s' % (v(vc), v(tt), v(vc)))


def load_w1(P, dst, rs, sbase, vt, between=None):
    vD, vT, a_, b_ = vt, vt + 1, vt + 2, vt + 3
    P('v_lshrrev_b32 %s, 4, %s' % (v(a_), v(vLane)))
    P('v_and_b32 %s, 15, %s' % (v(b_), v(vLane)))
    P('v_lshlrev_b32 %s, 2, %s' % (v(vD), v(a_)))
    P('v_xor_b32 %s, %s, %s' % (v(vD), v(vD), v(b_)))
    P('v_lshlrev_b32 %s, 4, %s' % (v(vD), v(vD)))
    P('v_mul_u32_u24 %s, %d, %s' % (v(b_), rs, v(a_)))
    P('v_add_u32 %s, %s, %s' % (v(vD), v(vD), v(b_)))
    P('s_mul_i32 %s, %s, %d' % (s(t0), s(sW), 16 * rs))
    P('s_add_u32 %s, %s, %s' % (s(t0), s(t0), s(sbase)))
    P('s_lshl_b32 %s, %s, 12' % (s(t1), s(sW)))
    P('s_barrier')
    for it in range(10):
        for i in range(4):
            P('s_add_u32 m0, %s, %d' % (s(t1), it * 16384 + i * 1024))
            P('s_add_u32 %s, %s, %d' % (s(t2), s(t0), (64 * it + 4 * i) * rs))
            P('buffer_load_dwordx4 %s, %s, %s offen lds' % (v(vD), tmp, s(t2)))
    if between:
        between()
        P('v_lshrrev_b32 %s, 4, %s' % (v(a_), v(vLane)))
    P('v_bfe_u32 %s, %s, 2, 2' % (v(b_), v(vLane)))
    P('v_and_b32 %s, 1, %s' % (v(vT), v(a_)))
    P('s_lshl_b32 %s, %s, 1' % (s(t2), s(sW)))
    P('v_add_u32 %s, %s, %s' % (v(vT), s(t2), v(vT)))
    P('v_lshlrev_b32 %s, 1, %s' % (v(vD), v(b_)))
    P('v_xor_b32 %s, %s, %s' % (v(vT), v(vT), v(vD)))
    P('v_lshlrev_b32 %s, 5, %s' % (v(vT), v(vT)))
    P('v_lshrrev_b32 %s, 1, %s' % (v(a_), v(a_)))
    P('v_lshl_add_u32 %s, %s, 3, %s' % (v(b_), v(a_), v(b_)))
    P('v_lshl_add_u32 %s, %s, 8, %s' % (v(vT), v(b_), v(vT)))
    P('v_and_b32 %s, 3, %s' % (v(a_), v(vLane)))
    P('v_lshl_add_u32 %s, %s, 3, %s' % (v(vT), v(a_), v(vT)))
    for it in range(10):
        P('s_waitcnt vmcnt(%d)' % (36 - 4 * it))
        P('s_barrier')
        for q in range(4):
            for j in range(2):
                P('ds_read_b64_tr_b16 %s, %s offset:%d' % (R.sub(dst(4 * it + q), 2 * j, 2), v(vT), (it & 3) * 16384 + q * 4096 + j * 1024))
        if it & 3 == 3:
            P('v_add_u32 %s, 0x10000, %s' % (v(vT), v(vT)))
    P('s_waitcnt lgkmcnt(0)')
    P('s_barrier')


def load_w2(P, dst, sbase, atmap, vt):
    vD, vT, a_, b_ = vt, vt + 5, vt + 10, vt + 11
    for k in range(5):
        div_rows80(P, a_, b_, k, vT)
        P('v_lshlrev_b32 %s, 2, %s' % (v(vT), v(a_)))
        P('v_xor_b32 %s, %s, %s' % (v(b_), v(b_), v(vT)))
        P('v_mul_u32_u24 %s, 1280, %s' % (v(a_), v(a_)))
        P('v_lshl_add_u32 %s, %s, 4, %s' % (v(vD + k), v(b_), v(a_)))
    P('s_mul_i32 %s, %s, %d' % (s(t1), s(sW), 8 * 1280))
    P('s_add_u32 %s, %s, %s' % (s(t0), s(t1), s(sbase)))
    P('s_barrier')
    for it in range(4):
        for g in range(2):
            P('s_add_u32 %s, %s, %d' % (s(t2), s(t0), (32 * it + 4 * g) * 1280))
            for k in range(5):
                P('s_add_u32 m0, %s, %d' % (s(t1), it * 40960 + g * 5120 + k * 1024))
                P('s_nop 0')
                P('buffer_load_dwordx4 %s, %s, %s offen lds' % (v(vD + k), tmp, s(t2)))
    P('v_bfe_u32 %s, %s, 2, 2' % (v(a_), v(vLane)))
    P('v_lshrrev_b32 %s, 5, %s' % (v(b_), v(vLane)))
    P('v_lshl_add_u32 %s, %s, 2, %s' % (v(b_), v(b_), v(a_)))
    P('v_mul_u32_u24 %s, 1280, %s' % (v(b_), v(b_)))
    P('v_and_b32 %s, 1, %s' % (v(vD), v(vLane)))
    P('v_lshl_add_u32 %s, %s, 3, %s' % (v(b_), v(vD), v(b_)))
    P('v_bfe_u32 %s, %s, 4, 1' % (v(vD), v(vLane)))
    P('v_bfe_u32 %s, %s, 1, 1' % (v(vD + 1), v(vLane)))
    P('v_lshl_add_u32 %s, %s, 1, %s' % (v(vD), v(vD), v(vD + 1)))
    P('v_lshlrev_b32 %s, 2, %s' % (v(a_), v(a_)))
    P('s_mul_i32 %s, %s, 20' % (s(t2), s(sW)))
    for T in range(5):
        P('s_add_u32 %s, %s, %d' % (s(t3), s(t2), 4 * T))
        P('v_add_u32 %s, %s, %s' % (v(vD + 1), s(t3), v(vD)))
        P('v_xor_b32 %s, %s, %s' % (v(vD + 1), v(vD + 1), v(a_)))
        P('v_lshl_add_u32 %s, %s, 4, %s' % (v(vT + T), v(vD + 1), v(b_)))
    for it in range(4):
        P('s_waitcnt vmcnt(%d)' % (30 - 10 * it))
        P('s_barrier')
        for T in range(5):
            for k1 in range(2):
                for j in range(2):
                    row = (16 * j + 8 * k1) if atmap else (16 * k1 + 8 * j)
                    P('ds_read_b64_tr_b16 %s, %s offset:%d' % (R.sub(dst(T, 2 * it + k1), 2 * j, 2), v(vT + T), row * 1280))
            if it < 3:
                P('v_add_u32 %s, %d, %s' % (v(vT + T), 40960, v(vT + T)))
            P('s_waitcnt lgkmcnt(0)')
    P('s_barrier')


def stage_setup(P, vS, vF, drow, tt):
    P('s_lshl_b32 %s, %s, 2' % (s(t0), s(sW)))
    P('v_lshrrev_b32 %s, 4, %s' % (v(tt), v(vLane)))
    P('v_and_b32 %s, 15, %s' % (v(tt + 1), v(vLane)))
    P('v_add_u32 %s, %s, %s' % (v(tt + 2), s(t0), v(tt)))
    P('v_xor_b32 %s, %s, %s' % (v(tt + 1), v(tt + 1), v(tt + 2)))
    P('v_mul_u32_u24 %s, 1280, %s' % (v(tt), v(tt)))
    P('v_lshl_add_u32 %s, %s, 4, %s' % (v(vS), v(tt + 1), v(tt)))
    P('v_and_b32 %s, 31, %s' % (v(tt), v(vLane)))
    if drow is not None:
        P('v_add_u32 %s, %s, %s' % (v(tt), s(drow), v(tt)))
    P('v_and_b32 %s, 15, %s' % (v(tt + 1), v(tt)))
    P('v_lshrrev_b32 %s, 5, %s' % (v(tt + 2), v(vLane)))
    P('v_xor_b32 %s, %s, %s' % (v(tt + 1), v(tt + 1), v(tt + 2)))
    P('v_lshlrev_b32 %s, 8, %s' % (v(tt), v(tt)))
    for k in range(8):
        P('v_xor_b32 %s, %d, %s' % (v(tt + 2), 2 * k, v(tt + 1)))
        P('v_lshl_add_u32 %s, %s, 4, %s' % (v(vF + k), v(tt + 2), v(tt)))


def stage_one(vS, sbase, slds, cg, g, cgstride, st):
    return ['s_add_u32 %s, %s, %d' % (s(st), s(sbase), g * 20480 + cg * 256),
            's_add_u32 m0, %s, %d' % (s(slds), cg * cgstride + g * 4096),
            'buffer_load_dwordx4 %s, %s, %s offen sc1 lds' % (v(vS), ws, s(st))]


def local_stores(P, ins, emit=None):
    Ls, Lj = P.newlabel('ls'), P.newlabel('lj')
    pre = [x for x in ins if not x.startswith('buffer_store')]
    assert not pre
    P('s_cmp_lg_u32 %s, 1' % s(sFast))
    P('s_cbranch_scc1 %s' % Ls)
    (emit or (lambda f: [P(f(x)) for x in ins]))(lambda x: x)
    P('s_branch %s' % Lj)
    P.label(Ls)
    (emit or (lambda f: [P(f(x)) for x in ins]))(lambda x: x + ' sc1')
    P.label(Lj)


def read_mode(P, vt):
    R.read_mode(P, vt, sFast, t0, t1)


def div3(P, sq, sr, sx):
    P('s_mul_i32 %s, %s, 43' % (s(sq), s(sx)))
    P('s_lshr_b32 %s, %s, 7' % (s(sq), s(sq)))
    P('s_mul_i32 %s, %s, 3' % (s(sr), s(sq)))
    P('s_sub_u32 %s, %s, %s' % (s(sr), s(sx), s(sr)))


def poll_ge(P, soff, n, sneed, vt, srd_=None, sleep=2):
    Lp, Lok = P.newlabel('pg'), P.newlabel('pgok')
    P('v_min_u32 %s, %d, %s' % (v(vt), n - 1, v(vLane)))
    P('v_lshlrev_b32 %s, 2, %s' % (v(vt), v(vt)))
    P.label(Lp)
    P('buffer_load_dword %s, %s, %s, %s offen sc1' % (v(vt + 1), v(vt), ws, s(soff)))
    P('s_waitcnt vmcnt(0)')
    P('v_cmp_gt_u32 vcc, %s, %s' % (s(sneed), v(vt + 1)))
    P('s_cbranch_vccz %s' % Lok)
    if sleep:
        P('s_sleep %d' % sleep)
    spin_retry(P, Lp, Lok)
    P.label(Lok)


def poll_cached(P, soff, n, sneed, scache, vt, sleep=1):
    Lp, Lok = P.newlabel('pc'), P.newlabel('pcok')
    P('s_cmp_ge_u32 %s, %s' % (s(scache), s(sneed)))
    P('s_cbranch_scc1 %s' % Lok)
    P('v_min_u32 %s, %d, %s' % (v(vt), n - 1, v(vLane)))
    P('v_lshlrev_b32 %s, 2, %s' % (v(vt), v(vt)))
    P.label(Lp)
    P('buffer_load_dword %s, %s, %s, %s offen sc1' % (v(vt + 1), v(vt), ws, s(soff)))
    P('s_waitcnt vmcnt(0)')
    for k in range(n):
        P('v_readlane_b32 %s, %s, %d' % (s(scache if k == 0 else 7), v(vt + 1), k))
        if k:
            P('s_min_u32 %s, %s, s7' % (s(scache), s(scache)))
    P('s_cmp_ge_u32 %s, %s' % (s(scache), s(sneed)))
    P('s_cbranch_scc1 %s' % Lok)
    if sleep:
        P('s_sleep %d' % sleep)
    spin_retry(P, Lp, Lok)
    P.label(Lok)


def put_flag(P, soff, sval, vt, local=False):
    P('v_mov_b32 %s, %s' % (v(vt), s(sval) if isinstance(sval, int) else sval))
    P('v_mov_b32 %s, 0' % v(vt + 1))
    P('s_mov_b64 exec, 1')
    x = 'buffer_store_dword %s, %s, %s, %s offen' % (v(vt), v(vt + 1), ws, s(soff))
    if local:
        local_stores(P, [x])
    else:
        P(x + ' sc1')
    P('s_mov_b64 exec, -1')


def signal_wg(P, soff, sval, vt, local=False):
    L = P.newlabel('sig')
    P('s_waitcnt vmcnt(0)')
    P('s_barrier')
    P('s_cmp_lg_u32 %s, 0' % s(sW))
    P('s_cbranch_scc1 %s' % L)
    put_flag(P, soff, sval, vt, local)
    P.label(L)


def row_consts(P, vSel, vRo, vR2, tt):
    P('v_and_b32 %s, 15, %s' % (v(tt), v(vLane)))
    P('v_mov_b32 %s, 0x3f80' % v(tt + 1))
    for q in range(8):
        P('v_cmp_eq_u32 vcc, %d, %s' % (2 * q, v(tt)))
        P('v_cndmask_b32 %s, 0, %s, vcc' % (v(vSel + q), v(tt + 1)))
        P('v_cmp_eq_u32 vcc, %d, %s' % (2 * q + 1, v(tt)))
        P('v_cndmask_b32 %s, %s, 1.0, vcc' % (v(vSel + q), v(vSel + q)))
    P('v_lshrrev_b32 %s, 4, %s' % (v(tt), v(vLane)))
    P('v_and_b32 %s, 0xf0, %s' % (v(tt + 1), v(vL16)))
    P('v_mul_u32_u24 %s, 1280, %s' % (v(vRo), v(tt)))
    P('v_add_u32 %s, %s, %s' % (v(vRo), v(vRo), v(tt + 1)))
    P('v_lshrrev_b32 %s, 5, %s' % (v(vR2), v(vLane)))
    P('v_lshl_add_u32 %s, %s, 8, %s' % (v(tt + 1), v(vR2), v(tt + 1)))
    P('v_and_b32 %s, 1, %s' % (v(tt), v(tt)))
    P('v_lshl_add_u32 %s, %s, 3, %s' % (v(vR2), v(tt), v(tt + 1)))
    P('s_mov_b32 %s, 0x3727c5ac' % s(sEps))


def row_load(P, d, vR2, srd_, soff, sc=' sc1'):
    P('v_mov_b32 %s, 0' % v(d + 4))
    P('v_mov_b32 %s, 0' % v(d + 5))
    for k in range(3):
        if k == 2:
            P('s_mov_b64 exec, %s' % s(sLo32, 2))
        P('buffer_load_dwordx2 %s, %s, %s, %s offen offset:%d%s' % (v(d + 2 * k, 2), v(vR2), srd_, s(soff), 512 * k, sc))
    P('s_mov_b64 exec, -1')


def row_store(P, d, vR2, srd_, soff, sc=' sc1'):
    ins = ['buffer_store_dwordx2 %s, %s, %s, %s offen offset:%d' % (v(d + 2 * k, 2), v(vR2), srd_, s(soff), 512 * k) for k in range(3)]
    def emit(f):
        P(f(ins[0])); P(f(ins[1]))
        P('s_mov_b64 exec, %s' % s(sLo32, 2))
        P(f(ins[2]))
        P('s_mov_b64 exec, -1')
    if sc == 'local':
        local_stores(P, ins, emit)
    else:
        emit(lambda x: x + sc)


def unpack(P, dst, src):
    for i in range(6):
        P('v_and_b32 %s, 0xffff0000, %s' % (v(dst + 2 * i + 1), v(src + i)))
        P('v_lshlrev_b32 %s, 16, %s' % (v(dst + 2 * i), v(src + i)))


def pack(P, dst, src):
    for i in range(6):
        P(cvt(dst + i, src + 2 * i))


def xsum(P, r, tt):
    for n in (8, 4, 2, 1):
        P('v_add_f32_dpp %s, %s, %s row_ror:%d row_mask:0xf bank_mask:0xf' % (v(r), v(r), v(r), n))
    for sw in ('16', '32'):
        P('v_mov_b32 %s, %s' % (v(tt), v(r)))
        P('v_permlane%s_swap_b32 %s, %s' % (sw, v(r), v(tt)))
        P('v_add_f32 %s, %s, %s' % (v(r), v(r), v(tt)))


def rnd(P, r, src=None):
    P('v_cvt_pk_bf16_f32 %s, %s, %s' % (v(r), v(r if src is None else src), v(r if src is None else src)))
    P('v_and_b32 %s, 0xffff0000, %s' % (v(r), v(r)))


def rstd(P, r, var):
    rnd(P, r, var)
    P('v_add_f32 %s, %s, %s' % (v(r), s(sEps), v(r)))
    rnd(P, r)
    P('v_sqrt_f32 %s, %s' % (v(r), v(r)))
    rnd(P, r)
    P('v_rcp_f32 %s, %s' % (v(r), v(r)))


def layernorm(P, X, tt):
    P(pk('add', tt, X, X + 2)); P(pk('add', tt + 2, X + 4, X + 6)); P(pk('add', tt + 4, X + 8, X + 10))
    P(pk('add', tt, tt, tt + 2)); P(pk('add', tt, tt, tt + 4))
    P('v_add_f32 %s, %s, %s' % (v(tt), v(tt), v(tt + 1)))
    xsum(P, tt, tt + 1)
    P('v_mul_f32 %s, 0x3acccccd, %s' % (v(tt), v(tt)))
    rnd(P, tt + 4, tt)
    P('v_sub_f32 %s, %s, %s' % (v(tt), v(tt + 4), v(tt)))
    for i in range(0, 12, 2):
        if i == 8:
            P('s_mov_b64 exec, %s' % s(sLo32, 2))
        P('v_pk_add_f32 %s, %s, %s op_sel_hi:[1,0] neg_lo:[0,1] neg_hi:[0,1]' % (v(X + i, 2), v(X + i, 2), v(tt + 4, 2)))
    P('s_mov_b64 exec, -1')
    P(pk('mul', tt + 2, X, X))
    for i in range(2, 12, 2):
        P('v_pk_fma_f32 %s, %s, %s, %s' % (v(tt + 2, 2), v(X + i, 2), v(X + i, 2), v(tt + 2, 2)))
    P('v_add_f32 %s, %s, %s' % (v(tt + 2), v(tt + 2), v(tt + 3)))
    xsum(P, tt + 2, tt + 3)
    P('v_mul_f32 %s, 0x3acccccd, %s' % (v(tt + 2), v(tt + 2)))
    P('v_fma_f32 %s, -%s, %s, %s' % (v(tt + 2), v(tt), v(tt), v(tt + 2)))
    P('v_max_f32 %s, 0, %s' % (v(tt + 3), v(tt + 2)))
    rstd(P, tt + 2, tt + 3)
    for i in range(0, 12, 2):
        P('v_pk_mul_f32 %s, %s, %s op_sel_hi:[1,0]' % (v(X + i, 2), v(X + i, 2), v(tt + 2, 2)))


def layernorm_again(P, X, tt):
    P('v_mul_f32 %s, %s, %s' % (v(tt), v(tt), v(tt + 2)))
    P('v_mul_f32 %s, %s, %s' % (v(tt + 3), v(tt + 3), v(tt + 2)))
    P('v_mul_f32 %s, %s, %s' % (v(tt + 3), v(tt + 3), v(tt + 2)))
    rnd(P, tt)
    rstd(P, tt + 2, tt + 3)
    P('v_mul_f32 %s, %s, %s' % (v(tt), v(tt), v(tt + 2)))
    for i in range(0, 12, 2):
        P('v_pk_fma_f32 %s, %s, %s, %s op_sel_hi:[1,0,0]' % (v(X + i, 2), v(X + i, 2), v(tt + 2, 2), v(tt, 2)))


def gather_sum(P, Dd, B, vSel, vRo, vRoLast, sbase, nq, st):
    if isinstance(B, int):
        B0 = B
        B = lambda n: v(B0 + 4 * n, 4)
    for q in range(nq):
        P('s_add_u32 %s, %s, %d' % (s(st), s(sbase), 5120 * q))
        for cg in range(5):
            P('buffer_load_dwordx4 %s, %s, %s, %s offen offset:%d sc1' % (B(5 * q + cg), v(vRoLast if q == nq - 1 else vRo), ws, s(st), 256 * cg))
    for q in range(nq):
        for cg in range(5):
            d = v(Dd + 4 * (cg >> 1), 4)
            P('s_waitcnt vmcnt(%d)' % (5 * (nq - 1 - q) + 4 - cg))
            P('v_mfma_f32_16x16x32_bf16 %s, %s, %s, %s' % (d, v(vSel + 4 * (cg & 1), 4), B(5 * q + cg), '0' if (q == 0 and cg & 1 == 0) else d))


def add_rounded(P, X, Dd, Rp, tt):
    unpack(P, X, Rp)
    pack(P, tt, Dd)
    unpack(P, Dd, tt)
    for i in range(0, 12, 2):
        P(pk('add', X + i, X + i, Dd + i))
    pack(P, Rp, X)


def b5_setup(P, vTW, vTR, vGO, ldsbase, nprod, tt):
    P('s_mul_i32 %s, %s, 5120' % (s(t0), s(sW)))
    P('s_add_u32 %s, %s, %d' % (s(t0), s(t0), ldsbase))
    P('v_and_b32 %s, 31, %s' % (v(tt), v(vLane)))
    P('v_mul_u32_u24 %s, 80, %s' % (v(tt), v(tt)))
    P('v_lshrrev_b32 %s, 5, %s' % (v(tt + 1), v(vLane)))
    P('v_lshl_add_u32 %s, %s, 4, %s' % (v(tt), v(tt + 1), v(tt)))
    P('v_add_u32 %s, %s, %s' % (v(vTW), s(t0), v(tt)))
    if isinstance(nprod, int):
        P('s_mov_b32 %s, %d' % (s(t1), nprod * 1280))
    else:
        P('s_mul_i32 %s, %s, 1280' % (s(t1), nprod))
    P('v_lshrrev_b32 %s, 2, %s' % (v(tt), v(vLane)))
    P('v_and_b32 %s, 0x30, %s' % (v(tt + 1), v(vL16)))
    P('v_mul_u32_u24 %s, 80, %s' % (v(tt + 2), v(tt)))
    P('v_add3_u32 %s, %s, %s, %s' % (v(vTR), v(tt + 2), v(tt + 1), s(t0)))
    P('v_mul_lo_u32 %s, %s, %s' % (v(tt + 2), v(tt), s(t1)))
    P('v_add_u32 %s, %s, %s' % (v(vGO), v(tt + 2), v(tt + 1)))


def b5(P, W2, ldsU, U, acc, pkd, vTW, vTR, vGO, sdst0, sdst1, extra=()):
    def emit(f):
        E = LgkmTrack(P)
        for ks in range(8):
            E('ds_read_b128 %s, %s offset:%d' % (v(U + 4 * ks, 4), v(vL16), ldsU + 1024 * ks))
        def stA(T):
            a_ = acc + 16 * (T & 1)
            x = [cvt(pkd + i, a_ + 2 * i) for i in range(8)]
            x += ['v_permlane32_swap_b32 %s, %s' % (v(pkd + 4 * h + y), v(pkd + 4 * h + 2 + y)) for h in range(2) for y in range(2)]
            x += ['ds_write_b128 %s, %s offset:%d' % (v(vTW), v(pkd + 4 * h, 4), (T & 1) * 2560 + 32 * h) for h in range(2)]
            x += ['ds_read_b128 %s, %s offset:%d' % (v(pkd + 8 + 4 * q, 4), v(vTR), (T & 1) * 2560 + 1280 * q) for q in range(2)]
            return x
        stB = lambda T: [f('buffer_store_dwordx4 %s, %s, %s, %s offen offset:%d' % (v(pkd + 8 + 4 * q, 4), v(vGO), ws, s(sdst1 if q else sdst0), 64 * T)) for q in range(2)]
        for T in range(5):
            a_ = acc + 16 * (T & 1)
            main = ['v_mfma_f32_32x32x16_bf16 %s, %s, %s, %s' % (v(a_, 16), W2(T, ks), v(U + 4 * ks, 4), '0' if ks == 0 else v(a_, 16)) for ks in range(8)]
            fill = {}
            if T >= 2:
                fill = {0: stB(T - 2)[:1], 7: stB(T - 2)[1:]}
            if T >= 1:
                x = stA(T - 1)
                for g_, part in ((1, x[0:4]), (2, x[4:8]), (3, x[8:10]), (4, x[12:13]), (5, x[10:12]), (6, x[13:14]), (7, x[14:16])):
                    fill.setdefault(g_, []).extend(part)
            E.weave(main, fill)
            if PX['b5cy'] and T in (0, 1, 4):
                cy(P, {0: 7, 1: 8, 4: 9}[T])
        for x in stB(3) + stA(4) + stB(4):
            E(x)
    local_stores(P, [], emit)


def flag_offsets(P):
    P('s_cmp_lt_u32 %s, 5' % s(S_CLS))
    P('s_cselect_b32 %s, 1, 0' % s(sK2))
    P('s_cselect_b32 %s, 2, 5' % s(t0))
    P('s_sub_u32 %s, %s, %s' % (s(sK0), s(S_CLS), s(t0)))
    P('s_mov_b32 %s, %s' % (s(sK1), s(S_IDX)))
    P('s_lshl_b32 %s, %s, 7' % (s(sA), s(sK1)))
    P('s_lshl_b32 %s, %s, 3' % (s(t0), s(sK0)))
    P('s_add_u32 %s, %s, %s' % (s(sA), s(sA), s(t0)))
    P('s_lshl_b32 %s, %s, 2' % (s(t0), s(sK2)))
    P('s_add_u32 %s, %s, %s' % (s(sA), s(sA), s(t0)))
    P('s_add_u32 %s, %s, 0x%x' % (s(sA), s(sA), PFLAG))
    P('s_lshl_b32 %s, %s, 2' % (s(sB), s(sC)))
    P('s_add_u32 %s, %s, 0x%x' % (s(sB), s(sB), LNFLAG))


def init_clear(P):
    L, L2 = P.newlabel('ic'), P.newlabel('ic2')
    P('s_cmp_lg_u32 %s, 0' % s(sW))
    P('s_cbranch_scc1 %s' % L)
    if PX['n1']:
        put_flag(P, sA, '0', 4)
    else:
        P('s_lshl_b32 %s, %s, 6' % (s(t0), s(sK2)))
        put_flag(P, sA, t0, 4)
    put_flag(P, sB, '0', 4)
    P('s_cmp_lg_u32 %s, 0' % s(sC))
    P('s_cbranch_scc1 %s' % L)
    for i in range(4):
        P('v_mov_b32 %s, 0' % v(4 + i))
    for off in (ATFLAG, ATFLAG + 1024, ATFLAG + 2048, ZB - 2560, ZB - 1536, ZB - 1024, ZB + 2048 * 1280, ZB + 2048 * 1280 + 1024, ZB + 2048 * 1280 + 1536):
        P('s_mov_b32 %s, 0x%x' % (s(t0), off))
        P('buffer_store_dwordx4 %s, %s, %s, %s offen sc1' % (v(4, 4), v(vL16), ws, s(t0)))
    P.label(L)


def role_ln0(P):
    Lskip = P.newlabel('ln0skip')
    vR2, X, Rp, tt = 32, 44, 112, 80
    NR = 4 if PX['n1'] else 8
    P('s_cmp_ge_u32 %s, %d' % (s(sC), 512 // NR))
    P('s_cbranch_scc1 %s' % Lskip)
    for r in range(NR):
        if not PX['n1']:
            P('s_waitcnt vmcnt(%d)' % (3 * (NR - 1)))
        unpack(P, X, Rp + 6 * r)
        layernorm(P, X, tt)
        pack(P, Rp + 6 * r, X)
        P('s_add_u32 %s, %s, 0x%x' % (s(t1), s(sE), XN + r * 1280))
        row_store(P, Rp + 6 * r, vR2, ws, t1)
    signal_wg(P, sB, '1', 34)
    P.label(Lskip)
    tl(P, 2)
    P('s_waitcnt vmcnt(0)')


def ln0_fetch(P):
    Lskip = P.newlabel('ln0f')
    vR2, Rp = 32, 112
    NR = 4 if PX['n1'] else 8
    row_consts(P, 36, 33, vR2, 80)
    P('s_cmp_ge_u32 %s, %d' % (s(sC), 512 // NR))
    P('s_cbranch_scc1 %s' % Lskip)
    load_ptr(P, KA_X, S * D * 2, S_OUT)
    P('s_lshl_b32 %s, %s, 2' % (s(sE), s(sC)))
    P('s_add_u32 %s, %s, %s' % (s(sE), s(sE), s(sW)))
    P('s_mul_i32 %s, %s, %d' % (s(sE), s(sE), NR * 1280))
    for r in range(NR):
        P('s_add_u32 %s, %s, %d' % (s(t1), s(sE), r * 1280))
        row_load(P, Rp + 6 * r, vR2, s(S_OUT, 4), t1, '')
    P.label(Lskip)


def role_p(P):
    vS, vF, Bf, acc, pkd, vSt = 8, 16, 24, 64, 96, 104
    sEx0 = 46
    Wf = lambda kk: a(4 * kk, 4)
    sMat, sH, sPar = sK0, sK1, sK2
    sX0, sL0, sDst, sDstB = sC2, sD, sE, sF
    sXB, sN, sCnt = 48, 49, 50
    N1 = PX['n1']

    def seg(dst, off):
        return ['s_add_u32 %s, %s, %d' % (s(t3), s(sIt), off) if off >= 0 else 's_sub_u32 %s, %s, %d' % (s(t3), s(sIt), -off),
                's_max_i32 %s, %s, 0' % (s(t3), s(t3)),
                's_add_u32 %s, %s, %s' % (s(dst), s(t3), s(sN)), 's_lshl_b32 %s, %s, 1' % (s(t3), s(t3)),
                's_min_u32 %s, %s, %s' % (s(dst), s(dst), s(t3)), 's_add_u32 %s, %s, %s' % (s(dst), s(dst), s(sPar))]

    def xwin(off):
        return seg(sX0, off) + ['s_mul_i32 %s, %s, 40960' % (s(sX0), s(sX0)), 's_add_u32 %s, %s, %s' % (s(sX0), s(sX0), s(sXB))]

    def dst(off):
        return seg(sDst, off) + ['s_lshl_b32 %s, %s, 18' % (s(sDst), s(sDst)), 's_add_u32 %s, %s, %s' % (s(sDst), s(sDst), s(sDstB))]
    P('s_lshl_b32 %s, %s, 3' % (s(t0), s(sMat)))
    P('s_add_u32 %s, %s, %d' % (s(t0), s(t0), KA_WQ))
    P('s_load_dwordx2 s[76:77], s[0:1], %s' % s(t0))
    P('s_waitcnt lgkmcnt(0)')
    srd(P, S_TMP, 76, 640 * 8192)
    P('s_lshl_b32 %s, %s, 8' % (s(t3), s(sH)))
    def between():
        P('s_waitcnt vmcnt(40)')
        P('s_barrier')
        R.arrive(P)
        tl(P, 1)
        if N1:
            role_ln0(P)
    load_w1(P, Wf, 8192, t3, 24, between)
    tl(P, 3)
    stage_setup(P, vS, vF, None, 24)
    P('v_and_b32 %s, 15, %s' % (v(24), v(vLane)))
    P('v_bfe_u32 %s, %s, 4, 1' % (v(25), v(vLane)))
    P('v_lshrrev_b32 %s, 5, %s' % (v(26), v(vLane)))
    P('v_lshl_add_u32 %s, %s, 4, %s' % (v(24), v(26), v(24)))
    P('v_lshlrev_b32 %s, 4, %s' % (v(24), v(24)))
    P('v_lshl_add_u32 %s, %s, 10, %s' % (v(vSt), v(25), v(24)))
    P('s_cmp_eq_u32 %s, 0' % s(sMat))
    P('s_cselect_b32 %s, 3, %s' % (s(t0), s(sMat)))
    P('s_sub_u32 %s, %s, 1' % (s(t0), s(t0)))
    P('s_lshl_b32 %s, %s, 24' % (s(sDst), s(t0)))
    P('s_lshl_b32 %s, %s, 2' % (s(t0), s(sH)))
    P('s_add_u32 %s, %s, %s' % (s(t0), s(t0), s(sW)))
    P('s_lshl_b32 %s, %s, 11' % (s(t0), s(t0)))
    P('s_add_u32 %s, %s, %s' % (s(sDst), s(sDst), s(t0)))
    P('s_add_u32 %s, %s, 0x%x' % (s(sDstB), s(sDst), KX))
    P('s_mul_i32 %s, %s, 5120' % (s(t1), s(sW)))
    P('s_lshl_b32 %s, %s, 10' % (s(sLdsW), s(sW)))
    P('s_add_u32 %s, %s, 0x%x' % (s(sXB), s(t1), XN))
    P('s_cmp_eq_u32 %s, 1' % s(sPar))
    P('s_cselect_b32 %s, 64, %d' % (s(sN), N1))
    P('s_cselect_b32 %s, %d, %d' % (s(sCnt), N1, 64 - N1))
    P('s_mov_b32 %s, 0' % s(sIt))
    P('s_cmp_eq_u32 %s, 0' % s(sW))
    P('s_cselect_b32 %s, 1, 0' % s(sEx0))
    P('s_mov_b32 %s, 0' % s(sEx0 + 1))
    P('v_mov_b32 v105, 0')
    R.wait_all(P)
    P('s_mov_b32 %s, 1' % s(sNeed))
    P('s_mov_b32 %s, 0x%x' % (s(t0), LNFLAG))
    poll_ge(P, t0, 64, sNeed, 24, sleep=1)
    if N1:
        P('s_mov_b32 %s, 0x%x' % (s(t0), LNFLAG + 256))
        poll_ge(P, t0, 64, sNeed, 24, sleep=1)
    dma = lambda slot: [stage_one(vS, sX0, sLdsW, cg, g, 8192, t4) for cg in range(5) for g in range(2)]
    for i in range(2):
        for x in xwin(i):
            P(x)
        P('s_add_u32 %s, %s, %d' % (s(sL0), s(sLdsW), i * 40960))
        for cg in range(5):
            for g in range(2):
                for x in stage_one(vS, sX0, sL0, cg, g, 8192, t4):
                    P(x)
    P('s_waitcnt vmcnt(10)')
    if DIAG[0]:
        tl(P, 4); P('s_waitcnt vmcnt(0)')
    P('s_barrier')
    rd = ['ds_read_b128 %s, %s offset:%d' % (v(Bf + 4 * (kk % 8), 4), v(vF + (kk & 7)), (kk >> 3) * 8192) for kk in range(40)]
    for kk in range(5):
        P(rd[kk])
    epi = lambda a_: [cvt(pkd + 2 * n + y, a_ + 4 * i + 2 * y) for n, i in enumerate((0, 2, 1, 3)) for y in range(2)]
    sts = ['buffer_store_dwordx4 %s, %s, %s, %s offen offset:%d sc1' % (v(pkd + 4 * y, 4), v(vSt), ws, s(sDst), 512 * y) for y in range(2)]
    if DIAG[0] in (1, 2):
        P('s_memtime s[90:91]'); P('s_mov_b32 s87, 0'); P('s_mov_b32 s88, 0')
    Lv, Lend = P.newlabel('P_v'), P.newlabel('P_end')
    P('s_cmp_eq_u32 %s, 2' % s(sMat))
    P('s_cbranch_scc1 %s' % Lv)
    for isv in (0, 1):
        if isv:
            P.label(Lv)
        Ltop = P.newlabel('P_top')
        P.label(Ltop)
        for u in range(6):
            slot, a_, ap = u % 3, acc + 16 * (u & 1), acc + 16 * (1 - (u & 1))
            E = LgkmTrack(P)
            E.q = [Inst(x).wr for x in rd[:5]]
            main = []
            for kk in range(40):
                A_, B_ = (v(Bf + 4 * (kk % 8), 4), Wf(kk)) if isv else (Wf(kk), v(Bf + 4 * (kk % 8), 4))
                main.append('v_mfma_f32_32x32x16_bf16 %s, %s, %s, %s' % (v(a_, 16), A_, B_, '0' if kk == 0 else v(a_, 16)))
            fill = {}
            addfill(fill, 0, rd[5:])
            e = epi(ap)
            for k in range(4):
                fill.setdefault(2 + k, []).extend(e[2 * k:2 * k + 2])
            addfill(fill, 6, sts if not PX['nost'] else [])
            x = dst(-1)
            fill[0] += x[:4]; fill[1] += x[4:]
            x = xwin(2)
            fill[6] += x[:4]; fill[7] += x[4:] + ['s_add_u32 %s, %s, %d' % (s(sL0), s(sLdsW), ((slot + 2) % 3) * 40960)]
            k = 8
            for cg in range(5):
                for g in range(2):
                    if not PX['nodma']:
                        fill.setdefault(k, []).extend(stage_one(vS, sX0, sL0, cg, g, 8192, t4))
                    k += 2
            addfill(fill, 28, ['v_add_u32 %s, %d, %s' % (v(vF + i), 40960 if slot < 2 else -81920, v(vF + i)) for i in range(8)])
            x = seg(t0, -1)
            fill[29] += x[:3]; fill[30] += x[3:]
            fill[31] += ['v_mov_b32 v106, %s' % s(t0), 's_add_u32 %s, %s, 1' % (s(sIt), s(sIt))]
            E.weave(main[:36], fill)
            if DIAG[0] == 2:
                P('s_memtime s[82:83]'); P('s_waitcnt lgkmcnt(0)')
            P('s_waitcnt vmcnt(12) lgkmcnt(0)')
            if DIAG[0] == 2:
                P('s_memtime s[84:85]'); P('s_waitcnt lgkmcnt(0)'); P('s_sub_u32 s86, s84, s82'); P('s_add_u32 s87, s87, s86')
            P('s_barrier')
            if DIAG[0] == 2:
                P('s_memtime s[82:83]'); P('s_waitcnt lgkmcnt(0)'); P('s_sub_u32 s86, s82, s84'); P('s_add_u32 s88, s88, s86')
            E.q = []
            P(rd[0])
            P('s_mov_b64 exec, %s' % s(sEx0, 2))
            P('buffer_store_dword v106, v105, %s, %s offen sc1' % (ws, s(sA)))
            P('s_mov_b64 exec, -1')
            for k in range(36, 40):
                P(main[k]); P(rd[k - 35])
            if u & 1:
                P('s_cmp_eq_u32 %s, %s' % (s(sIt), s(sCnt)))
                P('s_cbranch_scc1 %s' % Lend)
        P('s_branch %s' % Ltop)
    P.label(Lend)
    if DIAG[0] in (1, 2):
        P('s_memtime s[92:93]'); P('s_waitcnt lgkmcnt(0)'); P('s_sub_u32 s89, s92, s90')
        P('s_lshl_b32 s80, s2, 2'); P('s_add_u32 s80, s80, %s' % s(sW)); P('s_lshl_b32 s80, s80, 9'); P('s_add_u32 s80, s80, 0x%x' % TL)
        for k in range(3):
            P('v_mov_b32 v108, s%d' % (87 + k)); P('buffer_store_dword v108, v105, %s, s80 offen offset:%d' % (ws, 4 * (8 + k)))
    for x in dst(-1) + epi(acc + 16) + sts:
        P(x)
    P('s_waitcnt lgkmcnt(0)')
    signal_wg(P, sA, '64', 28)


def role_at(P):
    sSet, sH = sK0, S_IDX
    sKQ, sKMo, sPart, sRow = sA, sB, sC2, sD
    sFlagAT, sFlagZ = sE, sF
    W2 = lambda T, ks: a(32 * T + 4 * ks, 4)
    vTW, vTR, vGO, vOW, vSel, vRo, vR2 = 2, 3, 4, 5, 8, 6, 7
    Q, K, KMr, V, VMr = 20, 36, 68, 84, 100
    S_, O_, Bx, Bm, mx, tm = 108, 120, 136, 140, 142, 143
    U, acc, pkd = 144, 176, 208
    Dd, X, Rp, tt, Rq = 224, 108, 236, 128, 144
    GB = lambda n: a(160 + 4 * n, 4) if n < 24 else v(144 + 4 * (n - 24), 4)
    L_O, L_T = 0, 8192
    P('s_sub_u32 %s, %s, 2' % (s(sSet), s(S_CLS)))
    load_ptr(P, KA_WO, 4096 * 1280)
    P('s_mul_i32 %s, %s, %d' % (s(t4), s(sH), 128 * 1280))
    load_w2(P, W2, t4, True, 20)
    b5_setup(P, vTW, vTR, vGO, L_T, 32, 20)
    row_consts(P, vSel, vRo, vR2, 20)
    load_ptr(P, KA_X, S * D * 2, S_OUT)
    P('s_and_b32 %s, %s, 1' % (s(t0), s(sW)))
    P('s_lshr_b32 %s, %s, 1' % (s(t1), s(sW)))
    P('v_lshrrev_b32 v20, 5, %s' % v(vLane))
    P('v_bfe_u32 v21, %s, 4, 1' % v(vLane))
    P('v_and_b32 v22, 15, %s' % v(vLane))
    P('v_lshl_add_u32 v21, v21, 5, v22')
    P('v_lshlrev_b32 v21, 4, v21')
    P('v_lshl_add_u32 v21, v20, 10, v21')
    P('s_lshl_b32 %s, %s, 12' % (s(t2), s(t1)))
    P('s_lshl_b32 %s, %s, 8' % (s(t3), s(t0)))
    P('s_add_u32 %s, %s, %s' % (s(t2), s(t2), s(t3)))
    P('v_add_u32 %s, %s, v21' % (v(vOW), s(t2)))
    P('s_lshl_b32 %s, %s, 4' % (s(t2), s(t0)))
    P('v_add_u32 v22, %s, v22' % s(t2))
    P('v_lshrrev_b32 v20, 4, %s' % v(vLane))
    P('v_lshlrev_b32 v20, 2, v20')
    P('v_sub_u32 v22, v22, v20')
    for k in range(8):
        P('v_cmp_le_i32 %s, %d, v22' % (s(sMask + 2 * k, 2), 16 * (k >> 2) + (k & 3)))
    P('s_mov_b32 %s, 0x3e0293ee' % s(sPk))
    P('s_mov_b32 %s, 0x3e0293ee' % s(sPk + 1))
    P('s_lshl_b32 %s, %s, 10' % (s(sPk + 2), s(t0)))
    P('s_lshl_b32 %s, %s, 12' % (s(sPk + 3), s(t1)))
    P('s_lshl_b32 %s, %s, 11' % (s(sPk + 4), s(t1)))
    P('s_lshl_b32 %s, %s, 7' % (s(t2), s(sSet)))
    P('s_lshl_b32 %s, %s, 2' % (s(t3), s(sH)))
    P('s_add_u32 %s, %s, %s' % (s(t2), s(t2), s(t3)))
    P('s_add_u32 %s, %s, 0x%x' % (s(sFlagAT), s(t2), ATFLAG))
    P('s_add_u32 %s, %s, 0x%x' % (s(sFlagZ), s(t2), ZFLAG))
    sGD, sGDm = 46, 47
    P('s_add_u32 %s, %s, 0x%x' % (s(sGDm), s(t2), GDFLAG))
    P('s_lshl_b32 %s, %s, 7' % (s(sGD), s(sSet)))
    P('s_add_u32 %s, %s, 0x%x' % (s(sGD), s(sGD), GDFLAG))
    P('v_and_b32 v249, 31, %s' % v(vLane))
    P('v_lshlrev_b32 v249, 2, v249')
    P('s_mov_b32 %s, %s' % (s(sSeg), s(sSet)))
    P('s_mov_b32 %s, 0' % s(sIt))
    sPc, sKc = sPk + 5, sPk + 6
    P('s_mov_b32 %s, 0' % s(sPc))
    P('s_mov_b32 %s, 0' % s(sKc))
    tl(P, 6)

    def fetch_qkv(ahead):
        P('s_lshl_b32 %s, %s, 7' % (s(t0), s(sH)))
        P('s_add_u32 %s, %s, %d' % (s(sNeed), s(sSeg), 1 + 3 * ahead))
        poll_cached(P, t0, 6, sNeed, sPc, 246)
        P('s_add_u32 %s, %s, %d' % (s(t0), s(sSeg), 3 * ahead))
        P('s_lshl_b32 %s, %s, 5' % (s(t0), s(t0)))
        P('s_add_u32 %s, %s, %s' % (s(t0), s(t0), s(sH)))
        P('s_lshl_b32 %s, %s, 13' % (s(sKQ), s(t0)))
        P('s_add_u32 %s, %s, 0x%x' % (s(sKQ), s(sKQ), KX))
        q0, q1, k1, v0 = 96, 97, 98, 99
        P('s_add_u32 %s, %s, 4096' % (s(k1), s(sKQ)))
        P('s_add_u32 %s, %s, %s' % (s(q0), s(sKQ), s(sPk + 2)))
        P('s_add_u32 %s, %s, 0x%x' % (s(q0), s(q0), QX - KX))
        P('s_add_u32 %s, %s, 4096' % (s(q1), s(q0)))
        P('s_add_u32 %s, %s, %s' % (s(v0), s(sKQ), s(sPk + 3)))
        P('s_add_u32 %s, %s, 0x%x' % (s(v0), s(v0), VX - KX))
        ld = lambda d, so, off: 'buffer_load_dwordx4 %s, %s, %s, %s offen offset:%d sc1 nt' % (v(d, 4), v(vL16), ws, s(so), off)
        return ([ld(K + 8 * w_ + 4 * t, sKQ if w_ < 2 else k1, (w_ & 1) * 2048 + t * 1024) for w_ in range(4) for t in range(2)] +
                [ld(Q + 4 * w_, q0 if w_ < 2 else q1, (w_ & 1) * 2048) for w_ in range(4)] +
                [ld(V + 4 * i, v0, 1024 * i) for i in range(4)])
    for x in fetch_qkv(0):
        P(x)
    P('s_mul_i32 %s, %s, 0x%x' % (s(sPart), s(sSet), APART_S))
    P('s_add_u32 %s, %s, 0x%x' % (s(sPart), s(sPart), APART))
    P('s_mul_i32 %s, %s, %d' % (s(t0), s(sH), 32 * 1280))
    P('s_add_u32 %s, %s, %s' % (s(t0), s(t0), s(sPart)))
    P('s_mul_i32 %s, %s, 10240' % (s(t1), s(sW)))
    P('s_add_u32 %s, %s, %s' % (s(t0), s(t0), s(t1)))
    for i in range(10):
        P('buffer_load_dwordx4 %s, %s, %s, %s offen sc1' % (v(U, 4), v(vL16), ws, s(t0)))
        P('s_add_u32 %s, %s, 1024' % (s(t0), s(t0)))
    P('s_waitcnt vmcnt(0)')
    cy_init(P)
    Ltop = P.newlabel('AT_top')
    P.label(Ltop)
    P('s_lshl_b32 %s, %s, 5' % (s(t0), s(sSeg)))
    P('s_add_u32 %s, %s, %s' % (s(t0), s(t0), s(sH)))
    P('s_lshl_b32 %s, %s, 12' % (s(sKMo), s(t0)))
    P('s_add_u32 %s, %s, 0x%x' % (s(sKMo), s(sKMo), KM))
    mm = lambda d, a_, b_, c_: P('v_mfma_f32_16x16x32_bf16 %s, %s, %s, %s' % (v(d, 4), v(a_, 4), v(b_, 4), c_))
    for w_ in range(4):
        for t in range(2):
            mm(S_ + 4 + 4 * t, K + 8 * w_ + 4 * t, Q + 4 * w_, '0' if w_ == 0 else v(S_ + 4 + 4 * t, 4))
    P('s_lshl_b32 %s, %s, 7' % (s(t0), s(sH)))
    P('s_add_u32 %s, %s, 0x%x' % (s(t0), s(t0), KMFLAG))
    P('s_add_u32 %s, %s, 1' % (s(sNeed), s(sSeg)))
    poll_cached(P, t0, 2, sNeed, sKc, 246)
    cy(P, 0)
    P('buffer_load_dword v248, v249, %s, %s offen sc1' % (ws, s(sGD)))
    for w_ in range(4):
        P('buffer_load_dwordx4 %s, %s, %s, %s offen offset:%d sc1' % (v(KMr + 4 * w_, 4), v(vL16), ws, s(sKMo), 1024 * w_))
    P('s_add_u32 %s, %s, %s' % (s(t0), s(sKMo), s(sPk + 4)))
    P('s_add_u32 %s, %s, 0x%x' % (s(t0), s(t0), VM - KM))
    for i in range(2):
        P('buffer_load_dwordx4 %s, %s, %s, %s offen offset:%d sc1' % (v(VMr + 4 * i, 4), v(vL16), ws, s(t0), 1024 * i))
    P('v_mov_b32 %s, 0xff800000' % v(tm))
    for k in range(8):
        P('v_cndmask_b32 %s, %s, %s, %s' % (v(S_ + 4 + k), v(tm), v(S_ + 4 + k), s(sMask + 2 * k, 2)))
    P('v_max3_f32 %s, %s, %s, %s' % (v(mx), v(S_ + 4), v(S_ + 5), v(S_ + 6)))
    P('v_max3_f32 %s, %s, %s, %s' % (v(mx), v(mx), v(S_ + 7), v(S_ + 8)))
    P('v_max3_f32 %s, %s, %s, %s' % (v(mx), v(mx), v(S_ + 9), v(S_ + 10)))
    P('v_max_f32 %s, %s, %s' % (v(mx), v(mx), v(S_ + 11)))
    for w_ in range(4):
        P('s_waitcnt vmcnt(%d)' % (5 - w_))
        mm(S_, KMr + 4 * w_, Q + 4 * w_, '0' if w_ == 0 else v(S_, 4))
    cy(P, 1)
    P('v_max3_f32 %s, %s, %s, %s' % (v(mx), v(mx), v(S_), v(S_ + 1)))
    P('v_max3_f32 %s, %s, %s, %s' % (v(mx), v(mx), v(S_ + 2), v(S_ + 3)))
    for sw in ('16', '32'):
        P('v_mov_b32 %s, %s' % (v(tm), v(mx)))
        P('v_permlane%s_swap_b32 %s, %s' % (sw, v(mx), v(tm)))
        P('v_max_f32 %s, %s, %s' % (v(mx), v(mx), v(tm)))
    P('v_mul_f32 %s, %s, %s' % (v(mx), s(sPk), v(mx)))
    for r in range(0, 12, 2):
        P('v_pk_fma_f32 %s, %s, %s, %s op_sel_hi:[1,1,0] neg_lo:[0,0,1] neg_hi:[0,0,1]' % (v(S_ + r, 2), v(S_ + r, 2), s(sPk, 2), v(mx, 2)))
    for r in range(12):
        P('v_exp_f32 %s, %s' % (v(S_ + r), v(S_ + r)))
    for i in range(4):
        P(cvt(Bx + i, S_ + 4 + 2 * i))
    for i in range(2):
        P(cvt(Bm + i, S_ + 2 * i))
    P('s_waitcnt vmcnt(0)')
    for i in range(4):
        mm(O_ + 4 * i, V + 4 * i, Bx, '0')
    for i in range(4):
        P('v_mfma_f32_16x16x16_bf16 %s, %s, %s, %s' % (v(O_ + 4 * i, 4), v(VMr + 2 * i, 2), v(Bm, 2), v(O_ + 4 * i, 4)))
    P(pk('add', S_, S_, S_ + 2)); P(pk('add', S_ + 4, S_ + 4, S_ + 6)); P(pk('add', S_ + 8, S_ + 8, S_ + 10))
    P(pk('add', S_ + 4, S_ + 4, S_ + 8))
    P('v_add_f32 %s, %s, %s' % (v(S_), v(S_), v(S_ + 1)))
    P('v_add_f32 %s, %s, %s' % (v(S_ + 4), v(S_ + 4), v(S_ + 5)))
    P('v_fma_f32 %s, %s, 0.5, %s' % (v(mx), v(S_), v(S_ + 4)))
    for sw in ('16', '32'):
        P('v_mov_b32 %s, %s' % (v(tm), v(mx)))
        P('v_permlane%s_swap_b32 %s, %s' % (sw, v(mx), v(tm)))
        P('v_add_f32 %s, %s, %s' % (v(mx), v(mx), v(tm)))
    P('v_rcp_f32 %s, %s' % (v(mx), v(mx)))
    for r in range(0, 16, 2):
        P('v_pk_mul_f32 %s, %s, %s op_sel_hi:[1,0]' % (v(O_ + r, 2), v(O_ + r, 2), v(mx, 2)))
    for i in range(8):
        P(cvt(pkd + i, O_ + 2 * i))
    for i in range(2):
        P('ds_write_b128 %s, %s offset:%d' % (v(vOW), v(pkd + 4 * i, 4), L_O + 2048 * i))
    cy(P, 2)
    Lfree = P.newlabel('AT_free')
    P('v_cmp_gt_u32 vcc, %s, v248' % s(sIt))
    P('s_cbranch_vccz %s' % Lfree)
    poll_ge(P, sGD, 32, sIt, 246, sleep=1)
    P.label(Lfree)
    P('s_mul_i32 %s, %s, 1280' % (s(t0), s(sH)))
    P('s_mul_i32 %s, %s, 320' % (s(t1), s(sW)))
    P('s_add_u32 %s, %s, %s' % (s(t0), s(t0), s(t1)))
    P('s_add_u32 %s, %s, %s' % (s(t0), s(t0), s(sPart)))
    P('s_add_u32 %s, %s, %d' % (s(t1), s(t0), 16 * 32 * 1280))
    P('s_lshl_b32 %s, %s, 5' % (s(sRow), s(sSeg)))
    P('s_add_u32 %s, %s, %s' % (s(sRow), s(sRow), s(sH)))
    P('s_mul_i32 %s, %s, 1280' % (s(sRow), s(sRow)))
    row_load(P, Rp, vR2, s(S_OUT, 4), sRow, '')
    P('s_waitcnt lgkmcnt(0)')
    P('s_barrier')
    cy(P, 3)
    b5(P, W2, L_O, U, acc, pkd, vTW, vTR, vGO, t0, t1)
    cy(P, 4)
    P('s_add_u32 %s, %s, 1' % (s(sIt), s(sIt)))
    signal_wg(P, sFlagAT, sIt, 246, True)
    R.dbgtime(P, 0, 250)
    cy(P, 5)
    tl(P, (sIt, 63))
    def prefetch():
        Ls = P.newlabel('AT_nopf')
        P('s_cmp_ge_u32 %s, 61' % s(sSeg))
        P('s_cbranch_scc1 %s' % Ls)
        for x in fetch_qkv(1):
            P(x)
        P.label(Ls)
    Lnc, Lc = P.newlabel('AT_nc'), P.newlabel('AT_c')
    P('s_cmp_eq_u32 %s, 0' % s(sW))
    P('s_cbranch_scc1 %s' % Lc)
    prefetch()
    P('s_waitcnt vmcnt(0)')
    P('s_branch %s' % Lnc)
    P.label(Lc)
    P('s_lshl_b32 %s, %s, 7' % (s(t0), s(sSet)))
    P('s_add_u32 %s, %s, 0x%x' % (s(t0), s(t0), ATFLAG))
    poll_ge(P, t0, 32, sIt, 246, sleep=0)
    cy(P, 6)
    P('s_mul_i32 %s, %s, %d' % (s(t0), s(sH), 32 * 1280))
    P('s_add_u32 %s, %s, %s' % (s(t0), s(t0), s(sPart)))
    gather_sum(P, Dd, GB, vSel, vRo, vRo, t0, 8, t1)
    put_flag(P, sGDm, sIt, 246, True)
    prefetch()
    cy(P, 7)
    add_rounded(P, X, Dd, Rp, Rq)
    P('s_add_u32 %s, %s, 0x%x' % (s(t0), s(sRow), HB))
    row_store(P, Rp, vR2, ws, t0)
    unpack(P, X, Rp)
    layernorm(P, X, tt)
    pack(P, Rq, X)
    P('s_add_u32 %s, %s, 0x%x' % (s(t0), s(sRow), YB))
    row_store(P, Rq, vR2, ws, t0)
    unpack(P, X, Rq)
    layernorm_again(P, X, tt)
    pack(P, Rq + 6, X)
    P('s_add_u32 %s, %s, 0x%x' % (s(t0), s(sRow), ZB))
    row_store(P, Rq + 6, vR2, ws, t0)
    cy(P, 8)
    P('s_waitcnt vmcnt(0)')
    cy(P, 9)
    put_flag(P, sFlagZ, sIt, 246)
    P.label(Lnc)
    tl(P, (sIt, 15))
    P('s_add_u32 %s, %s, 3' % (s(sSeg), s(sSeg)))
    P('s_cmp_lt_u32 %s, 64' % s(sSeg))
    P('s_cbranch_scc1 %s' % Ltop)
    cy_dump(P, 246)


def role_df(P, sCl, sJ):
    W1 = lambda kk: a(4 * kk, 4)
    def W2(T, ks):
        n = 8 * T + ks
        return a(160 + 4 * n, 4) if n < 24 else v(192 + 4 * (n - 24), 4)
    vTW, vTR, vGO, vS, vF, vUW = 2, 3, 4, 5, 8, 6
    Bf, acc, pkd, U = 28, 60, 136, 100
    L_Z, L_U, L_T = 0, 46080, 54272
    sIsF, sSl, sSrc, sDst, sStr, sFlag = sK0, sK1, sA, sB, sC2, sD
    sNp, sDr = sE, sF
    Lf, Lj = P.newlabel('DF_f'), P.newlabel('DF_j')
    P('s_cmp_ge_u32 %s, 5' % s(sJ))
    P('s_cselect_b32 %s, 1, 0' % s(sIsF))
    P('s_cbranch_scc1 %s' % Lf)
    P('s_mov_b32 %s, %s' % (s(sSl), s(sJ)))
    load_ptr(P, KA_W1, 640 * 1280)
    P('s_lshl_b32 %s, %s, 8' % (s(t3), s(sSl)))
    load_w1(P, W1, 1280, t3, 28)
    load_ptr(P, KA_W2, 640 * 1280)
    P('s_mov_b32 %s, 5' % s(sNp))
    P('s_mov_b32 %s, 0x%x' % (s(sSrc), ZB - 2560))
    P('s_mul_i32 %s, %s, %d' % (s(sDst), s(sCl), 2 * DPART_S))
    P('s_add_u32 %s, %s, 0x%x' % (s(sDst), s(sDst), DPART))
    P('s_lshl_b32 %s, %s, 2' % (s(t0), s(sSl)))
    P('s_add_u32 %s, %s, %s' % (s(t0), s(t0), s(sW)))
    P('s_mul_i32 %s, %s, 52' % (s(t0), s(t0)))
    P('s_lshr_b32 %s, %s, 8' % (s(t0), s(t0)))
    P('s_lshl_b32 %s, %s, 2' % (s(t0), s(t0)))
    P('s_lshr_b32 %s, 0x4031, %s' % (s(sDr), s(t0)))
    P('s_and_b32 %s, %s, 15' % (s(sDr), s(sDr)))
    P('s_mov_b32 %s, %s' % (s(sFlag), s(sSl)))
    P('s_branch %s' % Lj)
    P.label(Lf)
    P('s_sub_u32 %s, %s, 5' % (s(sSl), s(sJ)))
    load_ptr(P, KA_W3, 640 * 3456)
    P('s_lshl_b32 %s, %s, 8' % (s(t3), s(sSl)))
    load_w1(P, W1, 3456, t3, 28)
    load_ptr(P, KA_W4, 1728 * 1280)
    P('s_mov_b32 %s, 14' % s(sNp))
    P('s_mul_i32 %s, %s, %d' % (s(sSrc), s(sCl), 2 * 40960))
    P('s_add_u32 %s, %s, 0x%x' % (s(sSrc), s(sSrc), Z2R - 2560))
    P('s_mul_i32 %s, %s, %d' % (s(sDst), s(sCl), 2 * FPART_S))
    P('s_add_u32 %s, %s, 0x%x' % (s(sDst), s(sDst), FPART))
    P('s_mov_b32 %s, 2' % s(sDr))
    P('s_add_u32 %s, %s, 8' % (s(sFlag), s(sSl)))
    P.label(Lj)
    P('s_mul_i32 %s, %s, %d' % (s(t4), s(sSl), 128 * 1280))
    load_w2(P, W2, t4, False, 28)
    b5_setup(P, vTW, vTR, vGO, L_T, s(sNp), 28)
    stage_setup(P, vS, vF, sDr, 28)
    P('s_lshl_b32 %s, %s, 11' % (s(t0), s(sW)))
    P('s_add_u32 %s, %s, %d' % (s(t0), s(t0), L_U))
    P('v_add_u32 %s, %s, %s' % (v(vUW), s(t0), v(vL16)))
    P('s_lshl_b32 %s, %s, 2' % (s(sFlag), s(sFlag)))
    P('s_lshl_b32 %s, %s, 7' % (s(t0), s(sCl)))
    P('s_add_u32 %s, %s, %s' % (s(sFlag), s(sFlag), s(t0)))
    P('s_add_u32 %s, %s, 0x%x' % (s(sFlag), s(sFlag), DFLAG))
    P('s_mul_i32 %s, %s, %d' % (s(sStr), s(sNp), 32 * 1280))
    P('s_mul_i32 %s, %s, 5120' % (s(t0), s(sW)))
    P('s_add_u32 %s, %s, %s' % (s(sSrc), s(sSrc), s(t0)))
    P('s_lshl_b32 %s, %s, 10' % (s(sLdsW), s(sW)))
    P('s_mul_i32 %s, %s, 1280' % (s(t0), s(sSl)))
    P('s_mul_i32 %s, %s, 320' % (s(t1), s(sW)))
    P('s_add_u32 %s, %s, %s' % (s(t0), s(t0), s(t1)))
    P('s_add_u32 %s, %s, %s' % (s(sDst), s(sDst), s(t0)))
    c0 = -2.0 * 1.4426950408889634 * 0.7978845608028654
    import struct
    fb = lambda x: struct.unpack('<I', struct.pack('<f', x))[0]
    for i in range(2):
        P('s_mov_b32 %s, 0x%08x' % (s(sPk + i), fb(c0 * 0.044715)))
    P('v_mov_b32 v132, 0x%08x' % fb(c0))
    P('v_mov_b32 v133, 0x%08x' % fb(c0))
    P('s_mov_b32 %s, %s' % (s(sSeg), s(sCl)))
    P('s_mov_b32 %s, 0' % s(sIt))
    tl(P, 6, 152)
    cy_init(P)
    Ltop, Lpf, Lgo, Ln9 = P.newlabel('DF_top'), P.newlabel('DF_pf'), P.newlabel('DF_go'), P.newlabel('DF_n9')
    P.label(Ltop)
    P('s_cmp_eq_u32 %s, 1' % s(sIsF))
    P('s_cbranch_scc1 %s' % Lpf)
    P('s_max_u32 %s, %s, 1' % (s(sNeed), s(sIt)))
    P('s_sub_u32 %s, %s, 1' % (s(sNeed), s(sNeed)))
    P('s_lshl_b32 %s, %s, 7' % (s(t0), s(sCl)))
    P('s_add_u32 %s, %s, 0x%x' % (s(t0), s(t0), EFLAG))
    poll_ge(P, t0, 32, sNeed, 28, sleep=0)
    P('s_mov_b32 %s, %s' % (s(t5), s(sSeg)))
    P('s_add_u32 %s, %s, 1' % (s(t1), s(sSeg)))
    P('s_min_u32 %s, %s, 63' % (s(t1), s(t1)))
    P('v_min_u32 v28, 47, %s' % v(vLane))
    P('v_lshrrev_b32 v29, 4, v28')
    P('v_sub_u32 v29, %s, v29' % s(t1))
    P('v_add_u32 v29, 3, v29')
    P('v_mul_u32_u24 v29, 43, v29')
    P('v_lshrrev_b32 v29, 7, v29')
    P('v_lshlrev_b32 v28, 3, v28')
    P('s_mov_b32 %s, 0x%x' % (s(t0), ZFLAG))
    Lp = P.newlabel('DF_pz')
    P.label(Lp)
    P('buffer_load_dwordx2 v[30:31], v28, %s, %s offen sc1' % (ws, s(t0)))
    P('s_waitcnt vmcnt(0)')
    P('v_min_u32 v30, v30, v31')
    P('v_cmp_gt_u32 vcc, v29, v30')
    P('s_cbranch_vccz %s' % Lgo)
    P('s_sleep 1')
    spin_retry(P, Lp, Lgo)
    P.label(Lpf)
    P('s_and_b32 %s, %s, 1' % (s(t5), s(sIt)))
    P('s_add_u32 %s, %s, 1' % (s(sNeed), s(sIt)))
    P('s_lshl_b32 %s, %s, 7' % (s(t0), s(sCl)))
    P('s_add_u32 %s, %s, 0x%x' % (s(t0), s(t0), EFLAG))
    poll_ge(P, t0, 32, sNeed, 28, sleep=0)
    P.label(Lgo)
    cy(P, 0)
    tl(P, (sIt, 64), 152)
    P('s_mul_i32 %s, %s, 40960' % (s(t5), s(t5)))
    P('s_add_u32 %s, %s, %s' % (s(t5), s(t5), s(sSrc)))
    Lst = P.newlabel('DF_st')
    P('s_cmp_lg_u32 %s, 0' % s(sW))
    P('s_cbranch_scc1 %s' % Ln9)
    for cg in range(5):
        for x in stage_one(vS, t5, sLdsW, cg, 2, 9216, t4):
            P(x)
    P.label(Ln9)
    pcs = [stage_one(vS, t5, sLdsW, cg, g_, 9216, t4) for cg in range(5) for g_ in range(2)]
    for x in sum(pcs[:6], []):
        P(x)
    P('s_and_b32 %s, %s, 1' % (s(t0), s(sIt)))
    P('s_mul_i32 %s, %s, %s' % (s(t0), s(t0), s(sStr)))
    P('s_add_u32 %s, %s, %s' % (s(t0), s(t0), s(sDst)))
    P('s_lshr_b32 %s, %s, 1' % (s(t1), s(sStr)))
    P('s_add_u32 %s, %s, %s' % (s(t1), s(t1), s(t0)))
    E = LgkmTrack(P)
    rd = ['ds_read_b128 %s, %s offset:%d' % (v(Bf + 4 * (kk % 8), 4), v(vF + (kk & 7)), (kk >> 3) * 9216) for kk in range(40)]
    cy(P, 1)
    P('s_waitcnt vmcnt(4)')
    P('s_barrier')
    cy(P, 2)
    for kk in range(5):
        E(rd[kk])
    main = ['v_mfma_f32_32x32x16_bf16 %s, %s, %s, %s' % (v(acc, 16), W1(kk), v(Bf + 4 * (kk % 8), 4), '0' if kk == 0 else v(acc, 16)) for kk in range(40)]
    fill = {0: pcs[6], 1: pcs[7], 4: pcs[8], 5: pcs[9]}
    for cg, n in ((1, 4), (2, 4), (3, 2), (4, 0)):
        fill[8 * cg - 5] = ['s_waitcnt vmcnt(%d)' % n, 's_barrier']
    addfill(fill, 0, rd[5:])
    E.weave(main, fill)
    cy(P, 3)
    g = acc + 16
    for r in range(0, 16, 2):
        P(pk('mul', g + r, acc + r, acc + r))
    for r in range(0, 16, 2):
        P('v_pk_fma_f32 %s, %s, %s, v[132:133]' % (v(g + r, 2), v(g + r, 2), s(sPk, 2)))
    for r in range(0, 16, 2):
        P(pk('mul', g + r, g + r, acc + r))
    for r in range(16):
        P('v_exp_f32 %s, %s' % (v(g + r), v(g + r)))
    for r in range(16):
        P('v_add_f32 %s, 1.0, %s' % (v(g + r), v(g + r)))
    for r in range(16):
        P('v_rcp_f32 %s, %s' % (v(g + r), v(g + r)))
    for r in range(0, 16, 2):
        P(pk('mul', g + r, g + r, acc + r))
    for i in range(8):
        P(cvt(pkd + i, g + 2 * i))
    for i in range(2):
        P('ds_write_b128 %s, %s offset:%d' % (v(vUW), v(pkd + 4 * i, 4), 1024 * i))
    P('s_waitcnt lgkmcnt(0)')
    P('s_barrier')
    cy(P, 4)
    b5(P, W2, L_U, U, acc, pkd, vTW, vTR, vGO, t0, t1)
    cy(P, 5)
    P('s_add_u32 %s, %s, 1' % (s(sIt), s(sIt)))
    signal_wg(P, sFlag, sIt, 28, True)
    cy(P, 6)
    tl(P, (sIt, 15), 152)
    P('s_add_u32 %s, %s, %d' % (s(sSeg), s(sSeg), NCL))
    P('s_cmp_lt_u32 %s, 64' % s(sSeg))
    P('s_cbranch_scc1 %s' % Ltop)
    cy_dump(P, 28)


def role_eg(P, sRowI, sCl):
    vSel, vRo, vRoE, vRoG, vR2 = 4, 2, 3, 13, 12
    Dd, X, Rp, Rh, Rq, Op, Oh, tt, GB = 16, 28, 40, 46, 52, 58, 64, 70, 76
    sRow, sPD, sPF, sFlag, sDF = sA, sB, sD, sC2, sE
    row_consts(P, vSel, vRo, vR2, 16)
    P('v_lshrrev_b32 v16, 4, %s' % v(vLane))
    P('v_mov_b32 v17, 0x7fff0000')
    for r_, n in ((vRoE, 1), (vRoG, 2)):
        P('v_cmp_gt_u32 vcc, %d, v16' % n)
        P('v_cndmask_b32 %s, v17, %s, vcc' % (v(r_), v(vRo)))
    load_ptr(P, KA_OUT, S * D * 2, S_OUT)
    P('s_lshl_b32 %s, %s, 5' % (s(t0), s(sCl)))
    P('s_add_u32 %s, %s, %s' % (s(t0), s(t0), s(sRowI)))
    P('s_lshl_b32 %s, %s, 2' % (s(sFlag), s(t0)))
    P('s_add_u32 %s, %s, 0x%x' % (s(sF), s(sFlag), ZFLAG))
    P('s_add_u32 %s, %s, 0x%x' % (s(sFlag), s(sFlag), EFLAG))
    P('s_mul_i32 %s, %s, 1280' % (s(sRow), s(t0)))
    sZ2 = sK0
    P('s_lshl_b32 %s, %s, 6' % (s(t0), s(sCl)))
    P('s_add_u32 %s, %s, %s' % (s(t0), s(t0), s(sRowI)))
    P('s_mul_i32 %s, %s, %d' % (s(sPD), s(t0), 5 * 1280))
    P('s_add_u32 %s, %s, 0x%x' % (s(sPD), s(sPD), DPART))
    P('s_mul_i32 %s, %s, %d' % (s(sPF), s(t0), 14 * 1280))
    P('s_add_u32 %s, %s, 0x%x' % (s(sPF), s(sPF), FPART))
    P('s_mul_i32 %s, %s, 1280' % (s(sZ2), s(t0)))
    P('s_add_u32 %s, %s, 0x%x' % (s(sZ2), s(sZ2), Z2R))
    for sb, str_, n in ((sPD, DPART_S, 7), (sPF, FPART_S, 18), (sZ2, 40960, 2)):
        for sl in range(2):
            for i in range(n):
                P('s_add_u32 %s, %s, %d' % (s(t1), s(sb), sl * str_ + 1024 * i))
                P('buffer_load_dwordx4 %s, %s, %s, %s offen sc1' % (v(GB, 4), v(vL16), ws, s(t1)))
    P('s_mov_b32 %s, %d' % (s(sK1), DPART_S))
    P('s_mov_b32 %s, %d' % (s(sK2), FPART_S))
    P('s_mov_b32 %s, 40960' % s(sPk))
    P('s_lshl_b32 %s, %s, 7' % (s(sDF), s(sCl)))
    P('s_add_u32 %s, %s, 0x%x' % (s(sDF), s(sDF), DFLAG))
    P('s_mov_b32 %s, %s' % (s(sSeg), s(sCl)))
    P('s_mov_b32 %s, 1' % s(sIt))
    cy_init(P)
    Ltop, LG, Lnog, Lend = P.newlabel('row_top'), P.newlabel('row_g'), P.newlabel('row_nog'), P.newlabel('row_end')
    P.label(Ltop)
    poll_ge(P, sF, 1, sIt, 16, sleep=4)
    P('s_add_u32 %s, %s, 0x%x' % (s(t0), s(sRow), YB))
    row_load(P, Rp, vR2, ws, t0)
    P('s_add_u32 %s, %s, 0x%x' % (s(t0), s(sRow), HB))
    row_load(P, Rh, vR2, ws, t0)
    poll_ge(P, sDF, 5, sIt, 16, sleep=0)
    cy(P, 0)
    gather_sum(P, Dd, GB, vSel, vRo, vRoE, sPD, 2, t1)
    cy(P, 1)
    add_rounded(P, X, Dd, Rp, GB)
    unpack(P, X, Rp)
    layernorm(P, X, tt)
    pack(P, Rq, X)
    row_store(P, Rq, vR2, ws, sZ2, 'local')
    if DIAG[0] == 1:
        P('s_add_u32 %s, %s, 0x%x' % (s(t0), s(sRow), Z2))
        row_store(P, Rq, vR2, ws, t0)
        P('s_add_u32 %s, %s, 0x%x' % (s(t0), s(sRow), X1))
        row_store(P, Rp, vR2, ws, t0)
    cy(P, 2)
    P('s_waitcnt vmcnt(0)')
    cy(P, 3)
    put_flag(P, sFlag, sIt, 16, True)
    tl(P, (sIt, 15))
    P('s_cmp_eq_u32 %s, 1' % s(sIt))
    P('s_cbranch_scc1 %s' % Lnog)
    P.label(LG)
    P('s_sub_u32 %s, %s, 1' % (s(sNeed), s(sIt)))
    P('s_add_u32 %s, %s, 32' % (s(t0), s(sDF)))
    poll_ge(P, t0, 14, sNeed, 16, sleep=0)
    cy(P, 4)
    gather_sum(P, Dd, GB, vSel, vRo, vRoG, sPF, 4, t1)
    cy(P, 5)
    add_rounded(P, X, Dd, Op, GB)
    unpack(P, X, Op)
    unpack(P, Dd, Oh)
    for i in range(0, 12, 2):
        P(pk('add', X + i, X + i, Dd + i))
    pack(P, Rq, X)
    P('s_sub_u32 %s, %s, %d' % (s(t0), s(sRow), 40960 * 3))
    row_store(P, Rq, vR2, s(S_OUT, 4), t0, '')
    cy(P, 6)
    tl(P, (sNeed, 63))
    P('s_add_u32 %s, %s, %s' % (s(sPF), s(sPF), s(sK2)))
    P('s_sub_u32 %s, 0, %s' % (s(sK2), s(sK2)))
    P('s_cmp_ge_u32 %s, 64' % s(sSeg))
    P('s_cbranch_scc1 %s' % Lend)
    P.label(Lnog)
    for i in range(12):
        P('v_mov_b32 %s, %s' % (v(Op + i), v(Rp + i)))
    P('s_add_u32 %s, %s, %d' % (s(sRow), s(sRow), 40960 * 3))
    P('s_add_u32 %s, %s, %s' % (s(sPD), s(sPD), s(sK1)))
    P('s_sub_u32 %s, 0, %s' % (s(sK1), s(sK1)))
    P('s_add_u32 %s, %s, %s' % (s(sZ2), s(sZ2), s(sPk)))
    P('s_sub_u32 %s, 0, %s' % (s(sPk), s(sPk)))
    P('s_add_u32 %s, %s, 1' % (s(sIt), s(sIt)))
    P('s_add_u32 %s, %s, 3' % (s(sSeg), s(sSeg)))
    P('s_cmp_lt_u32 %s, 64' % s(sSeg))
    P('s_cbranch_scc1 %s' % Ltop)
    P('s_branch %s' % LG)
    P.label(Lend)
    cy_dump(P, 16)


def role_post(P, Ldone):
    Lm, Lr = P.newlabel('post_m'), P.newlabel('post_r')
    read_mode(P, 4)
    P('s_cmp_ge_u32 %s, 5' % s(S_CLS))
    P('s_cbranch_scc1 %s' % Lm)
    role_at(P)
    P('s_branch %s' % Ldone)
    P.label(Lm)
    P('s_sub_u32 s46, %s, 5' % s(S_CLS))
    P('s_cmp_ge_u32 %s, 19' % s(S_IDX))
    P('s_cbranch_scc1 %s' % Lr)
    role_df(P, 46, S_IDX)
    P('s_branch %s' % Ldone)
    P.label(Lr)
    P('s_cmp_ge_u32 %s, 3' % s(sW))
    P('s_cbranch_scc1 %s' % Ldone)
    P('s_sub_u32 s47, %s, 19' % s(S_IDX))
    P('s_mul_i32 s47, s47, 3')
    P('s_add_u32 s47, s47, %s' % s(sW))
    P('s_cmp_ge_u32 s47, 32')
    P('s_cbranch_scc1 %s' % Ldone)
    role_eg(P, 47, 46)
    P('s_branch %s' % Ldone)


def role_worker(P, Ldone, stop=None):
    base_regs(P)
    tl(P, 0)
    flag_offsets(P)
    init_clear(P)
    ln0_fetch(P)
    if not PX['n1']:
        Lp, Lpost = P.newlabel('w_p'), P.newlabel('w_post')
        P('s_cmp_ge_u32 %s, 5' % s(S_CLS))
        P('s_cbranch_scc1 %s' % Lp)
        P('s_waitcnt vmcnt(0)')
        P('s_barrier')
        R.arrive(P)
        tl(P, 1)
        role_ln0(P)
        R.wait_all(P)
        for k in (3, 4):
            tl(P, k)
        P('s_branch %s' % Lpost)
        P.label(Lp)
    role_p(P)
    if not PX['n1']:
        P.label(Lpost)
    R.dbgtime(P, 14, 110)
    tl(P, 5)
    if stop == 'p':
        P('s_branch %s' % Ldone)
        return
    role_post(P, Ldone)
```
